```python
import torch

def _softmax(x, axis=-1):
    return torch.softmax(x, dim=axis)
def _gelu(x):
    return torch.nn.functional.gelu(x, approximate="tanh")
def _silu(x):
    return torch.nn.functional.silu(x)
def _sigmoid(x):
    return torch.sigmoid(x)
def _layernorm(x, axis=-1, eps=1e-5):
    m = x.mean(dim=axis, keepdim=True)
    v = x.var(dim=axis, keepdim=True, unbiased=False)
    return (x - m) / torch.sqrt(v + eps)
def _scatter_add(tgt, idx, src, axis=0):
    return tgt.clone().index_add_(axis, idx, src)
def _segment_sum(src, seg, n):
    out = torch.zeros((n,) + src.shape[1:], dtype=src.dtype)
    return out.index_add_(0, seg, src)
def _pad(x, pw):
    flat = tuple(v for pair in reversed(pw) for v in pair)
    return torch.nn.functional.pad(x, flat)

kernel_name = 'concat_heads__ssm_conv_h3__softmax_full_mha__prompt'

def setup_inputs():

    _w = (lambda a: (lambda t: t.to(torch.bfloat16) if t.is_floating_point() else t)(torch.as_tensor(a)))
    def _A_setup():
        B, S, D = 1, 2048, 512
        ks = 4
        return {
            "q": _w((lambda *s: torch.randn(*s, dtype=torch.bfloat16) * 0.05)(B, S, D)),
            "k": _w((lambda *s: torch.randn(*s, dtype=torch.bfloat16) * 0.4)(B, S, D)),
            "v": _w((lambda *s: torch.randn(*s, dtype=torch.bfloat16) * 0.4)(B, S, D)),
            "shift_k": _w((lambda *s: torch.randn(*s, dtype=torch.bfloat16) * 0.4)(D, ks) * 0.5),
            "ssm_k": _w((lambda *s: torch.randn(*s, dtype=torch.bfloat16) * 1.6)(D, S) * (1.0 / S ** 0.5)),
            "ssm_D": _w((lambda *s: torch.randn(*s, dtype=torch.bfloat16) * 0.4)(D)),
        }
    _A_in = _A_setup()

    def _B_setup():
        B, S, D = 1, 2048, 512
        return {
            "x": _w((lambda *s: torch.randn(*s, dtype=torch.bfloat16) * 0.2)(B, S, D)),
            "wqkv": _w((lambda *s: torch.randn(*s, dtype=torch.bfloat16) * 0.2)(D, 3 * D)),
            "wo": _w((lambda *s: torch.randn(*s, dtype=torch.bfloat16) * 0.05)(D, D)),
        }
    _B_in = _B_setup()

    return {
        "A_q": _A_in["q"],
        "A_k": _A_in["k"],
        "A_v": _A_in["v"],
        "A_shift_k": _A_in["shift_k"],
        "A_ssm_k": _A_in["ssm_k"],
        "A_ssm_D": _A_in["ssm_D"],
        "B_x": _B_in["x"],
        "B_wqkv": _B_in["wqkv"],
        "B_wo": _B_in["wo"],
    }

def reference(A_q, A_k, A_v, A_shift_k, A_ssm_k, A_ssm_D, B_x, B_wqkv, B_wo):
    def _A_ref(q, k, v, shift_k, ssm_k, ssm_D):
        B, S, D = q.shape
        ks = shift_k.shape[-1]
        k_pad = _pad(k, ((0, 0), (ks - 1, 0), (0, 0)))
        k_shift = torch.zeros_like(k)
        for t in range(ks):
            k_shift = k_shift + k_pad[:, t:t + S, :] * shift_k[:, ks - 1 - t][None, None, :]
        kv = k_shift * v
        L = 2 * S
        kv_pad = _pad(kv, ((0, 0), (0, S), (0, 0)))
        kf_pad = _pad(ssm_k, ((0, 0), (0, S)))
        kv_f = (lambda x, axes=(-2,-1): torch.fft.rfft2(x.float(), dim=axes))(kv_pad[:, None, :, :], axes=(1, 2))
        kf_f = (lambda x, axes=(-2,-1): torch.fft.rfft2(x.float(), dim=axes))(kf_pad[:, None, :], axes=(1, 2))
        kf_f = (lambda x, *d: x.permute(*d))(kf_f, 1, 2, 0)
        y_f = kv_f * kf_f[None, :, :, :]
        y = (lambda x, s, axes=(-2,-1): torch.fft.irfft2(x, s=s, dim=axes).to(torch.bfloat16))(y_f, (1, L), axes=(1, 2))[:, 0, :S, :]
        y = y + kv * ssm_D[None, None, :]
        return q * y

    def _B_ref(x, wqkv, wo):
        B, S, D = x.shape
        H = 32; Dh = D // H
        qkv = (lambda x, *d: x.permute(*d))((x @ wqkv).reshape(B, S, 3, H, Dh), 2, 0, 3, 1, 4)
        q, k, v = qkv[0], qkv[1], qkv[2]
        scale = Dh ** -0.5
        scores = torch.einsum("bhqd,bhkd->bhqk", q, k) * scale
        p = _softmax(scores, axis=-1)
        o = torch.einsum("bhqk,bhkd->bhqd", p, v)
        return (lambda x, *d: x.permute(*d))(o, 0, 2, 1, 3).reshape(B, S, D) @ wo

    a = _A_ref(A_q, A_k, A_v, A_shift_k, A_ssm_k, A_ssm_D)
    b = _B_ref(B_x, B_wqkv, B_wo)
    return torch.concatenate([a, b], axis=-1)
```

```python
import sys, math, struct

NAME = "concat_heads__ssm_conv_h3__softmax_full_mha__prompt"

WS_QF  = 0
WS_KV  = 2 << 20
WS_OF  = 6 << 20
WS_XR  = 8 << 20
XR_PITCH = 5120
WS_ZT  = 11 << 20
WS_SIZE = 13 << 20

KA_Q, KA_K, KA_V, KA_SHK, KA_SSMK, KA_SSMD, KA_X, KA_WQKV, KA_WO, KA_OUT, KA_DBG, KA_WS = [8*i for i in range(12)]

def f32bits(x): return struct.unpack("<I", struct.pack("<f", x))[0]

class Asm:
    def __init__(self): self.l = []
    def __call__(self, s):
        for line in s.strip("\n").split("\n"):
            self.l.append("    " + line.strip())
    def label(self, n): self.l.append(n + ":")
    def raw(self, s): self.l.append(s)
    def text(self): return "\n".join(self.l) + "\n"

def vr(b, n): return f"v[{b}:{b+n-1}]"
def sr(b, n): return f"s[{b}:{b+n-1}]"

def srd(a, d, ptr, size):
    a(f"s_mov_b32 s{d}, s{ptr}")
    a(f"s_and_b32 s{d+1}, s{ptr+1}, 0xffff")
    a(f"s_mov_b32 s{d+2}, {size}")
    a(f"s_mov_b32 s{d+3}, 0x00020000")

def kernel_head(a, name):
    a.raw(f".globl {name}")
    a.raw(".p2align 8")
    a.raw(f".type {name},@function")
    a.label(name)

def kernel_desc(name, vgpr, sgpr=96):
    acc = (vgpr + 3) // 4 * 4
    return f""".amdhsa_kernel {name}
  .amdhsa_next_free_vgpr {vgpr}
  .amdhsa_next_free_sgpr {sgpr}
  .amdhsa_accum_offset {acc}
  .amdhsa_group_segment_fixed_size 0
  .amdhsa_kernarg_size 96
  .amdhsa_user_sgpr_count 2
  .amdhsa_user_sgpr_kernarg_segment_ptr 1
  .amdhsa_system_sgpr_workgroup_id_x 1
  .amdhsa_float_denorm_mode_32 3
.end_amdhsa_kernel
"""

def gen_k1(a):
    kernel_head(a, "k1_kernel")
    a("s_cmp_ge_u32 s2, 256")
    a("s_cbranch_scc1 K1_END")
    a(f"s_load_dwordx2 s[4:5], s[0:1], {KA_X}")
    a(f"s_load_dwordx2 s[6:7], s[0:1], {KA_WQKV}")
    a(f"s_load_dwordx2 s[8:9], s[0:1], {KA_WS}")
    a(f"s_load_dwordx2 s[10:11], s[0:1], {KA_K}")
    a(f"s_load_dwordx2 s[12:13], s[0:1], {KA_V}")
    a(f"s_load_dwordx2 s[14:15], s[0:1], {KA_SHK}")
    a("v_lshrrev_b32 v1, 6, v0")
    a("v_and_b32 v2, 63, v0")
    a("v_readfirstlane_b32 s3, v1")
    a("s_waitcnt lgkmcnt(0)")
    srd(a, 16, 4, 2048*512*2)
    srd(a, 20, 6, 512*1536*2)
    srd(a, 24, 8, WS_SIZE)
    srd(a, 28, 10, 2048*512*2)
    srd(a, 32, 12, 2048*512*2)
    srd(a, 36, 14, 512*4*2)
    a("s_cmp_ge_u32 s2, 192")
    a("s_cbranch_scc1 K1_A1")
    a("""
    s_and_b32 s40, s2, 7
    s_lshr_b32 s41, s2, 3
    s_and_b32 s42, s40, 3
    s_lshl_b32 s42, s42, 2
    s_and_b32 s43, s41, 3
    s_add_u32 s42, s42, s43
    s_lshr_b32 s43, s40, 2
    s_mul_i32 s43, s43, 6
    s_lshr_b32 s44, s41, 2
    s_add_u32 s43, s43, s44
    """)
    a("""
    v_lshrrev_b32 v3, 3, v2
    s_lshl_b32 s44, s3, 3
    v_add_u32 v3, s44, v3
    v_lshlrev_b32 v3, 10, v3
    v_and_b32 v4, 7, v2
    v_lshrrev_b32 v5, 4, v2
    v_xor_b32 v4, v4, v5
    s_and_b32 s44, s3, 1
    s_lshl_b32 s44, s44, 2
    v_xor_b32 v4, s44, v4
    v_lshlrev_b32 v4, 4, v4
    v_add_u32 v3, v3, v4
    """)
    a("""
    v_lshrrev_b32 v5, 4, v2
    s_lshl_b32 s44, s3, 2
    v_add_u32 v6, s44, v5
    v_mul_u32_u24 v6, 3072, v6
    v_bfe_u32 v4, v2, 2, 2
    v_xor_b32 v4, v4, v5
    v_lshlrev_b32 v4, 6, v4
    v_add_u32 v6, v6, v4
    v_and_b32 v4, 3, v2
    v_lshlrev_b32 v4, 4, v4
    v_add_u32 v4, v6, v4
    """)
    a("s_lshl_b32 s45, s42, 17")
    a("s_lshl_b32 s46, s43, 8")
    a("s_lshl_b32 s47, s3, 10")
    def dma_chunk(c):
        slot = (c % 5) * 32768
        for j in range(4):
            a(f"s_add_u32 s48, s47, {slot + j*4096}")
            a("s_mov_b32 m0, s48")
            a(f"s_add_u32 s49, s45, {j*32768 + c*128}")
            a("buffer_load_dwordx4 v3, s[16:19], s49 offen lds")
            a(f"s_add_u32 s48, s47, {slot + 16384 + j*4096}")
            a("s_mov_b32 m0, s48")
            a(f"s_add_u32 s49, s46, {(c*64 + j*16)*3072}")
            a("buffer_load_dwordx4 v4, s[20:23], s49 offen lds")
    for c in range(5): dma_chunk(c)
    XA = 8
    WA = 12
    a("""
    v_and_b32 v5, 31, v2
    v_lshrrev_b32 v6, 5, v2
    v_bfe_u32 v7, v2, 1, 3
    v_xor_b32 v7, v7, v6
    s_and_b32 s44, s3, 1
    s_lshl_b32 s44, s44, 13
    v_lshlrev_b32 v5, 7, v5
    v_add_u32 v5, s44, v5
    """)
    for s in range(4):
        a(f"v_xor_b32 v14, {2*s}, v7")
        a(f"v_lshl_add_u32 v{XA+s}, v14, 4, v5")
    a("""
    v_bfe_u32 v5, v2, 2, 2
    v_lshlrev_b32 v6, 3, v6
    v_add_u32 v6, v6, v5
    v_lshlrev_b32 v6, 8, v6
    v_bfe_u32 v7, v2, 4, 1
    v_lshl_add_u32 v6, v7, 5, v6
    v_and_b32 v7, 3, v2
    v_lshl_add_u32 v6, v7, 3, v6
    v_add_u32 v6, 16384, v6
    s_and_b32 s44, s3, 2
    v_xor_b32 v7, s44, v5
    """)
    a(f"v_lshl_add_u32 v{WA}, v7, 6, v6")
    a("v_xor_b32 v7, 1, v7")
    a(f"v_lshl_add_u32 v{WA+1}, v7, 6, v6")
    ACC = 64
    for i in range(64): a(f"v_mov_b32 v{ACC+i}, 0")
    FR = 16
    def reads(s, st, off):
        b = FR + st*16
        a(f"ds_read_b128 {vr(b,4)}, v{XA+s} offset:{off}")
        a(f"ds_read_b64_tr_b16 {vr(b+8,2)}, v{WA} offset:{off + (16*s)*256}")
        a(f"ds_read_b64_tr_b16 {vr(b+10,2)}, v{WA} offset:{off + (16*s+4)*256}")
        a(f"ds_read_b64_tr_b16 {vr(b+12,2)}, v{WA+1} offset:{off + (16*s)*256}")
        a(f"ds_read_b64_tr_b16 {vr(b+14,2)}, v{WA+1} offset:{off + (16*s+4)*256}")
        a(f"ds_read_b128 {vr(b+4,4)}, v{XA+s} offset:{off + 4096}")
    def mfmas(st, isv):
        b = FR + st*16
        for (ai, bi) in ((0,0),(0,1),(1,0),(1,1)):
            x = vr(b + 4*ai, 4); w = vr(b + 8 + 4*bi, 4); d = vr(ACC + (2*ai+bi)*16, 16)
            if isv: a(f"v_mfma_f32_32x32x16_bf16 {d}, {x}, {w}, {d}")
            else:   a(f"v_mfma_f32_32x32x16_bf16 {d}, {w}, {x}, {d}")
    def mainloop(isv):
        vm = [32, 24, 24, 24, 24, 16, 8, 0]
        cur_base = 0
        for c in range(8):
            slot = (c % 5) * 32768
            want_base = (slot // 65536) * 65536
            if want_base != cur_base:
                d = want_base - cur_base
                for r in (XA, XA+1, XA+2, XA+3, WA, WA+1):
                    a(f"v_add_u32 v{r}, {d & 0xffffffff}, v{r}")
                cur_base = want_base
            off = slot - cur_base
            a(f"s_waitcnt vmcnt({vm[c]})")
            a("s_barrier")
            reads(0, 0, off)
            reads(1, 1, off)
            if 1 <= c <= 3: dma_chunk(c + 4)
            a("s_waitcnt lgkmcnt(6)")
            mfmas(0, isv)
            reads(2, 0, off)
            a("s_waitcnt lgkmcnt(6)")
            mfmas(1, isv)
            reads(3, 1, off)
            a("s_waitcnt lgkmcnt(6)")
            mfmas(0, isv)
            a("s_waitcnt lgkmcnt(0)")
            mfmas(1, isv)
    a("s_cmp_ge_u32 s43, 8")
    a("s_cbranch_scc1 K1_V")
    mainloop(False)
    a("""
    s_and_b32 s44, s43, 3
    s_lshl_b32 s44, s44, 3
    s_and_b32 s48, s3, 2
    s_lshl_b32 s48, s48, 1
    s_add_u32 s44, s44, s48
    s_lshl_b32 s48, s42, 2
    s_and_b32 s49, s3, 1
    s_lshl_b32 s49, s49, 1
    s_add_u32 s48, s48, s49
    s_lshl_b32 s44, s44, 6
    s_add_u32 s44, s44, s48
    """)
    a("s_cmp_ge_u32 s43, 4")
    a("s_cbranch_scc1 K1_KEPI")
    qs = f32bits(0.25 * math.log2(math.e))
    a(f"s_mov_b32 s50, {qs:#x}")
    a("s_lshl_b32 s44, s44, 10")
    a(f"s_add_u32 s44, s44, {WS_QF}")
    a("v_lshlrev_b32 v5, 4, v2")
    a("s_nop 7")
    for i in range(64): a(f"v_mul_f32 v{ACC+i}, s50, v{ACC+i}")
    def store_qk(hstride, tstride):
        k = 0
        for ai in range(2):
            for bi in range(2):
                for hh in range(2):
                    src = ACC + (2*ai+bi)*16 + hh*8
                    dst = FR + (k % 8)*4
                    for p in range(4):
                        a(f"v_cvt_pk_bf16_f32 v{dst+p}, v{src+2*p}, v{src+2*p+1}")
                    a(f"s_add_u32 s49, s44, {(2*bi+hh)*hstride + ai*tstride}")
                    a(f"buffer_store_dwordx4 {vr(dst,4)}, v5, s[24:27], s49 offen")
                    k += 1
    store_qk(65536, 1024)
    a("s_endpgm")
    a.label("K1_KEPI")
    a("s_lshl_b32 s44, s44, 11")
    a(f"s_add_u32 s44, s44, {WS_KV}")
    a("""
    v_and_b32 v5, 0x33, v2
    v_bfe_u32 v6, v2, 2, 1
    v_lshl_or_b32 v5, v6, 3, v5
    v_bfe_u32 v6, v2, 3, 1
    v_lshl_or_b32 v5, v6, 2, v5
    v_lshlrev_b32 v5, 4, v5
    s_nop 7
    """)
    store_qk(131072, 2048)
    a("s_endpgm")
    a.label("K1_V")
    mainloop(True)
    a("""
    s_and_b32 s44, s43, 3
    s_lshl_b32 s44, s44, 3
    s_and_b32 s48, s3, 2
    s_lshl_b32 s48, s48, 1
    s_add_u32 s44, s44, s48
    s_lshl_b32 s48, s42, 2
    s_and_b32 s49, s3, 1
    s_lshl_b32 s49, s49, 1
    s_add_u32 s48, s48, s49
    s_lshl_b32 s44, s44, 6
    s_add_u32 s44, s44, s48
    s_lshl_b32 s44, s44, 11
    """)
    a(f"s_add_u32 s44, s44, {WS_KV + 1024}")
    a("""
    v_bfe_u32 v5, v2, 4, 1
    v_lshlrev_b32 v5, 17, v5
    v_lshrrev_b32 v6, 5, v2
    v_lshl_add_u32 v5, v6, 8, v5
    v_and_b32 v6, 15, v2
    v_lshl_add_u32 v5, v6, 4, v5
    s_nop 7
    """)
    k = 0
    for ai in range(2):
        for bi in range(2):
            for j in range(2):
                src = ACC + (2*ai+bi)*16 + j*8
                dst = FR + (k % 8)*4
                for p in range(4):
                    a(f"v_cvt_pk_bf16_f32 v{dst+p}, v{src+2*p}, v{src+2*p+1}")
                a(f"s_add_u32 s49, s44, {2*bi*131072 + ai*2048 + j*512}")
                a(f"buffer_store_dwordx4 {vr(dst,4)}, v5, s[24:27], s49 offen")
                k += 1
    a("s_endpgm")

    a.label("K1_A1")
    a("""
    s_sub_u32 s40, s2, 192
    s_lshl_b32 s40, s40, 2
    s_add_u32 s40, s40, s3
    s_lshr_b32 s41, s40, 3
    s_and_b32 s42, s40, 7
    v_and_b32 v3, 7, v2
    v_lshrrev_b32 v4, 3, v2
    s_lshl_b32 s43, s41, 3
    v_add_u32 v4, s43, v4
    s_lshl_b32 s43, s42, 3
    v_add_u32 v3, s43, v3
    """)
    a("v_lshlrev_b32 v5, 13, v4")
    a("v_lshl_add_u32 v5, v3, 4, v5")
    KR = 16
    VR = 60
    SK = 92
    a("v_lshlrev_b32 v6, 6, v3")
    for i in range(4):
        a(f"buffer_load_dwordx4 {vr(SK+4*i,4)}, v6, s[36:39], 0 offen offset:{16*i}")
    for r in range(11):
        if r < 3:
            a(f"v_subrev_u32 v7, {1024*(3-r)}, v5")
            a(f"buffer_load_dwordx4 {vr(KR+4*r,4)}, v7, s[28:31], 0 offen")
        else:
            a(f"s_movk_i32 s43, {1024*(r-3)}")
            a(f"buffer_load_dwordx4 {vr(KR+4*r,4)}, v5, s[28:31], s43 offen")
    for r in range(8):
        a(f"s_movk_i32 s43, {1024*r}")
        a(f"buffer_load_dwordx4 {vr(VR+4*r,4)}, v5, s[32:35], s43 offen")
    a("""
    v_sub_u32 v6, 255, v4
    v_lshrrev_b32 v7, 2, v6
    v_mul_u32_u24 v7, 80, v7
    v_and_b32 v6, 3, v6
    v_lshl_add_u32 v7, v6, 4, v7
    """)
    a(f"v_mul_u32_u24 v6, {8*XR_PITCH}, v3")
    a("v_add_u32 v6, v6, v7")
    a(f"s_mov_b32 s44, 0xffff0000")
    a("s_waitcnt vmcnt(0)")
    T = 108
    KF = T
    TAP = T + 11
    KVv = T + 15
    OUT = 136
    for c in range(8):
        hi = c & 1; dw = c >> 1
        def unpack(dst, src, hi):
            if hi: a(f"v_and_b32 v{dst}, s44, v{src}")
            else:  a(f"v_lshlrev_b32 v{dst}, 16, v{src}")
        for r in range(11): unpack(KF + r, KR + 4*r + dw, hi)
        for j in range(4): unpack(TAP + j, SK + 2*c + (j >> 1), j & 1)
        for r in range(8): unpack(KVv + r, VR + 4*r + dw, hi)
        for r in range(8):
            a(f"v_mul_f32 v{KF+r}, v{KF+r}, v{TAP+3}")
            a(f"v_fmac_f32 v{KF+r}, v{KF+r+1}, v{TAP+2}")
            a(f"v_fmac_f32 v{KF+r}, v{KF+r+2}, v{TAP+1}")
            a(f"v_fmac_f32 v{KF+r}, v{KF+r+3}, v{TAP+0}")
            a(f"v_mul_f32 v{KVv+r}, v{KVv+r}, v{KF+r}")
        o = OUT + 4*(c & 1)
        for i in range(4):
            a(f"v_cvt_pk_bf16_f32 v{o+i}, v{KVv+7-2*i}, v{KVv+6-2*i}")
        a(f"s_mov_b32 s43, {WS_XR + c*XR_PITCH}")
        a(f"buffer_store_dwordx4 {vr(o,4)}, v6, s[24:27], s43 offen")
    a.label("K1_END")
    a("s_endpgm")
    return 144

LDS_CONV = 131072
CONV_SZ = 16000
XR_OFF = 0
HE_D = 7680 + 64
HO_D = HE_D + 4096 + 64
K2_LDS = LDS_CONV + 2*CONV_SZ

def gen_k2(a):
    kernel_head(a, "k2_kernel")
    a("s_cmp_ge_u32 s2, 256")
    a("s_cbranch_scc1 K2_END")
    a(f"s_load_dwordx2 s[8:9], s[0:1], {KA_WS}")
    a(f"s_load_dwordx2 s[10:11], s[0:1], {KA_SSMK}")
    a(f"s_load_dwordx2 s[12:13], s[0:1], {KA_SSMD}")
    a("v_lshrrev_b32 v1, 6, v0")
    a("v_and_b32 v2, 63, v0")
    a("v_readfirstlane_b32 s3, v1")
    a("v_lshlrev_b32 v3, 4, v2")
    a("s_waitcnt lgkmcnt(0)")
    srd(a, 24, 8, WS_SIZE)
    srd(a, 28, 10, 512*2048*2)
    a("s_cmp_ge_u32 s3, 8")
    a("s_cbranch_scc1 K2_CONV")
    a("""
    s_and_b32 s40, s2, 7
    s_lshl_b32 s40, s40, 2
    s_bfe_u32 s41, s2, 0x20003
    s_add_u32 s40, s40, s41
    s_lshr_b32 s41, s2, 5
    s_lshl_b32 s41, s41, 3
    s_add_u32 s41, s41, s3
    """)
    Q = 4; KF = 8; V = 12
    IDX = 28; AK = 29; AV = 30
    S = 32
    O = 64
    NM = 80
    a("s_lshl_b32 s42, s40, 6")
    a("s_add_u32 s42, s42, s41")
    a("s_lshl_b32 s42, s42, 10")
    a(f"s_add_u32 s42, s42, {WS_QF}")
    a(f"buffer_load_dwordx4 {vr(Q,4)}, v3, s[24:27], s42 offen")
    a("s_lshl_b32 s43, s40, 17")
    a("s_lshl_b32 s44, s3, 10")
    a("s_add_u32 s43, s43, s44")
    a(f"s_add_u32 s43, s43, {WS_KV}")
    for r in range(16):
        a("s_mov_b32 m0, s44")
        a("s_add_u32 s44, s44, 8192")
        a("buffer_load_dwordx4 v3, s[24:27], s43 offen lds")
        a("s_add_u32 s43, s43, 8192")
    for i in range(16): a(f"v_mov_b32 v{NM+i}, 0")
    for i in range(16): a(f"v_mov_b32 v{V+i}, 0x3f803f80")
    a(f"v_mov_b32 v{IDX}, 0xdddd")
    a("s_mov_b32 s46, 0xffff")
    a("s_mov_b32 s47, 0xffff")
    a("s_mov_b32 s48, 0")
    a("s_waitcnt vmcnt(14)")
    a("s_barrier")
    a.label("K2_RUN")
    a(f"v_mov_b32 v{AK}, v3")
    a("v_and_b32 v31, 15, v2")
    a("v_lshlrev_b32 v31, 4, v31")
    a(f"v_lshrrev_b32 v{AV}, 5, v2")
    a(f"v_lshl_add_u32 v{AV}, v{AV}, 8, v31")
    a(f"v_add_u32 v{AV}, 1024, v{AV}")
    for i in range(16): a(f"v_mov_b32 v{O+i}, 0")
    for i in range(8): a(f"v_mov_b32 v{S+16+8+i}, 0")
    a(f"ds_read_b128 {vr(KF,4)}, v{AK}")
    a("s_waitcnt lgkmcnt(0)")
    a(f"v_mfma_f32_32x32x16_bf16 {vr(S,16)}, {vr(KF,4)}, {vr(Q,4)}, {vr(NM,16)}")
    a(f"ds_read_b128 {vr(KF,4)}, v{AK} offset:2048")
    a("s_mov_b64 exec, s[46:47]")
    a(f"ds_read_b128 {vr(V,4)}, v{AV}")
    a(f"ds_read_b128 {vr(V+4,4)}, v{AV} offset:512")
    a(f"ds_read_b128 {vr(V+12,4)}, v{AV} offset:512")
    a("s_mov_b64 exec, -1")
    a("s_mov_b32 s45, 0")
    a("s_waitcnt lgkmcnt(0)")
    a("s_nop 7")
    a.raw(".p2align 6")
    a.label("K2_LOOP")
    U = 4
    for u in range(U):
        c = u & 1; p = c ^ 1
        Sc = S + 16*c; Sp = S + 16*p
        def ex(i): a(f"v_exp_f32 v{Sc+i}, v{Sc+i}")
        ex(0); ex(1)
        a(f"v_smfmac_f32_32x32x32_bf16 {vr(O,16)}, {vr(V+8*p+4,4)}, {vr(Sp+8,8)}, v{IDX}")
        ex(2); ex(3); ex(4)
        a("s_waitcnt lgkmcnt(0)")
        a(f"v_mfma_f32_32x32x16_bf16 {vr(Sp,16)}, {vr(KF,4)}, {vr(Q,4)}, {vr(NM,16)}")
        a(f"ds_read_b128 {vr(KF,4)}, v{AK} offset:{(u+2)*2048}")
        a("s_mov_b64 exec, s[46:47]")
        a(f"ds_read_b128 {vr(V+8*p,4)}, v{AV} offset:{(u+1)*2048}")
        a(f"ds_read_b128 {vr(V+8*p+4,4)}, v{AV} offset:{(u+1)*2048+512}")
        a("s_mov_b64 exec, -1")
        for i in range(5, 10): ex(i)
        a(f"v_smfmac_f32_32x32x32_bf16 {vr(O,16)}, {vr(V+8*c,4)}, {vr(Sc,8)}, v{IDX}")
        for i in range(10, 16): ex(i)
    a(f"v_add_u32 v{AK}, {U*2048}, v{AK}")
    a(f"v_add_u32 v{AV}, {U*2048}, v{AV}")
    a("s_add_u32 s45, s45, 1")
    a("s_cmp_gt_u32 s45, 4")
    a("s_cbranch_scc1 K2_LOOPT")
    a("s_cmp_lg_u32 s48, 0")
    a("s_cbranch_scc1 K2_LOOP")
    a("s_cmp_eq_u32 s45, 1")
    a("s_cbranch_scc1 K2_B2")
    a("s_cmp_eq_u32 s45, 4")
    a("s_cbranch_scc0 K2_LOOP")
    a("s_waitcnt vmcnt(0)")
    a("s_barrier")
    a("s_branch K2_LOOP")
    a.label("K2_B2")
    a("s_waitcnt vmcnt(11)")
    a("s_barrier")
    a("s_branch K2_LOOP")
    a.label("K2_LOOPT")
    a(f"s_cmp_lt_u32 s45, {64//U}")
    a("s_cbranch_scc1 K2_LOOP")
    a(f"v_smfmac_f32_32x32x32_bf16 {vr(O,16)}, {vr(V+8+4,4)}, {vr(S+16+8,8)}, v{IDX}")
    a("s_waitcnt lgkmcnt(0)")
    a("s_nop 15")
    a("s_cmp_lg_u32 s48, 0")
    a("s_cbranch_scc1 K2_FIN")
    a(f"v_add_f32 v31, abs(v{O}), abs(v{O+1})")
    for i in range(2, 8): a(f"v_add_f32 v31, v31, abs(v{O+i})")
    a(f"s_mov_b32 s50, {f32bits(2.0**100):#x}")
    a(f"s_mov_b32 s51, {f32bits(2.0**40):#x}")
    a(f"s_mov_b32 s52, {f32bits(2.0**-40):#x}")
    a("v_cmp_ngt_f32 vcc, s50, v31")
    a(f"v_cmp_ngt_f32 s[54:55], s51, v{O+8}")
    a(f"v_cmp_nlt_f32 s[56:57], s52, v{O+8}")
    a("s_or_b64 s[54:55], s[54:55], s[56:57]")
    a("s_or_b64 s[54:55], vcc, s[54:55]")
    a("s_cbranch_scc0 K2_FIN")
    a("s_mov_b32 s48, 1")
    a(f"v_mov_b32 v{AK}, v3")
    a(f"v_mov_b32 v31, {f32bits(float('-inf')):#x}")
    a("s_mov_b32 s45, 0")
    a.label("K2_MAXL")
    a(f"ds_read_b128 {vr(KF,4)}, v{AK}")
    a(f"v_add_u32 v{AK}, 2048, v{AK}")
    a("s_waitcnt lgkmcnt(0)")
    a(f"v_mfma_f32_32x32x16_bf16 {vr(S,16)}, {vr(KF,4)}, {vr(Q,4)}, 0")
    a("s_nop 15")
    for i in range(0, 16, 2): a(f"v_max3_f32 v31, v31, v{S+i}, v{S+i+1}")
    a("s_add_u32 s45, s45, 1")
    a("s_cmp_lt_u32 s45, 64")
    a("s_cbranch_scc1 K2_MAXL")
    a(f"v_mov_b32 v{S}, v31")
    a("s_nop 1")
    a(f"v_permlane32_swap_b32 v31, v{S}")
    a("s_nop 1")
    a(f"v_max_f32 v31, v31, v{S}")
    for i in range(16): a(f"v_sub_f32 v{NM+i}, 0, v31")
    a("s_branch K2_RUN")
    a.label("K2_FIN")
    a(f"v_rcp_f32 v31, v{O+8}")
    a("s_lshl_b32 s42, s41, 5")
    a("s_add_u32 s42, s42, s40")
    a("s_lshl_b32 s42, s42, 10")
    a(f"s_add_u32 s42, s42, {WS_OF}")
    for i in range(8): a(f"v_mul_f32 v{O+i}, v{O+i}, v31")
    for i in range(4): a(f"v_cvt_pk_bf16_f32 v{KF+i}, v{O+2*i}, v{O+2*i+1}")
    a(f"buffer_store_dwordx4 {vr(KF,4)}, v3, s[24:27], s42 offen")
    a("s_endpgm")

    a.label("K2_CONV")
    a("s_barrier")
    a("""
    s_sub_u32 s40, s3, 8
    s_lshr_b32 s41, s40, 1
    s_and_b32 s42, s40, 1
    s_lshl_b32 s43, s2, 1
    s_add_u32 s43, s43, s41
    """)
    a(f"s_mul_i32 s44, s41, {CONV_SZ}")
    a(f"s_add_u32 s44, s44, {LDS_CONV}")
    a("s_lshl_b32 s45, s2, 2")
    a("s_load_dword s46, s[12:13], s45")
    a("s_lshl_b32 s47, s43, 12")
    a("s_load_dword s48, s[10:11], s47")
    a("v_mov_b32 v4, 0")
    a("v_mov_b32 v5, 0")
    a("v_mov_b32 v6, 0")
    a("v_mov_b32 v7, 0")
    a("s_cmp_eq_u32 s42, 0")
    a("s_cbranch_scc0 K2_CLD1")
    for i in range(4):
        a(f"s_add_u32 s49, s44, {HE_D + 1024*i}")
        a("s_mov_b32 m0, s49")
        a(f"s_add_u32 s50, s47, {1024*i}")
        a("buffer_load_dwordx4 v3, s[28:31], s50 offen lds")
    for i in range(4):
        a(f"s_add_u32 s49, s44, {HO_D + 1024*i}")
        a("s_mov_b32 m0, s49")
        a(f"s_add_u32 s50, s47, {1024*i + 2}")
        a("buffer_load_dwordx4 v3, s[28:31], s50 offen lds")
    a("s_waitcnt lgkmcnt(0)")
    a("s_lshl_b32 s48, s48, 16")
    a("v_mov_b32 v8, 0")
    a("v_writelane_b32 v8, s48, 15")
    a("v_lshlrev_b32 v9, 2, v2")
    a("v_add_u32 v9, s44, v9")
    a("s_mov_b64 exec, 0xffff")
    a(f"ds_write_b32 v9, v4 offset:{HE_D-64}")
    a(f"ds_write_b32 v9, v8 offset:{HO_D-64}")
    a("s_mov_b64 exec, -1")
    a("s_branch K2_CLD2")
    a.label("K2_CLD1")
    a(f"s_mul_i32 s50, s43, {XR_PITCH}")
    a(f"s_add_u32 s50, s50, {WS_XR}")
    a("s_mov_b32 s49, s44")
    for i in range(5):
        a("s_mov_b32 m0, s49")
        a("s_add_u32 s49, s49, 1024")
        a("buffer_load_dwordx4 v3, s[24:27], s50 offen lds")
        a("s_add_u32 s50, s50, 1024")
    a("v_add_u32 v9, s44, v3")
    a(f"ds_write_b128 v9, v[4:7] offset:5120")
    a(f"ds_write_b128 v9, v[4:7] offset:6144")
    a("s_mov_b32 exec_hi, 0")
    a(f"ds_write_b128 v9, v[4:7] offset:7168")
    a("s_mov_b64 exec, -1")
    a.label("K2_CLD2")
    AA = 10; AB = 11
    a("""
    v_and_b32 v8, 31, v2
    v_lshrrev_b32 v9, 5, v2
    v_and_b32 v12, 1, v2
    """)
    a(f"v_mul_u32_u24 v12, {HO_D - 64 - (HE_D - 62)}, v12")
    a(f"v_sub_u32 v12, {HO_D - 64}, v12")
    a("v_lshl_add_u32 v12, v8, 1, v12")
    a("v_lshl_add_u32 v12, v9, 4, v12")
    a(f"v_add_u32 v{AA}, s44, v12")
    a("s_lshl_b32 s49, s42, 5")
    a("s_sub_u32 s49, 63, s49")
    a("v_sub_u32 v12, s49, v8")
    a("v_mul_u32_u24 v12, 80, v12")
    a("v_add_u32 v12, s44, v12")
    a("v_mov_b32 v13, v12")
    a(f"v_lshl_add_u32 v{AB}, v9, 4, v12")
    ACC = 64
    for i in range(16): a(f"v_mov_b32 v{ACC+i}, 0")
    a("s_waitcnt vmcnt(0) lgkmcnt(0)")
    a("s_barrier")
    a("s_barrier")
    FR = 16
    def creads(i, st):
        b = FR + 8*st
        a(f"ds_read2_b32 {vr(b,2)}, v{AA} offset0:{8*i} offset1:{8*i+1}")
        a(f"ds_read2_b32 {vr(b+2,2)}, v{AA} offset0:{8*i+2} offset1:{8*i+3}")
        a(f"ds_read_b128 {vr(b+4,4)}, v{AB} offset:{(i>>1)*80 + (i&1)*32}")
    for i in range(3): creads(i, i)
    a("s_add_u32 s49, s42, 1")
    a("s_lshl_b32 s49, s49, 2")
    a.label("K2_CLOOP")
    for i in range(16):
        creads(i + 3, (i + 3) & 3)
        a("s_waitcnt lgkmcnt(9)")
        b = FR + 8*(i & 3)
        a(f"v_mfma_f32_32x32x16_bf16 {vr(ACC,16)}, {vr(b,4)}, {vr(b+4,4)}, {vr(ACC,16)}")
    a(f"v_add_u32 v{AA}, 512, v{AA}")
    a(f"v_add_u32 v{AB}, 640, v{AB}")
    a("s_sub_u32 s49, s49, 1")
    a("s_cmp_lg_u32 s49, 0")
    a("s_cbranch_scc1 K2_CLOOP")
    a("v_lshlrev_b32 v12, 3, v9")
    a("v_sub_u32 v13, v13, v12")
    for j in range(4):
        a(f"ds_read_b64 {vr(48+2*j,2)}, v13 offset:{56-16*j}")
    a("s_lshl_b32 s50, s46, 16")
    a("s_and_b32 s51, s46, 0xffff0000")
    a("s_cmp_eq_u32 s41, 0")
    a("s_cselect_b32 s50, s50, s51")
    a("s_mov_b32 s51, 0xffff0000")
    a("s_waitcnt lgkmcnt(0)")
    a("s_nop 7")
    for j in range(4):
        d0, d1 = 48+2*j, 49+2*j
        a(f"v_lshlrev_b32 v16, 16, v{d0}")
        a(f"v_and_b32 v17, s51, v{d0}")
        a(f"v_lshlrev_b32 v18, 16, v{d1}")
        a(f"v_and_b32 v19, s51, v{d1}")
        a(f"v_fmac_f32 v{ACC+4*j+3}, s50, v16")
        a(f"v_fmac_f32 v{ACC+4*j+2}, s50, v17")
        a(f"v_fmac_f32 v{ACC+4*j+1}, s50, v18")
        a(f"v_fmac_f32 v{ACC+4*j+0}, s50, v19")
        a(f"v_cvt_pk_bf16_f32 v{24+2*j}, v{ACC+4*j}, v{ACC+4*j+1}")
        a(f"v_cvt_pk_bf16_f32 v{25+2*j}, v{ACC+4*j+2}, v{ACC+4*j+3}")
    a("s_nop 1")
    a("v_permlane32_swap_b32 v24, v26")
    a("v_permlane32_swap_b32 v25, v27")
    a("v_permlane32_swap_b32 v28, v30")
    a("v_permlane32_swap_b32 v29, v31")
    a("v_lshlrev_b32 v12, 6, v8")
    a("v_lshl_add_u32 v12, v9, 4, v12")
    a("s_lshl_b32 s49, s42, 11")
    a("s_add_u32 s49, s49, s47")
    a(f"s_add_u32 s49, s49, {WS_ZT}")
    a("buffer_store_dwordx4 v[24:27], v12, s[24:27], s49 offen")
    a("buffer_store_dwordx4 v[28:31], v12, s[24:27], s49 offen offset:32")
    a.label("K2_END")
    a("s_endpgm")
    return 96

K3_LDS = 65536
def gen_k3(a):
    kernel_head(a, "k3_kernel")
    a("s_cmp_ge_u32 s2, 512")
    a("s_cbranch_scc1 K3_END")
    a(f"s_load_dwordx2 s[4:5], s[0:1], {KA_WO}")
    a(f"s_load_dwordx2 s[6:7], s[0:1], {KA_OUT}")
    a(f"s_load_dwordx2 s[8:9], s[0:1], {KA_WS}")
    a(f"s_load_dwordx2 s[10:11], s[0:1], {KA_Q}")
    a("v_lshrrev_b32 v1, 6, v0")
    a("v_and_b32 v2, 63, v0")
    a("v_readfirstlane_b32 s3, v1")
    a("v_lshlrev_b32 v3, 4, v2")
    a("s_waitcnt lgkmcnt(0)")
    srd(a, 16, 4, 512*512*2)
    srd(a, 20, 6, 2048*1024*2)
    srd(a, 24, 8, WS_SIZE)
    srd(a, 28, 10, 2048*512*2)
    a("s_cmp_ge_u32 s2, 256")
    a("s_cbranch_scc1 K3_A3")
    a("""
    s_and_b32 s40, s2, 7
    s_lshl_b32 s40, s40, 2
    s_bfe_u32 s41, s2, 0x20003
    s_add_u32 s40, s40, s41
    s_lshr_b32 s41, s2, 5
    s_and_b32 s42, s3, 1
    s_lshr_b32 s43, s3, 1
    """)
    a("""
    v_lshrrev_b32 v4, 3, v2
    v_lshlrev_b32 v4, 10, v4
    v_bfe_u32 v5, v2, 4, 1
    v_lshlrev_b32 v5, 2, v5
    v_and_b32 v6, 7, v2
    v_xor_b32 v5, v5, v6
    v_lshl_add_u32 v4, v5, 4, v4
    """)
    a("""
    s_lshl_b32 s44, s43, 5
    s_add_u32 s44, s44, s42
    s_lshl_b32 s45, s44, 13
    s_lshl_b32 s46, s41, 7
    s_add_u32 s45, s45, s46
    s_lshl_b32 s44, s44, 10
    """)
    a("""
    s_lshl_b32 s46, s40, 1
    s_add_u32 s46, s46, s42
    s_lshl_b32 s46, s46, 5
    s_lshl_b32 s47, s43, 4
    s_add_u32 s46, s46, s47
    s_lshl_b32 s46, s46, 10
    """)
    a(f"s_add_u32 s46, s46, {WS_OF}")
    OFR = 64
    for j in range(16):
        a("s_mov_b32 m0, s44")
        a("s_add_u32 s44, s44, 2048")
        a("buffer_load_dwordx4 v4, s[16:19], s45 offen lds")
        a("s_add_u32 s45, s45, 16384")
        a(f"buffer_load_dwordx4 {vr(OFR+4*j,4)}, v3, s[24:27], s46 offen")
        a("s_add_u32 s46, s46, 1024")
    a("""
    v_lshrrev_b32 v5, 5, v2
    v_lshlrev_b32 v5, 2, v5
    v_bfe_u32 v6, v2, 2, 2
    v_add_u32 v5, v5, v6
    v_lshlrev_b32 v5, 7, v5
    v_bfe_u32 v6, v2, 4, 1
    v_lshl_add_u32 v5, v6, 5, v5
    v_and_b32 v6, 3, v2
    v_lshl_add_u32 v5, v6, 3, v5
    s_lshl_b32 s47, s43, 15
    v_add_u32 v5, s47, v5
    v_bfe_u32 v6, v2, 3, 1
    v_lshl_add_u32 v8, v6, 6, v5
    v_xor_b32 v6, 1, v6
    v_lshl_add_u32 v9, v6, 6, v5
    """)
    ACC = 32
    for i in range(32): a(f"v_mov_b32 v{ACC+i}, 0")
    WF = 12
    def wreads(s, st):
        b = WF + 8*st
        a(f"ds_read_b64_tr_b16 {vr(b,2)}, v8 offset:{s*2048}")
        a(f"ds_read_b64_tr_b16 {vr(b+2,2)}, v8 offset:{s*2048+1024}")
        a(f"ds_read_b64_tr_b16 {vr(b+4,2)}, v9 offset:{s*2048}")
        a(f"ds_read_b64_tr_b16 {vr(b+6,2)}, v9 offset:{s*2048+1024}")
    for ph in range(2):
        a(f"s_waitcnt vmcnt({16 if ph == 0 else 0})")
        a("s_barrier")
        wreads(8*ph, 0)
        for s in range(8*ph, 8*ph+8):
            st = s & 1
            if s + 1 < 8*ph + 8:
                wreads(s + 1, st ^ 1)
                a("s_waitcnt lgkmcnt(4)")
            else:
                a("s_waitcnt lgkmcnt(0)")
            b = WF + 8*st
            a(f"v_mfma_f32_32x32x16_bf16 {vr(ACC,16)}, {vr(b,4)}, {vr(OFR+4*s,4)}, {vr(ACC,16)}")
            a(f"v_mfma_f32_32x32x16_bf16 {vr(ACC+16,16)}, {vr(b+4,4)}, {vr(OFR+4*s,4)}, {vr(ACC+16,16)}")
    a("s_barrier")
    a("s_lshl_b32 s44, s3, 12")
    a("v_add_u32 v5, s44, v3")
    a("s_xor_b32 s44, s44, 8192")
    a("v_add_u32 v6, s44, v3")
    a("s_nop 7")
    a("s_cmp_eq_u32 s43, 0")
    a("s_cbranch_scc1 K3_X0")
    for i in range(4): a(f"ds_write_b128 v5, {vr(ACC+4*i,4)} offset:{1024*i}")
    a("s_waitcnt lgkmcnt(0)")
    for i in range(16): a(f"v_mov_b32 v{ACC+i}, v{ACC+16+i}")
    a("s_branch K3_X1")
    a.label("K3_X0")
    for i in range(4): a(f"ds_write_b128 v5, {vr(ACC+16+4*i,4)} offset:{1024*i}")
    a.label("K3_X1")
    a("s_waitcnt lgkmcnt(0)")
    a("s_barrier")
    for i in range(4): a(f"ds_read_b128 {vr(OFR+4*i,4)}, v6 offset:{1024*i}")
    a("""
    v_and_b32 v5, 31, v2
    v_lshlrev_b32 v5, 11, v5
    v_lshrrev_b32 v6, 5, v2
    v_lshl_add_u32 v5, v6, 4, v5
    s_lshl_b32 s44, s40, 1
    s_add_u32 s44, s44, s42
    s_lshl_b32 s44, s44, 16
    s_lshl_b32 s45, s41, 1
    s_add_u32 s45, s45, s43
    s_lshl_b32 s45, s45, 6
    s_add_u32 s44, s44, s45
    s_add_u32 s44, s44, 1024
    s_waitcnt lgkmcnt(0)
    """)
    for i in range(16): a(f"v_add_f32 v{ACC+i}, v{ACC+i}, v{OFR+i}")
    for i in range(8): a(f"v_cvt_pk_bf16_f32 v{12+i}, v{ACC+2*i}, v{ACC+2*i+1}")
    a("s_nop 1")
    a("v_permlane32_swap_b32 v12, v14")
    a("v_permlane32_swap_b32 v13, v15")
    a("v_permlane32_swap_b32 v16, v18")
    a("v_permlane32_swap_b32 v17, v19")
    a("buffer_store_dwordx4 v[12:15], v5, s[20:23], s44 offen")
    a("buffer_store_dwordx4 v[16:19], v5, s[20:23], s44 offen offset:32")
    a("s_endpgm")
    a.label("K3_A3")
    a("""
    s_sub_u32 s40, s2, 256
    s_lshr_b32 s41, s40, 3
    s_and_b32 s42, s40, 7
    """)
    a("""
    v_lshrrev_b32 v4, 3, v2
    v_and_b32 v5, 7, v2
    s_lshl_b32 s43, s3, 1
    v_xor_b32 v6, s43, v5
    v_lshlrev_b32 v6, 4, v6
    v_lshl_add_u32 v6, v4, 12, v6
    v_xor_b32 v7, 16, v6
    s_lshl_b32 s44, s42, 18
    s_lshl_b32 s45, s41, 7
    s_add_u32 s44, s44, s45
    s_lshl_b32 s45, s3, 16
    s_add_u32 s44, s44, s45
    """)
    a(f"s_add_u32 s44, s44, {WS_ZT}")
    a("s_lshl_b32 s45, s3, 11")
    a("s_mov_b32 m0, s45")
    a("s_add_u32 s45, s45, 1024")
    a("buffer_load_dwordx4 v6, s[24:27], s44 offen lds")
    a("s_mov_b32 m0, s45")
    a("s_add_u32 s44, s44, 32768")
    a("buffer_load_dwordx4 v7, s[24:27], s44 offen lds")
    a("""
    v_lshlrev_b32 v8, 10, v4
    v_lshl_add_u32 v8, v5, 4, v8
    s_lshl_b32 s44, s41, 16
    s_lshl_b32 s45, s3, 14
    s_add_u32 s44, s44, s45
    s_lshl_b32 s45, s42, 7
    s_add_u32 s46, s44, s45
    buffer_load_dwordx4 v[12:15], v8, s[28:31], s46 offen
    s_add_u32 s46, s46, 8192
    buffer_load_dwordx4 v[16:19], v8, s[28:31], s46 offen
    v_lshlrev_b32 v9, 11, v4
    v_lshl_add_u32 v9, v5, 4, v9
    s_lshl_b32 s44, s44, 1
    s_add_u32 s44, s44, s45
    """)
    a("""
    v_xor_b32 v10, s43, v5
    v_lshlrev_b32 v10, 4, v10
    v_lshl_add_u32 v10, v5, 10, v10
    v_lshl_add_u32 v10, v4, 1, v10
    v_xor_b32 v11, 16, v10
    s_mov_b32 s47, 0xffff0000
    s_waitcnt vmcnt(2)
    s_barrier
    """)
    Z = 32
    for j in range(2):
        for jj in range(8):
            a(f"ds_read_u16_d16_hi v{Z+8*j+jj}, v{10+j} offset:{128*jj}")
    a("s_waitcnt vmcnt(0)")
    for j in range(2):
        for p in range(4):
            a(f"v_lshlrev_b32 v{48+8*j+2*p}, 16, v{12+4*j+p}")
            a(f"v_and_b32 v{49+8*j+2*p}, s47, v{12+4*j+p}")
    a("s_waitcnt lgkmcnt(0)")
    for i in range(16):
        a(f"v_and_b32 v{Z+i}, s47, v{Z+i}")
        a(f"v_mul_f32 v{Z+i}, v{Z+i}, v{48+i}")
    for i in range(8): a(f"v_cvt_pk_bf16_f32 v{12+i}, v{Z+2*i}, v{Z+2*i+1}")
    a("buffer_store_dwordx4 v[12:15], v9, s[20:23], s44 offen")
    a("s_add_u32 s44, s44, 16384")
    a("buffer_store_dwordx4 v[16:19], v9, s[20:23], s44 offen")
    a.label("K3_END")
    a("s_endpgm")
    return 128

def main():
    ref = open(f"cdna_kernels/{NAME}.s.ref").read().split("\n")
    hdr = []
    for line in ref:
        if line.startswith(";") and "@launch" not in line: hdr.append(line)
        elif not line.startswith(";"): break
    a = Asm()
    v1 = gen_k1(a); v2 = gen_k2(a); v3 = gen_k3(a)
    out = "\n".join(hdr) + "\n"
    out += f"; @launch kernel=k1_kernel grid=(256,1,1) block=(256,1,1) lds=163840\n"
    out += f"; @launch kernel=k2_kernel grid=(256,1,1) block=(768,1,1) lds={K2_LDS}\n"
    out += f"; @launch kernel=k3_kernel grid=(512,1,1) block=(256,1,1) lds={K3_LDS}\n"
    out += '.amdgcn_target "amdgcn-amd-amdhsa--gfx950"\n.text\n'
    out += a.text()
    out += '.section .rodata,"a"\n.p2align 6\n'
    out += kernel_desc("k1_kernel", v1) + ".p2align 6\n" + kernel_desc("k2_kernel", v2) + ".p2align 6\n" + kernel_desc("k3_kernel", v3)
    dst = sys.argv[1] if len(sys.argv) > 1 else f"cdna_kernels/{NAME}.s"
    open(dst, "w").write(out)

if __name__ == "__main__":
    main()
```

```python
import sys, math, struct, os

NAME = "concat_heads__ssm_conv_h3__softmax_full_mha__prompt"
KN = NAME + "_kernel"
STAMP = int(os.environ.get("STAMP", "0"))

WS_QF  = 0
WS_KV  = 2 << 20
WS_OF  = 6 << 20
WS_XR  = 8 << 20
WS_ZT  = 10 << 20
WS_FL  = 12 << 20
WS_ST  = 16 << 20
WS_SIZE = 18 << 20

L_X = 0; L_RING = 65536
L_CONV = 131072
L_XR = [L_CONV, L_CONV + 7680]
L_HE = [L_CONV + 15360 + 64, L_CONV + 15360 + 8324 + 64]
L_HO = [L_HE[0] + 4096 + 68, L_HE[1] + 4096 + 68]
L_MISC = L_CONV + 15360 + 2*8324
L_TOTAL = 163840
L_Q = 57344
L_RED = 65536
RED_J = 1088; RED_T = 4*RED_J; RED_SRC = 2*RED_T
L_Z = L_CONV
L_WO = 0; L_O = 65536

def f32bits(x): return struct.unpack("<I", struct.pack("<f", x))[0]

class Asm:
    def __init__(self): self.l = []
    def __call__(self, s):
        for line in s.strip("\n").split("\n"):
            if line.strip(): self.l.append("    " + line.strip())
    def label(self, n): self.l.append(n + ":")
    def raw(self, s): self.l.append(s)
    def text(self): return "\n".join(self.l) + "\n"

class VM:
    def __init__(self, a): self.a = a; self.ops = []
    def op(self, s, tag): self.a(s); self.ops.append(tag)
    def wait(self, tag):
        idx = max(i for i, t in enumerate(self.ops) if t == tag)
        n = len(self.ops) - 1 - idx
        assert n <= 63, n
        self.a(f"s_waitcnt vmcnt({n})")
    def wait_all(self):
        self.a("s_waitcnt vmcnt(0)"); self.ops = []

def vr(b, n): return f"v[{b}:{b+n-1}]"

P_Q, P_K, P_V, P_SHK, P_SSMK, P_SSMD, P_X, P_WQKV, P_WO, P_OUT, P_DBG, P_WS = [4 + 2*i for i in range(12)]
def srd(a, d, ptr, size):
    a(f"s_mov_b32 s{d}, s{ptr}")
    a(f"s_and_b32 s{d+1}, s{ptr+1}, 0xffff")
    a(f"s_mov_b32 s{d+2}, {size}")
    a(f"s_mov_b32 s{d+3}, 0x00020000")
WS = "s[28:31]"

NST = 14
def stamp_begin(a):
    if STAMP:
        a("s_memrealtime s[72:73]")
        a("s_memtime s[76:77]")
        for k in range(NST): a(f"s_mov_b32 s{80+k}, 0")
def stamp(a, k):
    if STAMP:
        a("s_memtime s[94:95]")
        a("s_waitcnt lgkmcnt(0)")
        a(f"s_sub_u32 s{80+k}, s94, s76")
def endpgm(a):
    if STAMP:
        a("s_waitcnt vmcnt(0)")
        a("s_memrealtime s[74:75]")
        a("s_memtime s[78:79]")
        a("s_waitcnt lgkmcnt(0)")
        a("s_sub_u32 s78, s78, s76")
        a("s_mov_b64 exec, 1")
        a("v_mov_b32 v4, s72")
        a("v_mov_b32 v5, s74")
        a("v_mov_b32 v6, s78")
        for k in range(NST): a(f"v_mov_b32 v{7+k}, s{80+k}")
        a("s_lshl_b32 s76, s2, 4")
        a("s_add_u32 s76, s76, s3")
        a("s_lshl_b32 s76, s76, 7")
        a(f"s_add_u32 s76, s76, {WS_ST}")
        a("v_mov_b32 v30, 0")
        for k in range(5):
            a(f"buffer_store_dwordx4 v[{4+4*k}:{7+4*k}], v30, {WS}, s76 offen offset:{16*k}")
    a("s_endpgm")

_uid = [0]
def poll(a, stage, grp_sreg, vaddr, vtmp):
    _uid[0] += 1; u = _uid[0]
    a(f"s_lshl_b32 s62, s{grp_sreg}, 8")
    a(f"s_add_u32 s62, s62, {WS_FL + stage*2048}")
    a("s_mov_b32 s63, 0")
    a("s_mov_b32 exec_hi, 0")
    a.label(f"POLL{u}")
    a(f"buffer_load_dwordx2 {vr(vtmp,2)}, v{vaddr}, {WS}, s62 offen sc1")
    a("s_add_u32 s63, s63, 1")
    a("s_cmp_gt_u32 s63, 0x40000")
    a(f"s_cbranch_scc1 POLLX{u}")
    a("s_waitcnt vmcnt(0)")
    a(f"v_cmp_ne_u64 vcc, s[60:61], {vr(vtmp,2)}")
    a(f"s_cbranch_vccz POLLX{u}")
    a("s_sleep 1")
    a(f"s_branch POLL{u}")
    a.label(f"POLLX{u}")
    a("s_mov_b64 exec, -1")

def publish(a, stage, grp_sreg, slot_sreg, vz, vn):
    a(f"s_lshl_b32 s62, s{grp_sreg}, 8")
    a(f"s_lshl_b32 s63, s{slot_sreg}, 3")
    a("s_add_u32 s62, s62, s63")
    a(f"s_add_u32 s62, s62, {WS_FL + stage*2048}")
    a("s_mov_b64 exec, 1")
    a(f"buffer_store_dwordx2 {vr(vn,2)}, v{vz}, {WS}, s62 offen sc1")
    a("s_mov_b64 exec, -1")

def gen(a):
    a.raw(f".globl {KN}")
    a.raw(".p2align 8")
    a.raw(f".type {KN},@function")
    a.label(KN)
    a("s_cmp_ge_u32 s2, 256")
    a("s_cbranch_scc1 END")
    stamp_begin(a)
    a("s_load_dwordx16 s[4:19], s[0:1], 0")
    a("s_load_dwordx8 s[20:27], s[0:1], 64")
    a("s_memrealtime s[60:61]")
    a("""
    v_lshrrev_b32 v1, 6, v0
    v_and_b32 v2, 63, v0
    v_readfirstlane_b32 s3, v1
    v_lshlrev_b32 v3, 4, v2
    s_and_b32 s48, s2, 7
    s_lshr_b32 s49, s2, 3
    s_and_b32 s50, s49, 3
    s_lshr_b32 s51, s49, 2
    s_and_b32 s52, s48, 4
    s_add_u32 s52, s52, s50
    s_and_b32 s53, s48, 3
    s_lshl_b32 s53, s53, 3
    s_add_u32 s53, s53, s51
    s_lshl_b32 s54, s48, 2
    s_add_u32 s54, s54, s50
    """)
    a("s_waitcnt lgkmcnt(0)")
    stamp(a, 0)
    srd(a, 28, P_WS, WS_SIZE)
    srd(a, 44, P_DBG, 256)
    a("s_cmp_lg_u32 s3, 8")
    a("s_cbranch_scc1 NOTLD")
    a.raw("@@LOADER1@@")
    a.label("NOTLD")
    a("s_cmp_ge_u32 s3, 4")
    a("s_cbranch_scc1 VPATH")

    srd(a, 32, P_K, 2048*512*2)
    srd(a, 36, P_V, 2048*512*2)
    srd(a, 40, P_SHK, 512*4*2)
    a("""
    v_and_b32 v4, 31, v2
    v_lshrrev_b32 v5, 5, v2
    s_lshl_b32 s56, s49, 16
    s_lshl_b32 s57, s3, 14
    s_add_u32 s56, s56, s57
    s_lshl_b32 s57, s48, 7
    s_add_u32 s56, s56, s57
    v_lshlrev_b32 v6, 13, v5
    v_lshl_add_u32 v6, v4, 2, v6
    v_add_u32 v6, s56, v6
    v_subrev_u32 v7, 3072, v6
    v_subrev_u32 v8, 2048, v6
    v_subrev_u32 v9, 1024, v6
    v_add_u32 v10, 4096, v6
    v_lshlrev_b32 v11, 4, v4
    s_lshl_b32 s57, s48, 9
    """)
    KR = 16; VR = 27; SK = 36
    a(f"buffer_load_dword v{KR}, v7, s[32:35], 0 offen")
    a(f"buffer_load_dword v{KR+1}, v8, s[32:35], 0 offen")
    a(f"buffer_load_dword v{KR+2}, v9, s[32:35], 0 offen")
    for r in range(8):
        a(f"buffer_load_dword v{KR+3+r}, v{6 if r < 4 else 10}, s[32:35], 0 offen offset:{1024*(r&3)}")
    for r in range(8):
        a(f"buffer_load_dword v{VR+r}, v{6 if r < 4 else 10}, s[36:39], 0 offen offset:{1024*(r&3)}")
    a(f"buffer_load_dwordx4 {vr(SK,4)}, v11, s[40:43], s57 offen")
    a("s_or_b32 s57, s2, s3")
    a("s_cmp_lg_u32 s57, 0")
    a("s_cbranch_scc1 A1_NN")
    a("s_or_b32 s60, s60, 1")
    a("v_mov_b32 v12, s60")
    a("v_mov_b32 v13, s61")
    a("v_mov_b32 v14, 0")
    a("s_mov_b64 exec, 1")
    a("buffer_store_dwordx2 v[12:13], v14, s[44:47], 0 offen sc1")
    a("s_mov_b64 exec, -1")
    a.label("A1_NN")
    a("""
    s_lshl_b32 s57, s3, 1
    v_add_u32 v12, s57, v5
    v_sub_u32 v12, 7, v12
    v_and_b32 v13, 7, v4
    v_xor_b32 v12, v12, v13
    v_lshlrev_b32 v12, 4, v12
    v_lshl_add_u32 v12, v4, 8, v12
    s_mov_b32 s58, 0xffff0000
    """)
    a(f"v_add_u32 v12, {L_CONV}, v12")
    def gemm_addr(isv):
        a("""
        v_and_b32 v61, 31, v2
        v_lshrrev_b32 v62, 5, v2
        v_bfe_u32 v63, v2, 1, 3
        v_xor_b32 v63, v63, v62
        s_and_b32 s56, s3, 1
        s_lshl_b32 s56, s56, 12
        v_lshlrev_b32 v61, 7, v61
        v_add_u32 v61, s56, v61
        """)
        for s in range(4):
            a(f"v_xor_b32 v60, {2*s}, v63")
            a(f"v_lshl_add_u32 v{56+s}, v60, 4, v61")
        a("""
        v_bfe_u32 v61, v2, 2, 2
        v_lshl_add_u32 v62, v62, 3, v61
        v_lshlrev_b32 v60, 8, v62
        v_bfe_u32 v63, v2, 4, 1
        v_lshl_add_u32 v60, v63, 5, v60
        v_and_b32 v63, 3, v2
        v_lshl_add_u32 v60, v63, 3, v60
        s_lshr_b32 s56, s3, 1
        v_xor_b32 v63, s56, v61
        v_lshl_add_u32 v60, v63, 6, v60
        """)
        a(f"v_add_u32 v60, {L_RING}, v60")
        for i in range(16): a(f"v_mov_b32 v{64+i}, 0")
    gemm_addr(False)
    a("s_waitcnt vmcnt(0)")
    stamp(a, 1)
    KF = 40; TAP = 51; KVv = 80; OUT = 88
    for c in range(2):
        def unpack(dst, src, hi):
            if hi: a(f"v_and_b32 v{dst}, s58, v{src}")
            else:  a(f"v_lshlrev_b32 v{dst}, 16, v{src}")
        for r in range(11): unpack(KF + r, KR + r, c)
        for j in range(4): unpack(TAP + j, SK + 2*c + (j >> 1), j & 1)
        for r in range(8): unpack(KVv + r, VR + r, c)
        for r in range(8):
            a(f"v_mul_f32 v{KF+r}, v{KF+r}, v{TAP+3}")
            a(f"v_fmac_f32 v{KF+r}, v{KF+r+1}, v{TAP+2}")
            a(f"v_fmac_f32 v{KF+r}, v{KF+r+2}, v{TAP+1}")
            a(f"v_fmac_f32 v{KF+r}, v{KF+r+3}, v{TAP+0}")
            a(f"v_mul_f32 v{KVv+r}, v{KVv+r}, v{KF+r}")
        o = OUT + 4*c
        for i in range(4):
            a(f"v_cvt_pk_bf16_f32 v{o+i}, v{KVv+7-2*i}, v{KVv+6-2*i}")
        a(f"ds_write_b128 v12, {vr(o,4)} offset:{128*c}")
    a("s_waitcnt lgkmcnt(0)")

    FR = 16
    def xr_store():
        a(f"s_lshl_b32 s56, s3, 10")
        a(f"s_add_u32 s56, s56, {L_CONV}")
        a("v_add_u32 v4, s56, v3")
        a("ds_read_b128 v[8:11], v4")
        a("""
        s_lshl_b32 s56, s3, 2
        v_lshrrev_b32 v5, 4, v2
        v_add_u32 v5, s56, v5
        v_xor_b32 v5, v5, v2
        v_and_b32 v5, 7, v5
        v_lshlrev_b32 v5, 4, v5
        v_lshrrev_b32 v6, 3, v2
        v_lshl_add_u32 v5, v6, 12, v5
        s_lshl_b32 s56, s48, 18
        s_lshl_b32 s57, s3, 15
        s_add_u32 s56, s56, s57
        s_sub_u32 s57, 31, s49
        s_lshl_b32 s57, s57, 7
        s_add_u32 s56, s56, s57
        """)
        a(f"s_add_u32 s56, s56, {WS_XR}")
    def pass1(isv, extra):
        for c in range(8):
            if c == 4: a("s_waitcnt vmcnt(0)")
            a("s_barrier")
            if c in (0, 4): stamp(a, 2 + c//4)
            if c == 0: xr_store()
            xo = c*8192; wo = (c & 3)*16384
            for s in range(4):
                b = FR + 8*s
                a(f"ds_read_b128 {vr(b,4)}, v{56+s} offset:{xo}")
                a(f"ds_read_b64_tr_b16 {vr(b+4,2)}, v60 offset:{wo + 16*s*256}")
                a(f"ds_read_b64_tr_b16 {vr(b+6,2)}, v60 offset:{wo + (16*s+4)*256}")
            if c == 0:
                a("s_waitcnt lgkmcnt(12)")
                a(f"buffer_store_dwordx4 v[8:11], v5, {WS}, s56 offen sc1")
            extra(c)
            for s in range(4):
                b = FR + 8*s
                a(f"s_waitcnt lgkmcnt({9-3*s})")
                x = vr(b,4); w = vr(b+4,4)
                if isv: a(f"v_mfma_f32_32x32x16_bf16 v[64:79], {x}, {w}, v[64:79]")
                else:   a(f"v_mfma_f32_32x32x16_bf16 v[64:79], {w}, {x}, v[64:79]")
    pass1(False, lambda c: None)
    a("""
    s_lshl_b32 s56, s52, 2
    s_and_b32 s57, s3, 2
    s_add_u32 s56, s56, s57
    s_lshl_b32 s56, s56, 6
    s_lshl_b32 s57, s53, 1
    s_add_u32 s56, s56, s57
    s_and_b32 s57, s3, 1
    s_add_u32 s59, s56, s57
    s_lshl_b32 s56, s59, 11
    v_and_b32 v5, 0x33, v2
    v_bfe_u32 v6, v2, 2, 1
    v_lshl_or_b32 v5, v6, 3, v5
    v_bfe_u32 v6, v2, 3, 1
    v_lshl_or_b32 v5, v6, 2, v5
    v_lshlrev_b32 v5, 4, v5
    """)
    a(f"s_add_u32 s56, s56, {WS_KV}")
    a("s_add_u32 s57, s56, 131072")
    a("""
    v_lshrrev_b32 v62, 5, v2
    v_bfe_u32 v61, v2, 2, 2
    v_lshl_add_u32 v62, v62, 3, v61
    v_lshlrev_b32 v60, 7, v62
    v_bfe_u32 v63, v2, 4, 1
    v_lshl_add_u32 v60, v63, 5, v60
    v_and_b32 v63, 3, v2
    v_lshl_add_u32 v60, v63, 3, v60
    v_bfe_u32 v63, v2, 3, 1
    s_lshr_b32 s58, s3, 1
    v_xor_b32 v63, s58, v63
    v_lshl_add_u32 v60, v63, 6, v60
    """)
    a(f"v_add_u32 v60, {L_RING}, v60")
    for hh in range(2):
        for p in range(4):
            a(f"v_cvt_pk_bf16_f32 v{48+4*hh+p}, v{64+8*hh+2*p}, v{64+8*hh+2*p+1}")
        a(f"buffer_store_dwordx4 {vr(48+4*hh,4)}, v5, {WS}, s{56+hh} offen sc1")
    for i in range(16): a(f"v_mov_b32 v{64+i}, 0")
    stamp(a, 4)
    for j in range(4):
        a("s_barrier")
        wo = ((8 + j) & 3)*16384
        for hf in range(2):
            xo = (2*j + hf)*8192
            for s in range(4):
                b = FR + 8*s
                a(f"ds_read_b128 {vr(b,4)}, v{56+s} offset:{xo}")
                a(f"ds_read_b64_tr_b16 {vr(b+4,2)}, v60 offset:{wo + (64*hf + 16*s)*128}")
                a(f"ds_read_b64_tr_b16 {vr(b+6,2)}, v60 offset:{wo + (64*hf + 16*s + 4)*128}")
            for s in range(4):
                b = FR + 8*s
                a(f"s_waitcnt lgkmcnt({9-3*s})")
                a(f"v_mfma_f32_32x32x16_bf16 v[64:79], {vr(b+4,4)}, {vr(b,4)}, v[64:79]")
    qs = f32bits(0.25 * math.log2(math.e))
    a(f"s_mov_b32 s58, {qs:#x}")
    a("s_lshl_b32 s56, s59, 10")
    a(f"s_add_u32 s56, s56, {WS_QF}")
    a("s_add_u32 s57, s56, 65536")
    a("s_nop 9")
    for i in range(16): a(f"v_mul_f32 v{64+i}, s58, v{64+i}")
    for hh in range(2):
        for p in range(4):
            a(f"v_cvt_pk_bf16_f32 v{80+4*hh+p}, v{64+8*hh+2*p}, v{64+8*hh+2*p+1}")
        a(f"buffer_store_dwordx4 {vr(80+4*hh,4)}, v3, {WS}, s{56+hh} offen sc1")
    a("s_branch CONV")

    a.label("VPATH")
    srd(a, 32, P_SSMK, 512*2048*2)
    gemm_addr(True)
    a("""
    s_lshl_b32 s64, s48, 5
    s_add_u32 s64, s64, s49
    s_lshl_b32 s64, s64, 1
    s_bfe_u32 s65, s3, 0x10001
    s_add_u32 s64, s64, s65
    s_lshl_b32 s64, s64, 12
    s_and_b32 s66, s3, 1
    """)
    a(f"s_load_dword s67, s[{P_SSMK}:{P_SSMK+1}], s64")
    a(f"s_mul_i32 s68, s65, 8324")
    a(f"s_mul_i32 s69, s66, {4096+68}")
    a("s_add_u32 s68, s68, s69")
    a(f"s_add_u32 s68, s68, {L_HE[0]}")
    a("s_lshl_b32 s69, s66, 1")
    a("s_add_u32 s64, s64, s69")
    a("v_mov_b32 v14, 0")
    a("s_waitcnt lgkmcnt(0)")
    a("s_lshl_b32 s67, s67, 16")
    a("s_cmp_eq_u32 s66, 1")
    a("s_cselect_b32 s67, s67, 0")
    a("v_mov_b32 v15, 0")
    a("v_writelane_b32 v15, s67, 15")
    a("v_lshlrev_b32 v13, 2, v2")
    a("s_sub_u32 s69, s68, 64")
    a("v_add_u32 v13, s69, v13")
    a("s_mov_b64 exec, 0xffff")
    a("ds_write_b32 v13, v15")
    a("s_mov_b64 exec, -1")
    def vextra(c):
        if c == 1:
            a("s_mov_b32 m0, s68")
            a("s_nop 0")
            for i in range(4):
                a(f"buffer_load_dwordx4 v3, s[32:35], s64 offen offset:{1024*i} lds")
            a("s_cmp_lg_u32 s3, 7")
            a("s_cbranch_scc1 V_NN1")
            a("buffer_load_dwordx2 v[12:13], v14, s[44:47], 0 offen sc1")
            a.label("V_NN1")
        if c == 4:
            a("s_cmp_lg_u32 s3, 7")
            a("s_cbranch_scc1 V_NN2")
            a("s_mov_b32 s63, 0")
            a.label("V_NP")
            a("v_cmp_ne_u32 vcc, 0, v12")
            a("s_cbranch_vccnz V_NPX")
            a("s_add_u32 s63, s63, 1")
            a("s_cmp_gt_u32 s63, 0x40000")
            a("s_cbranch_scc1 V_NPX")
            a("buffer_load_dwordx2 v[12:13], v14, s[44:47], 0 offen sc1")
            a("s_waitcnt vmcnt(0)")
            a("s_branch V_NP")
            a.label("V_NPX")
            publish(a, 0, 48, 49, 14, 12)
            a(f"v_mov_b32 v15, {L_MISC}")
            a("ds_write_b64 v15, v[12:13]")
            a("s_waitcnt lgkmcnt(0)")
            a.label("V_NN2")
    pass1(True, vextra)
    a("""
    s_lshl_b32 s56, s52, 2
    s_and_b32 s57, s3, 2
    s_add_u32 s56, s56, s57
    s_lshl_b32 s56, s56, 6
    s_lshl_b32 s57, s53, 1
    s_add_u32 s56, s56, s57
    s_and_b32 s57, s3, 1
    s_add_u32 s56, s56, s57
    s_lshl_b32 s56, s56, 11
    v_bfe_u32 v5, v2, 4, 1
    v_lshlrev_b32 v5, 17, v5
    v_lshrrev_b32 v6, 5, v2
    v_lshl_add_u32 v5, v6, 8, v5
    v_and_b32 v6, 15, v2
    v_lshl_add_u32 v5, v6, 4, v5
    """)
    a(f"s_add_u32 s56, s56, {WS_KV + 1024}")
    for j in range(2):
        for p in range(4):
            a(f"v_cvt_pk_bf16_f32 v{48+4*j+p}, v{64+8*j+2*p}, v{64+8*j+2*p+1}")
        a(f"buffer_store_dwordx4 {vr(48+4*j,4)}, v5, {WS}, s56 offen offset:{512*j} sc1")
    stamp(a, 4)
    for j in range(4): a("s_barrier")

    a.label("CONV")
    srd(a, 32, P_Q, 2048*512*2)
    srd(a, 36, P_OUT, 2048*1024*2)
    a("""
    s_lshr_b32 s64, s3, 2
    s_and_b32 s65, s3, 3
    s_lshl_b32 s66, s48, 5
    s_add_u32 s66, s66, s49
    s_lshl_b32 s67, s66, 2
    """)
    a(f"s_load_dword s68, s[{P_SSMD}:{P_SSMD+1}], s67")
    a("""
    v_lshrrev_b32 v4, 3, v2
    v_and_b32 v5, 7, v2
    v_lshlrev_b32 v6, 10, v4
    v_lshl_add_u32 v6, v5, 4, v6
    s_lshl_b32 s56, s49, 16
    s_lshl_b32 s57, s3, 13
    s_add_u32 s56, s56, s57
    s_lshl_b32 s57, s48, 7
    s_add_u32 s56, s56, s57
    buffer_load_dwordx4 v[100:103], v6, s[32:35], s56 offen
    """)
    AL = 8; AH = 9; AB = 10
    a("""
    v_and_b32 v4, 31, v2
    v_lshrrev_b32 v5, 5, v2
    v_and_b32 v6, 1, v2
    """)
    a(f"v_mul_u32_u24 v6, {L_HO[0] - 64 - (L_HE[0] - 62)}, v6")
    a(f"v_sub_u32 v6, {L_HO[0] - 64}, v6")
    a("v_lshl_add_u32 v6, v4, 1, v6")
    a("v_lshl_add_u32 v6, v5, 4, v6")
    a("s_mul_i32 s56, s64, 8324")
    a("s_lshl_b32 s57, s65, 9")
    a("s_add_u32 s56, s56, s57")
    a(f"v_add_u32 v{AL}, s56, v6")
    a(f"v_add_u32 v{AH}, 2048, v{AL}")
    a("v_sub_u32 v6, 31, v4")
    a("v_mul_u32_u24 v6, 80, v6")
    a("v_lshl_add_u32 v6, v5, 4, v6")
    a("s_mul_i32 s56, s64, 7680")
    a("s_mul_i32 s57, s65, 640")
    a("s_add_u32 s56, s56, s57")
    a(f"s_add_u32 s56, s56, {L_XR[0]}")
    a(f"v_add_u32 v{AB}, s56, v6")
    C0 = 64; C1 = 80
    for i in range(32): a(f"v_mov_b32 v{C0+i}, 0")
    stamp(a, 5)
    a("s_waitcnt lgkmcnt(0)")
    a("s_barrier")
    stamp(a, 6)
    def creads(i):
        b = 16 + 16*(i & 1)
        a(f"ds_read2_b32 {vr(b,2)}, v{AL} offset0:{8*i} offset1:{8*i+1}")
        a(f"ds_read2_b32 {vr(b+2,2)}, v{AL} offset0:{8*i+2} offset1:{8*i+3}")
        a(f"ds_read_b128 {vr(b+8,4)}, v{AB} offset:{(i>>1)*80 + (i&1)*32 + 2560}")
        a(f"ds_read_b128 {vr(b+12,4)}, v{AB} offset:{(i>>1)*80 + (i&1)*32}")
        a(f"ds_read2_b32 {vr(b+4,2)}, v{AH} offset0:{8*i} offset1:{8*i+1}")
        a(f"ds_read2_b32 {vr(b+6,2)}, v{AH} offset0:{8*i+2} offset1:{8*i+3}")
    creads(0)
    for i in range(16):
        if i == 8:
            a("s_waitcnt vmcnt(1)")
            a("s_barrier")
        if i < 15: creads(i + 1)
        n = 6 if i < 15 else 0
        b = 16 + 16*(i & 1)
        a(f"s_waitcnt lgkmcnt({n+3})")
        a(f"v_mfma_f32_32x32x16_bf16 {vr(C0,16)}, {vr(b,4)}, {vr(b+8,4)}, {vr(C0,16)}")
        a(f"s_waitcnt lgkmcnt({n+2})")
        a(f"v_mfma_f32_32x32x16_bf16 {vr(C1,16)}, {vr(b,4)}, {vr(b+12,4)}, {vr(C1,16)}")
        a(f"s_waitcnt lgkmcnt({n})")
        a(f"v_mfma_f32_32x32x16_bf16 {vr(C1,16)}, {vr(b+4,4)}, {vr(b+8,4)}, {vr(C1,16)}")
    a("s_lshl_b32 s56, s3, 13")
    a(f"s_add_u32 s56, s56, {L_RED}")
    a("v_add_u32 v6, s56, v3")
    a("v_xor_b32 v7, 64, v6")
    a("v_xor_b32 v11, 128, v6")
    a("v_xor_b32 v12, 192, v6")
    a("""
    v_and_b32 v13, 3, v2
    v_lshrrev_b32 v14, 2, v2
    s_and_b32 s56, s65, 1
    s_lshl_b32 s56, s56, 4
    v_add_u32 v14, s56, v14
    v_lshlrev_b32 v15, 2, v13
    v_xor_b32 v14, v14, v15
    v_lshlrev_b32 v14, 4, v14
    v_lshl_add_u32 v14, v13, 10, v14
    s_lshr_b32 s56, s65, 1
    s_lshl_b32 s56, s56, 12
    s_lshl_b32 s57, s64, 15
    s_add_u32 s56, s56, s57
    """)
    a(f"s_add_u32 s56, s56, {L_RED}")
    a("v_add_u32 v14, s56, v14")
    for T in range(2):
        for j in range(4):
            a(f"ds_write_b128 v{[6,7,11,12][j]}, {vr(C0+16*T+4*j,4)} offset:{T*4096 + j*1024}")
    a("""
    s_lshl_b32 s56, s65, 6
    s_sub_u32 s56, 255, s56
    v_sub_u32 v15, s56, v2
    v_lshrrev_b32 v13, 2, v15
    v_mul_u32_u24 v13, 80, v13
    v_and_b32 v15, 3, v15
    v_lshl_add_u32 v13, v15, 4, v13
    s_mul_i32 s56, s64, 7680
    """)
    a(f"s_add_u32 s56, s56, {L_XR[0]}")
    a("v_add_u32 v13, s56, v13")
    a("ds_read_b128 v[48:51], v13")
    a("""
    s_lshl_b32 s56, s68, 16
    s_and_b32 s57, s68, 0xffff0000
    s_cmp_eq_u32 s64, 0
    s_cselect_b32 s58, s56, s57
    s_mov_b32 s59, 0xffff0000
    s_lshl_b32 s56, s66, 1
    s_add_u32 s56, s56, s64
    s_lshl_b32 s56, s56, 12
    s_lshl_b32 s57, s65, 10
    s_add_u32 s56, s56, s57
    """)
    a(f"s_add_u32 s56, s56, {WS_ZT}")
    a("s_waitcnt lgkmcnt(0)")
    a("s_barrier")
    stamp(a, 7)
    for src in range(4):
        a(f"ds_read_b128 {vr(16+8*src,4)}, v14 offset:{src*8192}")
        a(f"ds_read_b128 {vr(20+8*src,4)}, v14 offset:{src*8192 + 512}")
    for d in range(4):
        a(f"v_lshlrev_b32 v{52+7-2*d}, 16, v{48+d}")
        a(f"v_and_b32 v{52+6-2*d}, s59, v{48+d}")
    a("s_waitcnt lgkmcnt(4)")
    for i in range(8): a(f"v_add_f32 v{16+i}, v{16+i}, v{24+i}")
    a("s_waitcnt lgkmcnt(0)")
    for i in range(8): a(f"v_add_f32 v{32+i}, v{32+i}, v{40+i}")
    for i in range(8): a(f"v_fmac_f32 v{16+i}, s58, v{52+i}")
    for i in range(8): a(f"v_add_f32 v{16+i}, v{16+i}, v{32+i}")
    for i in range(4): a(f"v_cvt_pk_bf16_f32 v{96+i}, v{16+2*i}, v{17+2*i}")
    a(f"buffer_store_dwordx4 v[96:99], v3, {WS}, s56 offen sc1")

    Q = 4; KF = 8; V = 12; IDX = 28; AK = 29; AV = 30; S = 32; O = 64; NM = 80
    for i in range(16): a(f"v_mov_b32 v{NM+i}, 0")
    a("v_and_b32 v31, 27, v2")
    a("v_cmp_eq_u32 vcc, 16, v31")
    a("v_mov_b32 v31, 0x3f803f80")
    a(f"v_mov_b32 v{IDX}, 0xdddd")
    a(f"v_cndmask_b32 v{V}, 0, v31, vcc")
    for i in range(1, 16): a(f"v_mov_b32 v{V+i}, v{V}")
    a("s_mov_b32 s66, 0xffff")
    a("s_mov_b32 s67, 0xffff")
    a("s_mov_b32 s68, 0")
    a("s_lshl_b32 s56, s3, 10")
    a(f"s_add_u32 s56, s56, {L_Q}")
    a("v_add_u32 v31, s56, v3")
    stamp(a, 8)
    a("s_barrier")
    stamp(a, 9)
    a(f"ds_read_b128 {vr(Q,4)}, v31")
    a.label("RUN")
    a(f"v_mov_b32 v{AK}, v3")
    a(f"ds_read_b128 {vr(KF,4)}, v3")
    a("v_and_b32 v31, 15, v2")
    a("v_lshlrev_b32 v31, 4, v31")
    a(f"v_lshrrev_b32 v{AV}, 5, v2")
    a(f"v_lshl_add_u32 v{AV}, v{AV}, 8, v31")
    a(f"v_add_u32 v{AV}, 1024, v{AV}")
    for i in range(16): a(f"v_mov_b32 v{O+i}, 0")
    for i in range(8): a(f"v_mov_b32 v{S+16+8+i}, 0")
    a("s_waitcnt lgkmcnt(0)")
    a(f"v_mfma_f32_32x32x16_bf16 {vr(S,16)}, {vr(KF,4)}, {vr(Q,4)}, {vr(NM,16)}")
    a(f"ds_read_b128 {vr(KF,4)}, v{AK} offset:2048")
    a("s_mov_b64 exec, s[66:67]")
    a(f"ds_read_b128 {vr(V,4)}, v{AV}")
    a(f"ds_read_b128 {vr(V+4,4)}, v{AV} offset:512")
    a(f"ds_read_b128 {vr(V+12,4)}, v{AV} offset:512")
    a("s_mov_b64 exec, -1")
    a("s_mov_b32 s65, 0")
    a("s_waitcnt lgkmcnt(0)")
    a("s_nop 7")
    a.raw(".p2align 6")
    a.label("LOOP")
    U = 4
    for u in range(U):
        c = u & 1; p = c ^ 1
        Sc = S + 16*c; Sp = S + 16*p
        def ex(i): a(f"v_exp_f32 v{Sc+i}, v{Sc+i}")
        a(f"s_setprio {3-u}")
        ex(0); ex(1)
        a(f"v_smfmac_f32_32x32x32_bf16 {vr(O,16)}, {vr(V+8*p+4,4)}, {vr(Sp+8,8)}, v{IDX}")
        ex(2); ex(3); ex(4)
        a("s_waitcnt lgkmcnt(0)")
        a(f"v_mfma_f32_32x32x16_bf16 {vr(Sp,16)}, {vr(KF,4)}, {vr(Q,4)}, {vr(NM,16)}")
        a(f"ds_read_b128 {vr(KF,4)}, v{AK} offset:{(u+2)*2048}")
        a("s_mov_b64 exec, s[66:67]")
        a(f"ds_read_b128 {vr(V+8*p,4)}, v{AV} offset:{(u+1)*2048}")
        a(f"ds_read_b128 {vr(V+8*p+4,4)}, v{AV} offset:{(u+1)*2048+512}")
        a("s_mov_b64 exec, -1")
        for i in range(5, 10): ex(i)
        a(f"v_smfmac_f32_32x32x32_bf16 {vr(O,16)}, {vr(V+8*c,4)}, {vr(Sc,8)}, v{IDX}")
        for i in range(10, 16): ex(i)
    a(f"v_add_u32 v{AK}, {U*2048}, v{AK}")
    a(f"v_add_u32 v{AV}, {U*2048}, v{AV}")
    a("s_add_u32 s65, s65, 1")
    a("s_bitcmp1_b32 s69, s65")
    a("s_cbranch_scc0 LOOPT")
    a("s_waitcnt vmcnt(0)")
    a("s_barrier")
    a.label("LOOPT")
    a(f"s_cmp_lt_u32 s65, {64//U}")
    a("s_cbranch_scc1 LOOP")
    a(f"v_smfmac_f32_32x32x32_bf16 {vr(O,16)}, {vr(V+8+4,4)}, {vr(S+16+8,8)}, v{IDX}")
    a("s_setprio 0")
    a("s_waitcnt lgkmcnt(0)")
    a("s_nop 15")
    a("s_cmp_lg_u32 s68, 0")
    a("s_cbranch_scc1 FIN")
    a(f"v_add_f32 v31, abs(v{O}), abs(v{O+1})")
    for i in range(2, 8): a(f"v_add_f32 v31, v31, abs(v{O+i})")
    a(f"s_mov_b32 s56, {f32bits(2.0**100):#x}")
    a(f"s_mov_b32 s57, {f32bits(2.0**40):#x}")
    a(f"s_mov_b32 s58, {f32bits(2.0**-40):#x}")
    a("v_cmp_ngt_f32 vcc, s56, v31")
    a(f"v_cmp_ngt_f32 s[62:63], s57, v{O+8}")
    a(f"v_cmp_nlt_f32 s[70:71], s58, v{O+8}")
    a("s_or_b64 s[62:63], s[62:63], s[70:71]")
    a("s_or_b64 s[62:63], vcc, s[62:63]")
    a("s_cbranch_scc1 FALLBACK")
    a.label("FIN")
    stamp(a, 10)
    a(f"v_rcp_f32 v31, v{O+8}")
    a("""
    s_lshl_b32 s56, s51, 3
    s_add_u32 s56, s56, s3
    s_lshl_b32 s56, s56, 5
    s_add_u32 s56, s56, s54
    s_lshl_b32 s56, s56, 10
    """)
    a(f"s_add_u32 s56, s56, {WS_OF}")
    for i in range(8): a(f"v_mul_f32 v{O+i}, v{O+i}, v31")
    for i in range(4): a(f"v_cvt_pk_bf16_f32 v{KF+i}, v{O+2*i}, v{O+2*i+1}")
    a(f"buffer_store_dwordx4 {vr(KF,4)}, v3, {WS}, s56 offen sc1")
    a("""
    v_lshrrev_b32 v4, 3, v2
    v_and_b32 v5, 7, v2
    v_xor_b32 v6, s3, v5
    v_lshlrev_b32 v6, 4, v6
    v_lshl_add_u32 v6, v5, 10, v6
    v_lshl_add_u32 v6, v4, 1, v6
    """)
    a(f"v_add_u32 v6, {L_Z}, v6")
    for jj in range(8): a(f"ds_read_u16_d16_hi v{32+jj}, v6 offset:{128*jj}")
    a("""
    v_lshlrev_b32 v7, 11, v4
    v_lshl_add_u32 v7, v5, 4, v7
    s_lshl_b32 s56, s49, 17
    s_lshl_b32 s57, s3, 14
    s_add_u32 s56, s56, s57
    s_lshl_b32 s57, s48, 7
    s_add_u32 s56, s56, s57
    """)
    for p in range(4):
        a(f"v_lshlrev_b32 v{40+2*p}, 16, v{100+p}")
        a(f"v_and_b32 v{41+2*p}, s59, v{100+p}")
    a("s_waitcnt lgkmcnt(0)")
    for i in range(8):
        a(f"v_and_b32 v{32+i}, s59, v{32+i}")
        a(f"v_mul_f32 v{32+i}, v{32+i}, v{40+i}")
    for i in range(4): a(f"v_cvt_pk_bf16_f32 v{48+i}, v{32+2*i}, v{33+2*i}")
    a("buffer_store_dwordx4 v[48:51], v7, s[36:39], s56 offen")
    a("""
    v_lshrrev_b32 v12, 5, v2
    v_lshlrev_b32 v12, 2, v12
    v_bfe_u32 v13, v2, 2, 2
    v_add_u32 v12, v12, v13
    v_lshlrev_b32 v12, 7, v12
    v_bfe_u32 v13, v2, 4, 1
    v_lshl_add_u32 v12, v13, 5, v12
    v_and_b32 v13, 3, v2
    v_lshl_add_u32 v12, v13, 3, v12
    v_bfe_u32 v13, v2, 3, 1
    s_bfe_u32 s56, s3, 0x10001
    v_xor_b32 v13, s56, v13
    v_lshl_add_u32 v12, v13, 6, v12
    s_lshr_b32 s57, s3, 2
    s_lshl_b32 s56, s57, 11
    v_add_u32 v12, s56, v12
    s_and_b32 s56, s3, 1
    s_lshl_b32 s56, s56, 10
    s_lshl_b32 s57, s57, 11
    s_add_u32 s56, s56, s57
    """)
    a(f"s_add_u32 s56, s56, {L_O}")
    a("v_add_u32 v13, s56, v3")
    for i in range(16): a(f"v_mov_b32 v{64+i}, 0")
    a("s_waitcnt vmcnt(1)")
    a("s_barrier")
    stamp(a, 11)
    for ph in range(2):
        a("s_barrier")
        if ph == 0: stamp(a, 12)
        for hf in range(2):
            for s in range(4):
                st = 8*ph + 4*hf + s
                b = 16 + 8*s
                a(f"ds_read_b128 {vr(b,4)}, v13 offset:{st*4096}")
                a(f"ds_read_b64_tr_b16 {vr(b+4,2)}, v12 offset:{st*4096}")
                a(f"ds_read_b64_tr_b16 {vr(b+6,2)}, v12 offset:{st*4096 + 1024}")
            for s in range(4):
                b = 16 + 8*s
                a(f"s_waitcnt lgkmcnt({9-3*s})")
                a(f"v_mfma_f32_32x32x16_bf16 v[64:79], {vr(b+4,4)}, {vr(b,4)}, v[64:79]")
    a("s_lshl_b32 s56, s3, 12")
    a(f"s_add_u32 s56, s56, {L_CONV}")
    a("v_add_u32 v6, s56, v3")
    a("v_xor_b32 v7, 32, v6")
    a("v_xor_b32 v10, 64, v6")
    a("v_xor_b32 v11, 96, v6")
    a("""
    v_and_b32 v14, 3, v2
    s_and_b32 s56, s3, 3
    s_lshl_b32 s56, s56, 3
    v_add_u32 v15, s56, v4
    v_lshlrev_b32 v8, 1, v14
    v_xor_b32 v15, v15, v8
    v_lshlrev_b32 v15, 4, v15
    v_lshl_add_u32 v15, v14, 10, v15
    v_bfe_u32 v14, v2, 2, 1
    v_lshl_add_u32 v15, v14, 13, v15
    s_lshr_b32 s56, s3, 2
    s_lshl_b32 s56, s56, 12
    """)
    a(f"s_add_u32 s56, s56, {L_CONV}")
    a("v_add_u32 v15, s56, v15")
    for j in range(4):
        a(f"ds_write_b128 v{[6,7,10,11][j]}, {vr(64+4*j,4)} offset:{j*1024}")
    a("""
    v_lshlrev_b32 v9, 11, v4
    v_lshl_add_u32 v9, v5, 4, v9
    s_lshl_b32 s56, s54, 17
    s_lshl_b32 s57, s3, 14
    s_add_u32 s56, s56, s57
    s_lshl_b32 s57, s51, 7
    s_add_u32 s56, s56, s57
    s_add_u32 s56, s56, 1024
    s_waitcnt lgkmcnt(0)
    s_barrier
    ds_read_b128 v[16:19], v15
    ds_read_b128 v[20:23], v15 offset:512
    ds_read_b128 v[24:27], v15 offset:16384
    ds_read_b128 v[28:31], v15 offset:16896
    s_waitcnt lgkmcnt(0)
    """)
    for i in range(8): a(f"v_add_f32 v{16+i}, v{16+i}, v{24+i}")
    for i in range(4): a(f"v_cvt_pk_bf16_f32 v{32+i}, v{16+2*i}, v{17+2*i}")
    a("buffer_store_dwordx4 v[32:35], v9, s[36:39], s56 offen")
    endpgm(a)

    a.label("FALLBACK")
    a("s_mov_b32 s68, 1")
    a("s_mov_b32 s69, 0")
    a(f"v_mov_b32 v{AK}, v3")
    a(f"v_mov_b32 v31, {f32bits(float('-inf')):#x}")
    a("s_mov_b32 s65, 0")
    a.label("MAXL")
    a(f"ds_read_b128 {vr(KF,4)}, v{AK}")
    a(f"v_add_u32 v{AK}, 2048, v{AK}")
    a("s_waitcnt lgkmcnt(0)")
    a(f"v_mfma_f32_32x32x16_bf16 {vr(S,16)}, {vr(KF,4)}, {vr(Q,4)}, 0")
    a("s_nop 15")
    for i in range(0, 16, 2): a(f"v_max3_f32 v31, v31, v{S+i}, v{S+i+1}")
    a("s_add_u32 s65, s65, 1")
    a("s_cmp_lt_u32 s65, 64")
    a("s_cbranch_scc1 MAXL")
    a(f"v_mov_b32 v{S}, v31")
    a("s_nop 1")
    a(f"v_permlane32_swap_b32 v31, v{S}")
    a("s_nop 1")
    a(f"v_max_f32 v31, v31, v{S}")
    for i in range(16): a(f"v_sub_f32 v{NM+i}, 0, v31")
    a("s_branch RUN")

def gen_loader(a):
    vm = VM(a)
    srd(a, 32, P_X, 2048*512*2)
    srd(a, 36, P_WQKV, 512*1536*2)
    srd(a, 40, P_WO, 512*512*2)
    VX = 16; VW = 24; VQ = 40; VXR = 48
    a("""
    s_lshl_b32 s56, s50, 1
    s_add_u32 s56, s56, s51
    s_lshl_b32 s57, s53, 16
    s_lshl_b32 s58, s52, 7
    v_lshrrev_b32 v4, 3, v2
    v_lshrrev_b32 v5, 4, v2
    v_and_b32 v6, 7, v2
    v_xor_b32 v7, v6, v5
    v_lshlrev_b32 v7, 4, v7
    """)
    a(f"v_lshl_add_u32 v{VX}, v4, 10, v7")
    a(f"v_xor_b32 v{VX+1}, 64, v{VX}")
    a(f"v_add_u32 v{VX+1}, {8192-1024}, v{VX+1}")
    for i in range(2, 8):
        d = (8192*i - 1024*(i&3)) - (8192*(i&1) - 1024*(i&1))
        a(f"v_add_u32 v{VX+i}, {d}, v{VX+(i&1)}")
    a("""
    v_bfe_u32 v7, v2, 2, 2
    v_xor_b32 v7, v7, v5
    v_mul_u32_u24 v8, 3072, v5
    v_lshrrev_b32 v9, 1, v7
    v_lshl_add_u32 v8, v9, 10, v8
    v_and_b32 v9, 1, v7
    v_lshl_add_u32 v8, v9, 6, v8
    v_and_b32 v9, 3, v2
    v_lshl_add_u32 v8, v9, 4, v8
    """)
    for i in range(16):
        a(f"v_add_u32 v{VW+i}, {1024 + 4*i*3072 - 1024*(i&3)}, v8")
    def kc(c):
        a(f"s_add_u32 s59, s56, {c}")
        a("s_and_b32 s59, s59, 7")
    def issue1(c):
        kc(c)
        a("s_lshl_b32 s64, s59, 7")
        a("s_add_u32 s64, s64, s57")
        a(f"s_mul_i32 s65, s59, {64*3072}")
        a("s_add_u32 s65, s65, s58")
        for g in range(2):
            a(f"s_mov_b32 m0, {L_X + c*8192 + g*4096}")
            a("s_nop 0")
            for i in range(4):
                vm.op(f"buffer_load_dwordx4 v{VX+4*g+i}, s[32:35], s64 offen offset:{1024*i} lds", f"c{c}")
            for gg in range(2):
                G = 2*g + gg
                a(f"s_mov_b32 m0, {L_RING + (c&3)*16384 + G*4096}")
                a("s_nop 0")
                for i in range(4):
                    vm.op(f"buffer_load_dwordx4 v{VW+4*G+i}, s[36:39], s65 offen offset:{1024*i} lds", f"c{c}")
    def issue2(c):
        j = c - 8
        for hf in range(2):
            kc(2*j + hf)
            a(f"s_mul_i32 s65, s59, {64*3072}")
            a("s_add_u32 s65, s65, s58")
            for g in range(2):
                a(f"s_mov_b32 m0, {L_RING + (c&3)*16384 + hf*8192 + g*4096}")
                a("s_nop 0")
                for i in range(4):
                    vm.op(f"buffer_load_dwordx4 v{VQ+4*g+i}, s[36:39], s65 offen offset:{1024*i} lds", f"c{c}")
    issue1(0)
    issue1(1)
    stamp(a, 1)
    a("s_branch LOADER2")
    a.raw("@@SPLIT@@")
    a.label("LOADER2")
    a("""
    v_bfe_u32 v7, v2, 4, 1
    v_lshlrev_b32 v7, 2, v7
    v_xor_b32 v7, v7, v6
    v_lshlrev_b32 v7, 4, v7
    v_mul_u32_u24 v8, 3072, v4
    v_add_u32 v8, v8, v7
    v_lshl_add_u32 v10, v4, 10, v7
    """)
    for i in range(8):
        a(f"v_add_u32 v{VQ+i}, {8*i*3072 - 1024*(i&3)}, v8")
    for i in range(5):
        a(f"v_add_u32 v8, {64*i}, v2")
        a("v_mul_u32_u24 v9, 205, v8")
        a("v_lshrrev_b32 v9, 10, v9")
        a("v_mul_u32_u24 v11, 5, v9")
        a("v_sub_u32 v8, v8, v11")
        a("v_min_u32 v8, 3, v8")
        a("v_lshlrev_b32 v8, 4, v8")
        a(f"v_lshl_add_u32 v{VXR+i}, v9, 6, v8")
    a("v_lshlrev_b32 v12, 3, v2")
    a("v_mov_b32 v13, 0")
    for i in range(4): a(f"v_mov_b32 v{56+i}, 0")
    for c in range(12):
        vm.wait(f"c{c}")
        a("s_barrier")
        if c in (0, 4, 8, 11): stamp(a, {0:2, 4:3, 8:4, 11:5}[c])
        if c + 2 < 8: issue1(c + 2)
        elif c + 2 < 12: issue2(c + 2)
        if c == 2:
            for q in range(2):
                a(f"v_add_u32 v8, {L_XR[q]}, v3")
                a("ds_write_b128 v8, v[56:59] offset:5120")
                a("ds_write_b128 v8, v[56:59] offset:6144")
                a("s_mov_b32 exec_hi, 0")
                a("ds_write_b128 v8, v[56:59] offset:7168")
                a("s_mov_b64 exec, -1")
        if c == 5:
            a(f"v_mov_b32 v8, {L_MISC}")
            a("ds_read_b64 v[14:15], v8")
            a("s_waitcnt lgkmcnt(0)")
            a("v_readfirstlane_b32 s60, v14")
            a("v_readfirstlane_b32 s61, v15")
    vm.ops = []
    poll(a, 0, 48, 12, 60)
    stamp(a, 6)
    a("s_lshl_b32 s64, s48, 5")
    a("s_add_u32 s64, s64, s49")
    a("s_lshl_b32 s64, s64, 13")
    a(f"s_add_u32 s64, s64, {WS_XR}")
    for q in range(2):
        for i in range(5):
            a(f"s_mov_b32 m0, {L_XR[q] + 1024*i}")
            a("s_nop 0")
            a(f"buffer_load_dwordx4 v{VXR+i}, {WS}, s64 offen sc1 lds")
        if q == 0: a("s_add_u32 s64, s64, 4096")
    a("s_waitcnt vmcnt(0) lgkmcnt(0)")
    a("s_barrier")
    a("s_barrier")
    publish(a, 1, 52, 53, 13, 14)
    stamp(a, 7)
    a("s_barrier")
    poll(a, 1, 48, 12, 60)
    stamp(a, 8)
    a("s_lshl_b32 s64, s54, 6")
    a("s_lshl_b32 s65, s51, 3")
    a("s_add_u32 s64, s64, s65")
    a("s_lshl_b32 s64, s64, 10")
    a(f"s_add_u32 s64, s64, {WS_QF}")
    a("s_lshl_b32 s65, s54, 17")
    a(f"s_add_u32 s65, s65, {WS_KV}")
    def lin(ldsb, sreg, n4, tag, sc="sc1", srdr=WS):
        for g in range(n4):
            a(f"s_mov_b32 m0, {ldsb + 4096*g}")
            a("s_nop 0")
            for i in range(4):
                vm.op(f"buffer_load_dwordx4 v3, {srdr}, s{sreg} offen offset:{1024*i} {sc} lds", tag)
            a(f"s_add_u32 s{sreg}, s{sreg}, 4096")
    lin(L_Q, 64, 2, "q")
    lin(0, 65, 3, "k0")
    lin(12288, 65, 6, "k1")
    vm.wait("k0")
    a("s_barrier")
    stamp(a, 9)
    lin(36864, 65, 5, "k2")
    vm.wait("k1")
    a("s_barrier")
    publish(a, 2, 48, 49, 13, 14)
    vm.ops.append("f2")
    lin(57344, 65, 9, "k3")
    vm.wait("k2")
    lin(94208, 65, 9, "k4")
    vm.wait_all()
    a("s_barrier")
    stamp(a, 10)
    poll(a, 2, 48, 12, 60)
    a("s_lshl_b32 s64, s48, 18")
    a("s_lshl_b32 s65, s49, 7")
    a("s_add_u32 s64, s64, s65")
    a(f"s_add_u32 s64, s64, {WS_ZT}")
    for i in range(8):
        a(f"v_xor_b32 v8, {i}, v6")
        a("v_lshlrev_b32 v8, 4, v8")
        a("v_lshl_add_u32 v8, v4, 12, v8")
        a(f"s_mov_b32 m0, {L_Z + 1024*i}")
        a("s_nop 0")
        a(f"buffer_load_dwordx4 v8, {WS}, s64 offen sc1 lds")
        a("s_add_u32 s64, s64, 32768")
    for i in range(4):
        a(f"v_add_u32 v{VW+i}, {8*i*1024 - 1024*i}, v10")
    a("s_lshl_b32 s66, s51, 7")
    a("s_lshl_b32 s67, s50, 17")
    a("s_add_u32 s67, s67, s66")
    for g in range(4):
        for i in range(4):
            a(f"buffer_load_dwordx4 v[64:67], v{VW+i}, s[40:43], s67 offen offset:{1024*i}")
        a("s_add_u32 s67, s67, 32768")
    a("s_waitcnt vmcnt(0)")
    a("s_barrier")
    a("s_barrier")
    publish(a, 3, 51, 54, 13, 14)
    stamp(a, 11)
    for g in range(16):
        a(f"s_mov_b32 m0, {L_WO + 4096*g}")
        a("s_nop 0")
        for i in range(4):
            a(f"buffer_load_dwordx4 v{VW+i}, s[40:43], s66 offen offset:{1024*i} lds")
        a("s_add_u32 s66, s66, 32768")
    poll(a, 3, 48, 12, 60)
    stamp(a, 12)
    vm.ops = []
    a("s_lshl_b32 s64, s54, 16")
    a(f"s_add_u32 s64, s64, {WS_OF}")
    a(f"v_add_u32 v8, {32768 - 1024}, v3")
    a("s_add_u32 s65, s64, 1024")
    for g in range(16):
        tag = "o0" if g < 8 else "o1"
        a(f"s_mov_b32 m0, {L_O + 4096*g}")
        a("s_nop 0")
        vm.op(f"buffer_load_dwordx4 v3, {WS}, s64 offen sc1 lds", tag)
        vm.op(f"buffer_load_dwordx4 v8, {WS}, s64 offen offset:1024 sc1 lds", tag)
        a(f"s_mov_b32 m0, {L_O + 4096*g + 2048}")
        a("s_nop 0")
        vm.op(f"buffer_load_dwordx4 v3, {WS}, s65 offen sc1 lds", tag)
        vm.op(f"buffer_load_dwordx4 v8, {WS}, s65 offen offset:1024 sc1 lds", tag)
        a("s_add_u32 s64, s64, 2048")
        a("s_add_u32 s65, s65, 2048")
        if g == 11:
            vm.wait("o0")
            a("s_barrier")
    vm.wait_all()
    a("s_barrier")
    stamp(a, 13)
    a("s_barrier")
    endpgm(a)

def main():
    ref = open(f"cdna_kernels/{NAME}.s.ref").read().split("\n")
    hdr = []
    for line in ref:
        if line.startswith(";") and "@launch" not in line: hdr.append(line)
        elif not line.startswith(";"): break
    a = Asm()
    gen(a)
    b = Asm()
    gen_loader(b)
    b.label("END")
    b("s_endpgm")
    l1, l2 = b.text().split("@@SPLIT@@\n")
    txt = a.text().replace("@@LOADER1@@\n", l1) + l2
    txt = txt.replace("    s_mov_b32 s68, 0\n", f"    s_mov_b32 s68, 0\n    s_mov_b32 s69, {(1<<1)|(1<<4)|(1<<12)}\n", 1)
    out = "\n".join(hdr) + "\n"
    out += f"; @launch grid=(256,1,1) block=(576,1,1) lds={L_TOTAL}\n"
    out += '.amdgcn_target "amdgcn-amd-amdhsa--gfx950"\n.text\n'
    out += txt
    out += f""".section .rodata,"a"
.p2align 6
.amdhsa_kernel {KN}
  .amdhsa_next_free_vgpr 104
  .amdhsa_next_free_sgpr 96
  .amdhsa_accum_offset 104
  .amdhsa_group_segment_fixed_size 0
  .amdhsa_kernarg_size 96
  .amdhsa_user_sgpr_count 2
  .amdhsa_user_sgpr_kernarg_segment_ptr 1
  .amdhsa_system_sgpr_workgroup_id_x 1
  .amdhsa_float_denorm_mode_32 3
.end_amdhsa_kernel
"""
    dst = sys.argv[1] if len(sys.argv) > 1 else f"cdna_kernels/{NAME}.s"
    open(dst, "w").write(out)

if __name__ == "__main__":
    main()
```

```python
import sys, math, struct, os

NAME = "concat_heads__ssm_conv_h3__softmax_full_mha__prompt"
KN = NAME + "_kernel"
STAMP = int(os.environ.get("STAMP", "0"))

WS_QF  = 0
WS_KV  = 2 << 20
WS_OF  = 6 << 20
WS_XR  = 8 << 20
WS_ZT  = 10 << 20
WS_FL  = 12 << 20
WS_ST  = 16 << 20
WS_SIZE = 18 << 20

L_X = 0; L_RING = 65536
L_CONV = 131072
L_XR = [L_CONV, L_CONV + 7680]
L_HE = [L_CONV + 15360 + 64, L_CONV + 15360 + 8324 + 64]
L_HO = [L_HE[0] + 4096 + 68, L_HE[1] + 4096 + 68]
L_MISC = L_CONV + 15360 + 2*8324
L_TOTAL = 163840
L_Q = 57344
L_RED = 65536
RED_J = 1088; RED_T = 4*RED_J; RED_SRC = 2*RED_T
L_Z = L_CONV
L_WO = 0; L_O = 131072
L_A1 = 40960

def f32bits(x): return struct.unpack("<I", struct.pack("<f", x))[0]

class Asm:
    def __init__(self): self.l = []
    def __call__(self, s):
        for line in s.strip("\n").split("\n"):
            if line.strip(): self.l.append("    " + line.strip())
    def label(self, n): self.l.append(n + ":")
    def raw(self, s): self.l.append(s)
    def text(self): return "\n".join(self.l) + "\n"

class VM:
    def __init__(self, a): self.a = a; self.ops = []
    def op(self, s, tag): self.a(s); self.ops.append(tag)
    def wait(self, tag):
        idx = max(i for i, t in enumerate(self.ops) if t == tag)
        n = len(self.ops) - 1 - idx
        assert n <= 63, n
        self.a(f"s_waitcnt vmcnt({n})")
    def wait_all(self):
        self.a("s_waitcnt vmcnt(0)"); self.ops = []

def vr(b, n): return f"v[{b}:{b+n-1}]"

P_Q, P_K, P_V, P_SHK, P_SSMK, P_SSMD, P_X, P_WQKV, P_WO, P_OUT, P_DBG, P_WS = [4 + 2*i for i in range(12)]
def srd(a, d, ptr, size):
    a(f"s_mov_b32 s{d}, s{ptr}")
    a(f"s_and_b32 s{d+1}, s{ptr+1}, 0xffff")
    a(f"s_mov_b32 s{d+2}, {size}")
    a(f"s_mov_b32 s{d+3}, 0x00020000")
WS = "s[28:31]"

NST = 14
F0_AT = 5
CMID_AT = 4
H_AT = 8
GA_TRIP = 1
def stamp_begin(a):
    if STAMP:
        a("s_memrealtime s[72:73]")
        a("s_memtime s[76:77]")
        for k in range(NST): a(f"s_mov_b32 s{80+k}, 0")
DIAG = int(os.environ.get("DIAG", "0"))
def dstamp(a, k):
    if DIAG: stamp(a, k, True)
def stamp(a, k, d=False):
    if STAMP and (d or not DIAG or k == 0):
        a("s_memtime s[94:95]")
        a("s_waitcnt lgkmcnt(0)")
        a(f"s_sub_u32 s{80+k}, s94, s76")
def endpgm(a):
    if STAMP:
        a("s_waitcnt vmcnt(0)")
        a("s_memrealtime s[74:75]")
        a("s_memtime s[78:79]")
        a("s_waitcnt lgkmcnt(0)")
        a("s_sub_u32 s78, s78, s76")
        a("s_mov_b64 exec, 1")
        a("v_mov_b32 v4, s72")
        a("v_mov_b32 v5, s74")
        a("v_mov_b32 v6, s78")
        for k in range(NST): a(f"v_mov_b32 v{7+k}, s{80+k}")
        a("s_lshl_b32 s76, s2, 4")
        a("s_add_u32 s76, s76, s3")
        a("s_lshl_b32 s76, s76, 7")
        a(f"s_add_u32 s76, s76, {WS_ST}")
        a("v_mov_b32 v30, 0")
        for k in range(5):
            a(f"buffer_store_dwordx4 v[{4+4*k}:{7+4*k}], v30, {WS}, s76 offen offset:{16*k}")
    a("s_endpgm")

_uid = [0]
def poll(a, stage, grp_sreg, vaddr, vtmp):
    _uid[0] += 1; u = _uid[0]
    a(f"s_lshl_b32 s62, s{grp_sreg}, 8")
    a(f"s_add_u32 s62, s62, {WS_FL + stage*2048}")
    a("s_mov_b32 s63, 0")
    a("s_mov_b32 exec_hi, 0")
    a.label(f"POLL{u}")
    a(f"buffer_load_dwordx2 {vr(vtmp,2)}, v{vaddr}, {WS}, s62 offen sc1")
    a("s_add_u32 s63, s63, 1")
    a("s_cmp_gt_u32 s63, 0x40000")
    a(f"s_cbranch_scc1 POLLX{u}")
    a("s_waitcnt vmcnt(0)")
    a(f"v_cmp_ne_u64 vcc, s[60:61], {vr(vtmp,2)}")
    a(f"s_cbranch_vccz POLLX{u}")
    a("s_sleep 1")
    a(f"s_branch POLL{u}")
    a.label(f"POLLX{u}")
    a("s_mov_b64 exec, -1")

def publish(a, stage, grp_sreg, slot_sreg, vz, vn):
    a(f"s_lshl_b32 s62, s{grp_sreg}, 8")
    a(f"s_lshl_b32 s63, s{slot_sreg}, 3")
    a("s_add_u32 s62, s62, s63")
    a(f"s_add_u32 s62, s62, {WS_FL + stage*2048}")
    a("s_mov_b64 exec, 1")
    a(f"buffer_store_dwordx2 {vr(vn,2)}, v{vz}, {WS}, s62 offen sc1")
    a("s_mov_b64 exec, -1")

def gen(a):
    a.raw(f".globl {KN}")
    a.raw(".p2align 10")
    a.raw(f".type {KN},@function")
    a.label(KN)
    a("s_cmp_ge_u32 s2, 256")
    a("s_cbranch_scc1 END")
    stamp_begin(a)
    a("s_load_dwordx16 s[4:19], s[0:1], 0")
    a("s_load_dwordx8 s[20:27], s[0:1], 64")
    a("""
    v_lshrrev_b32 v1, 6, v0
    v_and_b32 v2, 63, v0
    v_readfirstlane_b32 s3, v1
    v_lshlrev_b32 v3, 4, v2
    s_and_b32 s48, s2, 7
    s_lshr_b32 s49, s2, 3
    s_and_b32 s50, s49, 3
    s_lshr_b32 s51, s49, 2
    s_and_b32 s52, s48, 4
    s_add_u32 s52, s52, s50
    s_and_b32 s53, s48, 3
    s_lshl_b32 s53, s53, 3
    s_add_u32 s53, s53, s51
    s_lshl_b32 s54, s48, 2
    s_add_u32 s54, s54, s50
    s_lshl_b32 s55, s50, 1
    s_add_u32 s55, s55, s51
    s_and_b32 s55, s55, 7
    """)
    a("s_cmp_lg_u32 s3, 8")
    a("s_cbranch_scc1 CPATH")
    a.raw("@@LOADER1@@")

    a.raw(".p2align 10")
    a.label("CPATH")
    a("s_memrealtime s[60:61]")
    a("v_lshlrev_b32 v4, 7, v2")
    a("s_cmp_lg_u32 s3, 4")
    a("s_cbranch_scc1 C_NP")
    a("s_getpc_b64 s[56:57]")
    a("s_lshl_b32 s58, s50, 13")
    a("v_add_u32 v5, s58, v4")
    a(f"v_min_u32 v5, CODE_END - CPATH - 256, v5")
    a("global_load_dword v15, v5, s[56:57]")
    a.label("C_NP")
    a("s_lshl_b32 s66, s48, 5")
    a("s_add_u32 s66, s66, s49")
    a("s_waitcnt lgkmcnt(0)")
    stamp(a, 0)
    srd(a, 28, P_WS, WS_SIZE)
    srd(a, 44, P_DBG, 256)
    srd(a, 32, P_SSMK, 512*2048*2)
    a("v_mov_b32 v14, 0")
    a("s_or_b32 s57, s2, s3")
    a("s_cmp_lg_u32 s57, 0")
    a("s_cbranch_scc1 C_NN")
    a("s_or_b32 s60, s60, 1")
    a("v_mov_b32 v12, s60")
    a("v_mov_b32 v13, s61")
    a("s_mov_b64 exec, 1")
    a("buffer_store_dwordx2 v[12:13], v14, s[44:47], 0 offen sc1")
    a("s_mov_b64 exec, -1")
    a.label("C_NN")
    a("s_cmp_lt_u32 s3, 5")
    a("s_cbranch_scc1 C_PT")
    a("s_cmp_eq_u32 s3, 6")
    a("s_cbranch_scc1 C_PT6")
    a("s_cmp_eq_u32 s3, 7")
    a("s_cbranch_scc1 C_PT7")
    srd(a, 36, P_X, 2048*512*2)
    a("""
    s_add_u32 s56, s55, 1
    s_and_b32 s56, s56, 7
    s_lshl_b32 s56, s56, 7
    s_lshl_b32 s57, s53, 16
    s_add_u32 s56, s56, s57
    v_lshlrev_b32 v5, 10, v2
    buffer_load_dword v15, v5, s[36:39], s56 offen
    s_branch C_PT
    """)
    a.label("C_PT6")
    srd(a, 36, P_WQKV, 512*1536*2)
    a(f"s_mul_i32 s56, s55, {64*3072}")
    a("""
    s_lshl_b32 s57, s52, 7
    s_add_u32 s56, s56, s57
    v_mul_u32_u24 v5, 3072, v2
    buffer_load_dword v15, v5, s[36:39], s56 offen
    s_branch C_PT
    """)
    a.label("C_PT7")
    a("s_lshl_b32 s56, s66, 13")
    a("buffer_load_dword v15, v4, s[32:35], s56 offen")
    a.label("C_PT")
    a("""
    v_and_b32 v4, 31, v2
    v_lshrrev_b32 v5, 5, v2
    v_bfe_u32 v63, v2, 1, 3
    v_xor_b32 v63, v63, v5
    s_and_b32 s56, s3, 1
    s_lshl_b32 s56, s56, 12
    v_lshlrev_b32 v61, 7, v4
    v_add_u32 v61, s56, v61
    """)
    for st in range(4):
        a(f"v_xor_b32 v60, {2*st}, v63")
        a(f"v_lshl_add_u32 v{56+st}, v60, 4, v61")
    a("""
    v_bfe_u32 v61, v2, 2, 2
    v_lshl_add_u32 v62, v5, 3, v61
    v_lshlrev_b32 v60, 8, v62
    v_bfe_u32 v63, v2, 4, 1
    v_lshl_add_u32 v60, v63, 5, v60
    v_and_b32 v63, 3, v2
    v_lshl_add_u32 v60, v63, 3, v60
    s_lshr_b32 s56, s3, 1
    v_xor_b32 v63, s56, v61
    v_lshl_add_u32 v60, v63, 6, v60
    """)
    a(f"v_add_u32 v60, {L_RING}, v60")
    for i in range(16): a(f"v_mov_b32 v{64+i}, 0")
    a("""
    s_lshl_b32 s56, s3, 10
    v_lshlrev_b32 v10, 9, v5
    v_lshl_add_u32 v10, v4, 2, v10
    v_add_u32 v10, s56, v10
    v_lshlrev_b32 v11, 4, v4
    s_sub_u32 s57, 7, s3
    v_and_b32 v12, 7, v4
    v_xor_b32 v12, s57, v12
    v_lshlrev_b32 v12, 4, v12
    v_lshl_add_u32 v12, v4, 8, v12
    v_lshlrev_b32 v13, 3, v5
    v_sub_u32 v12, v12, v13
    s_mov_b32 s59, 0xffff0000
    """)
    a(f"v_add_u32 v12, {L_CONV + 8}, v12")
    a(f"s_add_u32 s56, s56, {L_CONV}")
    a("""
    v_add_u32 v6, s56, v3
    s_lshl_b32 s56, s3, 2
    v_lshrrev_b32 v7, 4, v2
    v_add_u32 v7, s56, v7
    v_xor_b32 v7, v7, v2
    v_and_b32 v7, 7, v7
    v_lshlrev_b32 v7, 4, v7
    v_lshrrev_b32 v8, 3, v2
    v_lshl_add_u32 v7, v8, 12, v7
    s_lshl_b32 s65, s48, 18
    s_lshl_b32 s57, s3, 15
    s_add_u32 s65, s65, s57
    s_sub_u32 s57, 31, s49
    s_lshl_b32 s57, s57, 7
    s_add_u32 s65, s65, s57
    """)
    a(f"s_add_u32 s65, s65, {WS_XR}")
    a("s_branch C_GA")
    a.raw(".p2align 10")
    a.label("C_GA")
    dstamp(a, 1)
    a("s_barrier")
    stamp(a, 1)
    dstamp(a, 2)
    KR = 16; VR = 23; SK = 28; KF = 32; TAP = 40; KVv = 44; OUT = 48
    a(f"ds_read_b128 {vr(SK,4)}, v11 offset:{L_A1 + 17408}")
    for r in range(7): a(f"ds_read_b32 v{KR+r}, v10 offset:{L_A1 + (5+r)*128}")
    for r in range(4): a(f"ds_read_b32 v{VR+r}, v10 offset:{L_A1 + 9216 + r*128}")
    a("s_waitcnt lgkmcnt(0)")
    for c in range(2):
        def unpack(dst, src, hi):
            if hi: a(f"v_and_b32 v{dst}, s59, v{src}")
            else:  a(f"v_lshlrev_b32 v{dst}, 16, v{src}")
        for r in range(7): unpack(KF + r, KR + r, c)
        for j in range(4): unpack(TAP + j, SK + 2*c + (j >> 1), j & 1)
        for r in range(4): unpack(KVv + r, VR + r, c)
        for r in range(4): a(f"v_mul_f32 v{52+r}, v{KF+r}, v{TAP+3}")
        for r in range(4): a(f"v_fmac_f32 v{52+r}, v{KF+r+1}, v{TAP+2}")
        for r in range(4): a(f"v_fmac_f32 v{52+r}, v{KF+r+2}, v{TAP+1}")
        for r in range(4): a(f"v_fmac_f32 v{52+r}, v{KF+r+3}, v{TAP+0}")
        for r in range(4): a(f"v_mul_f32 v{KVv+r}, v{KVv+r}, v{52+r}")
        o = OUT + 2*c
        a(f"v_cvt_pk_bf16_f32 v{o}, v{KVv+3}, v{KVv+2}")
        a(f"v_cvt_pk_bf16_f32 v{o+1}, v{KVv+1}, v{KVv}")
        a(f"ds_write_b64 v12, {vr(o,2)} offset:{128*c}")
    a("s_waitcnt lgkmcnt(0)")
    dstamp(a, 3)
    a("s_cmp_ge_u32 s3, 4")
    a("s_cbranch_scc1 VPATH")

    FS = [16, 96]
    def p1_reads(c):
        xo = c*8192; wo = (c & 3)*16384
        for st in range(4):
            b = FS[c & 1] + 8*st
            a(f"ds_read_b128 {vr(b,4)}, v{56+st} offset:{xo}")
            a(f"ds_read_b64_tr_b16 {vr(b+4,2)}, v60 offset:{wo + 16*st*256}")
            a(f"ds_read_b64_tr_b16 {vr(b+6,2)}, v60 offset:{wo + (16*st+4)*256}")
    def p1_mfma(c, isv):
        for st in range(4):
            b = FS[c & 1] + 8*st
            x = vr(b,4); w = vr(b+4,4)
            if isv: a(f"v_mfma_f32_32x32x16_bf16 v[64:79], {x}, {w}, v[64:79]")
            else:   a(f"v_mfma_f32_32x32x16_bf16 v[64:79], {w}, {x}, v[64:79]")
    def pass1(isv, extra):
        for c in range(8):
            if c == F0_AT: a("s_waitcnt vmcnt(0)")
            a("s_barrier")
            if c < 8: dstamp(a, 4 + c)
            if c in (0, 4): stamp(a, 2 + c//4)
            if c == 0: a("ds_read_b128 v[8:11], v6")
            p1_reads(c)
            if c == 0:
                a("s_waitcnt lgkmcnt(12)")
                a(f"buffer_store_dwordx4 v[8:11], v7, {WS}, s65 offen sc1")
            else:
                p1_mfma(c - 1, isv)
            extra(c)
            a("s_waitcnt lgkmcnt(0)")
        p1_mfma(7, isv)
    def kextra(c):
        if c == 1:
            a("""
            s_lshl_b32 s56, s52, 2
            s_and_b32 s57, s3, 2
            s_add_u32 s56, s56, s57
            s_lshl_b32 s56, s56, 6
            s_lshl_b32 s57, s53, 1
            s_add_u32 s56, s56, s57
            s_and_b32 s57, s3, 1
            s_add_u32 s64, s56, s57
            s_lshl_b32 s56, s64, 11
            v_and_b32 v5, 0x33, v2
            v_bfe_u32 v6, v2, 2, 1
            v_lshl_or_b32 v5, v6, 3, v5
            v_bfe_u32 v6, v2, 3, 1
            v_lshl_or_b32 v5, v6, 2, v5
            v_lshlrev_b32 v5, 4, v5
            """)
            a(f"s_add_u32 s56, s56, {WS_KV}")
            a("s_add_u32 s57, s56, 131072")
            a("""
            v_lshlrev_b32 v61, 7, v62
            v_bfe_u32 v63, v2, 4, 1
            v_lshl_add_u32 v61, v63, 5, v61
            v_and_b32 v63, 3, v2
            v_lshl_add_u32 v61, v63, 3, v61
            v_bfe_u32 v63, v2, 3, 1
            s_lshr_b32 s58, s3, 1
            v_xor_b32 v63, s58, v63
            v_lshl_add_u32 v61, v63, 6, v61
            """)
            a(f"v_add_u32 v61, {L_RING}, v61")
            for i in range(16): a(f"v_mov_b32 v{80+i}, 0")
    pass1(False, kextra)
    def p2_reads(h):
        j = h >> 1; hf = h & 1
        wo = ((8 + j) & 3)*16384 + hf*8192
        for st in range(4):
            b = FS[h & 1] + 8*st
            a(f"ds_read_b128 {vr(b,4)}, v{56+st} offset:{h*8192}")
            a(f"ds_read_b64_tr_b16 {vr(b+4,2)}, v61 offset:{wo + (16*st)*128}")
            a(f"ds_read_b64_tr_b16 {vr(b+6,2)}, v61 offset:{wo + (16*st + 4)*128}")
    def p2_mfma(h):
        for st in range(4):
            b = FS[h & 1] + 8*st
            a(f"v_mfma_f32_32x32x16_bf16 v[80:95], {vr(b+4,4)}, {vr(b,4)}, v[80:95]")
    for h in range(8):
        if h % 2 == 0: a("s_barrier")
        p2_reads(h)
        if h == 0:
            for hh in range(2):
                for p in range(4):
                    a(f"v_cvt_pk_bf16_f32 v{48+4*hh+p}, v{64+8*hh+2*p}, v{64+8*hh+2*p+1}")
                a(f"buffer_store_dwordx4 {vr(48+4*hh,4)}, v5, {WS}, s{56+hh} offen sc1")
            stamp(a, 4)
        else:
            p2_mfma(h - 1)
        a("s_waitcnt lgkmcnt(0)")
    p2_mfma(7)
    qs = f32bits(0.25 * math.log2(math.e))
    a(f"s_mov_b32 s58, {qs:#x}")
    a("s_lshl_b32 s56, s64, 10")
    a(f"s_add_u32 s56, s56, {WS_QF}")
    a("s_add_u32 s57, s56, 65536")
    a("s_nop 9")
    for i in range(16): a(f"v_mul_f32 v{80+i}, s58, v{80+i}")
    for hh in range(2):
        for p in range(4):
            a(f"v_cvt_pk_bf16_f32 v{104+4*hh+p}, v{80+8*hh+2*p}, v{80+8*hh+2*p+1}")
        a(f"buffer_store_dwordx4 {vr(104+4*hh,4)}, v3, {WS}, s{56+hh} offen sc1")
    a("s_branch CONV")

    a.label("VPATH")
    def vextra(c):
        if c == 0:
            a("buffer_load_dwordx2 v[12:13], v14, s[44:47], 0 offen sc1")
        if c == 1:
            a("""
            s_lshl_b32 s64, s66, 1
            s_bfe_u32 s65, s3, 0x10001
            s_add_u32 s64, s64, s65
            s_lshl_b32 s64, s64, 12
            s_and_b32 s58, s3, 1
            """)
            a("buffer_load_ushort v80, v14, s[32:35], s64 offen")
            a(f"s_mul_i32 s68, s65, 8324")
            a(f"s_mul_i32 s69, s58, {4096+68}")
            a("s_add_u32 s68, s68, s69")
            a(f"s_add_u32 s68, s68, {L_HE[0]}")
            a("""
            s_lshl_b32 s56, s52, 2
            s_and_b32 s57, s3, 2
            s_add_u32 s56, s56, s57
            s_lshl_b32 s56, s56, 6
            s_lshl_b32 s57, s53, 1
            s_add_u32 s56, s56, s57
            s_and_b32 s57, s3, 1
            s_add_u32 s56, s56, s57
            s_lshl_b32 s56, s56, 11
            v_bfe_u32 v5, v2, 4, 1
            v_lshlrev_b32 v5, 17, v5
            v_lshrrev_b32 v6, 5, v2
            v_lshl_add_u32 v5, v6, 8, v5
            v_and_b32 v6, 15, v2
            v_lshl_add_u32 v5, v6, 4, v5
            """)
            a(f"s_add_u32 s56, s56, {WS_KV + 1024}")
        if c == F0_AT:
            a("s_cmp_lg_u32 s3, 7")
            a("s_cbranch_scc1 V_NN2")
            a("s_mov_b32 s63, 0")
            a.label("V_NP")
            a("v_cmp_ne_u32 vcc, 0, v12")
            a("s_cbranch_vccnz V_NPX")
            a("s_add_u32 s63, s63, 1")
            a("s_cmp_gt_u32 s63, 0x40000")
            a("s_cbranch_scc1 V_NPX")
            a("buffer_load_dwordx2 v[12:13], v14, s[44:47], 0 offen sc1")
            a("s_waitcnt vmcnt(0)")
            a("s_branch V_NP")
            a.label("V_NPX")
            publish(a, 0, 48, 49, 14, 12)
            a(f"v_mov_b32 v15, {L_MISC}")
            a("ds_write_b64 v15, v[12:13]")
            a.label("V_NN2")
    pass1(True, vextra)
    a("s_barrier")
    a("s_lshl_b32 s67, s58, 4")
    a("s_sub_u32 s67, s67, 1")
    a("v_cmp_eq_u32 vcc, s67, v2")
    a("v_lshlrev_b32 v80, 16, v80")
    a("s_nop 0")
    a("v_cndmask_b32 v15, 0, v80, vcc")
    a("v_lshlrev_b32 v13, 2, v2")
    a("s_sub_u32 s69, s68, 64")
    a("v_add_u32 v13, s69, v13")
    a("s_mov_b64 exec, 0xffff")
    a("ds_write_b32 v13, v15")
    a("s_mov_b64 exec, -1")
    a("s_nop 1")
    for j in range(2):
        for p in range(4):
            a(f"v_cvt_pk_bf16_f32 v{48+4*j+p}, v{64+8*j+2*p}, v{64+8*j+2*p+1}")
    for j in range(2):
        a(f"buffer_store_dwordx4 {vr(48+4*j,4)}, v5, {WS}, s56 offen offset:{512*j} sc1")
    stamp(a, 4)
    a("s_barrier")
    a("s_barrier")
    a("s_barrier")

    a.label("CONV")
    srd(a, 32, P_Q, 2048*512*2)
    srd(a, 36, P_OUT, 2048*1024*2)
    a("""
    s_lshr_b32 s64, s3, 2
    s_and_b32 s65, s3, 3
    s_lshl_b32 s67, s66, 2
    """)
    a(f"s_load_dword s68, s[{P_SSMD}:{P_SSMD+1}], s67")
    a("""
    v_lshrrev_b32 v4, 3, v2
    v_and_b32 v5, 7, v2
    v_lshlrev_b32 v6, 10, v4
    v_lshl_add_u32 v6, v5, 4, v6
    s_lshl_b32 s56, s49, 16
    s_lshl_b32 s57, s3, 13
    s_add_u32 s56, s56, s57
    s_lshl_b32 s57, s48, 7
    s_add_u32 s56, s56, s57
    buffer_load_dwordx4 v[100:103], v6, s[32:35], s56 offen
    """)
    AL = 8; AH = 9; AB = 10
    a("""
    v_and_b32 v4, 31, v2
    v_lshrrev_b32 v5, 5, v2
    v_and_b32 v6, 1, v2
    """)
    a(f"v_mul_u32_u24 v6, {L_HO[0] - 64 - (L_HE[0] - 62)}, v6")
    a(f"v_sub_u32 v6, {L_HO[0] - 64}, v6")
    a("v_lshl_add_u32 v6, v4, 1, v6")
    a("v_lshl_add_u32 v6, v5, 4, v6")
    a("s_mul_i32 s56, s64, 8324")
    a("s_lshl_b32 s57, s65, 9")
    a("s_add_u32 s56, s56, s57")
    a(f"v_add_u32 v{AL}, s56, v6")
    a(f"v_add_u32 v{AH}, 2048, v{AL}")
    a("v_sub_u32 v6, 31, v4")
    a("v_mul_u32_u24 v6, 80, v6")
    a("v_lshl_add_u32 v6, v5, 4, v6")
    a("s_mul_i32 s56, s64, 7680")
    a("s_mul_i32 s57, s65, 640")
    a("s_add_u32 s56, s56, s57")
    a(f"s_add_u32 s56, s56, {L_XR[0]}")
    a(f"v_add_u32 v{AB}, s56, v6")
    C0 = 64; C1 = 80
    for i in range(32): a(f"v_mov_b32 v{C0+i}, 0")
    stamp(a, 5)
    a("s_waitcnt lgkmcnt(0)")
    a("s_barrier")
    stamp(a, 6)
    def creads(i):
        b = 16 + 16*(i & 1)
        a(f"ds_read2_b32 {vr(b,2)}, v{AL} offset0:{8*i} offset1:{8*i+1}")
        a(f"ds_read2_b32 {vr(b+2,2)}, v{AL} offset0:{8*i+2} offset1:{8*i+3}")
        a(f"ds_read_b128 {vr(b+8,4)}, v{AB} offset:{(i>>1)*80 + (i&1)*32 + 2560}")
        a(f"ds_read_b128 {vr(b+12,4)}, v{AB} offset:{(i>>1)*80 + (i&1)*32}")
        a(f"ds_read2_b32 {vr(b+4,2)}, v{AH} offset0:{8*i} offset1:{8*i+1}")
        a(f"ds_read2_b32 {vr(b+6,2)}, v{AH} offset0:{8*i+2} offset1:{8*i+3}")
    creads(0)
    for i in range(16):
        if i == CMID_AT:
            a("s_waitcnt vmcnt(1)")
            a("s_barrier")
        if i < 15: creads(i + 1)
        n = 6 if i < 15 else 0
        b = 16 + 16*(i & 1)
        a(f"s_waitcnt lgkmcnt({n+3})")
        a(f"v_mfma_f32_32x32x16_bf16 {vr(C0,16)}, {vr(b,4)}, {vr(b+8,4)}, {vr(C0,16)}")
        a(f"s_waitcnt lgkmcnt({n+2})")
        a(f"v_mfma_f32_32x32x16_bf16 {vr(C1,16)}, {vr(b,4)}, {vr(b+12,4)}, {vr(C1,16)}")
        a(f"s_waitcnt lgkmcnt({n})")
        a(f"v_mfma_f32_32x32x16_bf16 {vr(C1,16)}, {vr(b+4,4)}, {vr(b+8,4)}, {vr(C1,16)}")
    a("s_lshl_b32 s56, s3, 13")
    a(f"s_add_u32 s56, s56, {L_RED}")
    a("v_add_u32 v6, s56, v3")
    a("v_xor_b32 v7, 64, v6")
    a("v_xor_b32 v11, 128, v6")
    a("v_xor_b32 v12, 192, v6")
    a("""
    v_and_b32 v13, 3, v2
    v_lshrrev_b32 v14, 2, v2
    s_and_b32 s56, s65, 1
    s_lshl_b32 s56, s56, 4
    v_add_u32 v14, s56, v14
    v_lshlrev_b32 v15, 2, v13
    v_xor_b32 v14, v14, v15
    v_lshlrev_b32 v14, 4, v14
    v_lshl_add_u32 v14, v13, 10, v14
    s_lshr_b32 s56, s65, 1
    s_lshl_b32 s56, s56, 12
    s_lshl_b32 s57, s64, 15
    s_add_u32 s56, s56, s57
    """)
    a(f"s_add_u32 s56, s56, {L_RED}")
    a("v_add_u32 v14, s56, v14")
    for T in range(2):
        for j in range(4):
            a(f"ds_write_b128 v{[6,7,11,12][j]}, {vr(C0+16*T+4*j,4)} offset:{T*4096 + j*1024}")
    a("""
    s_lshl_b32 s56, s65, 6
    s_sub_u32 s56, 255, s56
    v_sub_u32 v15, s56, v2
    v_lshrrev_b32 v13, 2, v15
    v_mul_u32_u24 v13, 80, v13
    v_and_b32 v15, 3, v15
    v_lshl_add_u32 v13, v15, 4, v13
    s_mul_i32 s56, s64, 7680
    """)
    a(f"s_add_u32 s56, s56, {L_XR[0]}")
    a("v_add_u32 v13, s56, v13")
    a("ds_read_b128 v[48:51], v13")
    a("""
    s_lshl_b32 s56, s68, 16
    s_and_b32 s57, s68, 0xffff0000
    s_cmp_eq_u32 s64, 0
    s_cselect_b32 s58, s56, s57
    s_mov_b32 s59, 0xffff0000
    s_lshl_b32 s56, s66, 1
    s_add_u32 s56, s56, s64
    s_lshl_b32 s56, s56, 12
    s_lshl_b32 s57, s65, 10
    s_add_u32 s56, s56, s57
    """)
    a(f"s_add_u32 s56, s56, {WS_ZT}")
    a("s_waitcnt lgkmcnt(0)")
    a("s_barrier")
    stamp(a, 7)
    for src in range(4):
        a(f"ds_read_b128 {vr(16+8*src,4)}, v14 offset:{src*8192}")
        a(f"ds_read_b128 {vr(20+8*src,4)}, v14 offset:{src*8192 + 512}")
    for d in range(4):
        a(f"v_lshlrev_b32 v{52+7-2*d}, 16, v{48+d}")
        a(f"v_and_b32 v{52+6-2*d}, s59, v{48+d}")
    a("s_waitcnt lgkmcnt(4)")
    for i in range(8): a(f"v_add_f32 v{16+i}, v{16+i}, v{24+i}")
    a("s_waitcnt lgkmcnt(0)")
    for i in range(8): a(f"v_add_f32 v{32+i}, v{32+i}, v{40+i}")
    for i in range(8): a(f"v_fmac_f32 v{16+i}, s58, v{52+i}")
    for i in range(8): a(f"v_add_f32 v{16+i}, v{16+i}, v{32+i}")
    for i in range(4): a(f"v_cvt_pk_bf16_f32 v{96+i}, v{16+2*i}, v{17+2*i}")
    a(f"buffer_store_dwordx4 v[96:99], v3, {WS}, s56 offen sc1")

    Q = 4; KF = 8; V = 12; IDX = 28; AK = 29; AV = 30; S = 32; O = 64; NM = 80
    for i in range(16): a(f"v_mov_b32 v{NM+i}, 0")
    a("v_and_b32 v31, 27, v2")
    a("v_cmp_eq_u32 vcc, 16, v31")
    a("v_mov_b32 v31, 0x3f803f80")
    a(f"v_mov_b32 v{IDX}, 0xdddd")
    a(f"v_cndmask_b32 v{V}, 0, v31, vcc")
    for i in range(1, 16): a(f"v_mov_b32 v{V+i}, v{V}")
    a("s_mov_b32 s66, 0xffff")
    a("s_mov_b32 s67, 0xffff")
    a("s_mov_b32 s68, 0")
    a("s_lshl_b32 s56, s3, 10")
    a(f"s_add_u32 s56, s56, {L_Q}")
    a("v_add_u32 v31, s56, v3")
    stamp(a, 8)
    a("s_barrier")
    stamp(a, 9)
    a(f"ds_read_b128 {vr(Q,4)}, v31")
    a.label("RUN")
    a(f"v_mov_b32 v{AK}, v3")
    a(f"ds_read_b128 {vr(KF,4)}, v3")
    a("v_and_b32 v31, 15, v2")
    a("v_lshlrev_b32 v31, 4, v31")
    a(f"v_lshrrev_b32 v{AV}, 5, v2")
    a(f"v_lshl_add_u32 v{AV}, v{AV}, 8, v31")
    a(f"v_add_u32 v{AV}, 1024, v{AV}")
    for i in range(16): a(f"v_mov_b32 v{O+i}, 0")
    for i in range(8): a(f"v_mov_b32 v{S+16+8+i}, 0")
    a("s_waitcnt lgkmcnt(0)")
    a(f"v_mfma_f32_32x32x16_bf16 {vr(S,16)}, {vr(KF,4)}, {vr(Q,4)}, {vr(NM,16)}")
    a(f"ds_read_b128 {vr(KF,4)}, v{AK} offset:2048")
    a("s_mov_b64 exec, s[66:67]")
    a(f"ds_read_b128 {vr(V,4)}, v{AV}")
    a(f"ds_read_b128 {vr(V+4,4)}, v{AV} offset:512")
    a(f"ds_read_b128 {vr(V+12,4)}, v{AV} offset:512")
    a("s_mov_b64 exec, -1")
    a("s_mov_b32 s65, 0")
    a("s_waitcnt lgkmcnt(0)")
    a("s_nop 7")
    a.raw(".p2align 6")
    a.label("LOOP")
    U = 4
    for u in range(U):
        c = u & 1; p = c ^ 1
        Sc = S + 16*c; Sp = S + 16*p
        def ex(i): a(f"v_exp_f32 v{Sc+i}, v{Sc+i}")
        a(f"s_setprio {3-u}")
        ex(0); ex(1)
        a(f"v_smfmac_f32_32x32x32_bf16 {vr(O,16)}, {vr(V+8*p+4,4)}, {vr(Sp+8,8)}, v{IDX}")
        ex(2); ex(3); ex(4)
        a("s_waitcnt lgkmcnt(0)")
        a(f"v_mfma_f32_32x32x16_bf16 {vr(Sp,16)}, {vr(KF,4)}, {vr(Q,4)}, {vr(NM,16)}")
        a(f"ds_read_b128 {vr(KF,4)}, v{AK} offset:{(u+2)*2048}")
        a("s_mov_b64 exec, s[66:67]")
        a(f"ds_read_b128 {vr(V+8*p,4)}, v{AV} offset:{(u+1)*2048}")
        a(f"ds_read_b128 {vr(V+8*p+4,4)}, v{AV} offset:{(u+1)*2048+512}")
        a("s_mov_b64 exec, -1")
        for i in range(5, 10): ex(i)
        a(f"v_smfmac_f32_32x32x32_bf16 {vr(O,16)}, {vr(V+8*c,4)}, {vr(Sc,8)}, v{IDX}")
        for i in range(10, 16): ex(i)
    a(f"v_add_u32 v{AK}, {U*2048}, v{AK}")
    a(f"v_add_u32 v{AV}, {U*2048}, v{AV}")
    a("s_add_u32 s65, s65, 1")
    a("s_bitcmp1_b32 s69, s65")
    a("s_cbranch_scc0 LOOPT")
    a("s_waitcnt vmcnt(0)")
    a("s_barrier")
    a.label("LOOPT")
    a(f"s_cmp_lt_u32 s65, {64//U}")
    a("s_cbranch_scc1 LOOP")
    a(f"v_smfmac_f32_32x32x32_bf16 {vr(O,16)}, {vr(V+8+4,4)}, {vr(S+16+8,8)}, v{IDX}")
    a("s_setprio 0")
    a("s_waitcnt lgkmcnt(0)")
    a("s_nop 15")
    a("s_cmp_lg_u32 s68, 0")
    a("s_cbranch_scc1 FIN")
    a(f"v_add_f32 v31, abs(v{O}), abs(v{O+1})")
    for i in range(2, 8): a(f"v_add_f32 v31, v31, abs(v{O+i})")
    a(f"s_mov_b32 s56, {f32bits(2.0**100):#x}")
    a(f"s_mov_b32 s57, {f32bits(2.0**40):#x}")
    a(f"s_mov_b32 s58, {f32bits(2.0**-40):#x}")
    a("v_cmp_ngt_f32 vcc, s56, v31")
    a(f"v_cmp_ngt_f32 s[62:63], s57, v{O+8}")
    a(f"v_cmp_nlt_f32 s[70:71], s58, v{O+8}")
    a("s_or_b64 s[62:63], s[62:63], s[70:71]")
    a("s_or_b64 s[62:63], vcc, s[62:63]")
    a("s_cbranch_scc1 FALLBACK")
    a.label("FIN")
    stamp(a, 10)
    a(f"v_rcp_f32 v31, v{O+8}")
    a("""
    s_lshl_b32 s56, s51, 3
    s_add_u32 s56, s56, s3
    s_lshl_b32 s56, s56, 5
    s_add_u32 s56, s56, s54
    s_lshl_b32 s56, s56, 10
    """)
    a(f"s_add_u32 s56, s56, {WS_OF}")
    for i in range(8): a(f"v_mul_f32 v{O+i}, v{O+i}, v31")
    for i in range(4): a(f"v_cvt_pk_bf16_f32 v{KF+i}, v{O+2*i}, v{O+2*i+1}")
    a(f"buffer_store_dwordx4 {vr(KF,4)}, v3, {WS}, s56 offen sc1")
    a("""
    v_lshrrev_b32 v4, 3, v2
    v_and_b32 v5, 7, v2
    v_xor_b32 v6, s3, v5
    v_lshlrev_b32 v6, 4, v6
    v_lshl_add_u32 v6, v5, 10, v6
    v_lshl_add_u32 v6, v4, 1, v6
    """)
    a(f"v_add_u32 v6, {L_Z}, v6")
    for jj in range(8): a(f"ds_read_u16_d16_hi v{32+jj}, v6 offset:{128*jj}")
    a("""
    v_lshlrev_b32 v7, 11, v4
    v_lshl_add_u32 v7, v5, 4, v7
    s_lshl_b32 s56, s49, 17
    s_lshl_b32 s57, s3, 14
    s_add_u32 s56, s56, s57
    s_lshl_b32 s57, s48, 7
    s_add_u32 s56, s56, s57
    """)
    for p in range(4):
        a(f"v_lshlrev_b32 v{40+2*p}, 16, v{100+p}")
        a(f"v_and_b32 v{41+2*p}, s59, v{100+p}")
    a("s_waitcnt lgkmcnt(0)")
    for i in range(8):
        a(f"v_and_b32 v{32+i}, s59, v{32+i}")
        a(f"v_mul_f32 v{32+i}, v{32+i}, v{40+i}")
    for i in range(4): a(f"v_cvt_pk_bf16_f32 v{48+i}, v{32+2*i}, v{33+2*i}")
    a("buffer_store_dwordx4 v[48:51], v7, s[36:39], s56 offen")
    a("""
    v_lshrrev_b32 v12, 5, v2
    v_lshlrev_b32 v12, 2, v12
    v_bfe_u32 v13, v2, 2, 2
    v_add_u32 v12, v12, v13
    v_lshlrev_b32 v12, 8, v12
    v_bfe_u32 v14, v2, 4, 1
    v_lshl_add_u32 v12, v14, 5, v12
    v_and_b32 v14, 3, v2
    v_lshl_add_u32 v12, v14, 3, v12
    s_and_b32 s56, s3, 3
    v_xor_b32 v13, s56, v13
    v_lshl_add_u32 v12, v13, 6, v12
    s_lshr_b32 s57, s3, 2
    s_lshl_b32 s56, s57, 16
    v_add_u32 v12, s56, v12
    s_lshl_b32 s56, s57, 14
    """)
    a(f"s_add_u32 s56, s56, {L_O}")
    a("v_add_u32 v13, s56, v3")
    for i in range(16): a(f"v_mov_b32 v{64+i}, 0")
    a("""
    s_lshl_b32 s56, s3, 12
    v_add_u32 v80, s56, v3
    v_xor_b32 v81, 16, v80
    v_xor_b32 v82, 32, v80
    v_xor_b32 v83, 48, v80
    v_lshrrev_b32 v84, 4, v2
    s_lshl_b32 s56, s3, 2
    v_add_u32 v85, s56, v84
    v_xor_b32 v85, v85, v14
    v_lshlrev_b32 v85, 4, v85
    v_lshl_add_u32 v85, v14, 10, v85
    v_bfe_u32 v86, v2, 2, 2
    v_lshl_add_u32 v85, v86, 12, v85
    v_lshlrev_b32 v87, 11, v84
    v_and_b32 v86, 15, v2
    v_lshl_add_u32 v87, v86, 4, v87
    s_lshl_b32 s56, s48, 3
    s_add_u32 s56, s56, s51
    s_lshl_b32 s56, s56, 16
    s_lshl_b32 s57, s3, 13
    s_add_u32 s56, s56, s57
    s_lshl_b32 s57, s50, 8
    s_add_u32 s56, s56, s57
    s_add_u32 s56, s56, 1024
    """)
    a("s_waitcnt vmcnt(1)")
    a("s_barrier")
    stamp(a, 11)
    a("s_barrier")
    WF = 96
    for ph in range(2):
        for st in range(8):
            a(f"ds_read_b64_tr_b16 {vr(WF+4*st,2)}, v12 offset:{(8*ph+st)*4096}")
            a(f"ds_read_b64_tr_b16 {vr(WF+4*st+2,2)}, v12 offset:{(8*ph+st)*4096 + 2048}")
        a("s_waitcnt lgkmcnt(0)")
        a("s_barrier")
        if ph == 0: stamp(a, 12)
        for st in range(8):
            a(f"ds_read_b128 {vr(16+4*st,4)}, v13 offset:{(8*ph+st)*1024}")
        for st in range(8):
            a(f"s_waitcnt lgkmcnt({7-st})")
            a(f"v_mfma_f32_32x32x16_bf16 v[64:79], {vr(WF+4*st,4)}, {vr(16+4*st,4)}, v[64:79]")
    a("s_nop 11")
    for j in range(4):
        a(f"ds_write_b128 v{80+j}, {vr(64+4*j,4)} offset:{j*1024}")
    a("""
    s_waitcnt lgkmcnt(0)
    s_barrier
    ds_read_b128 v[16:19], v85
    ds_read_b128 v[20:23], v85 offset:512
    ds_read_b128 v[24:27], v85 offset:16384
    ds_read_b128 v[28:31], v85 offset:16896
    s_waitcnt lgkmcnt(0)
    """)
    for i in range(8): a(f"v_add_f32 v{16+i}, v{16+i}, v{24+i}")
    for i in range(4): a(f"v_cvt_pk_bf16_f32 v{32+i}, v{16+2*i}, v{17+2*i}")
    a("buffer_store_dwordx4 v[32:35], v87, s[36:39], s56 offen")
    endpgm(a)

    a.label("FALLBACK")
    a("s_mov_b32 s68, 1")
    a("s_mov_b32 s69, 0")
    a(f"v_mov_b32 v{AK}, v3")
    a(f"v_mov_b32 v31, {f32bits(float('-inf')):#x}")
    a("s_mov_b32 s65, 0")
    a.label("MAXL")
    a(f"ds_read_b128 {vr(KF,4)}, v{AK}")
    a(f"v_add_u32 v{AK}, 2048, v{AK}")
    a("s_waitcnt lgkmcnt(0)")
    a(f"v_mfma_f32_32x32x16_bf16 {vr(S,16)}, {vr(KF,4)}, {vr(Q,4)}, 0")
    a("s_nop 15")
    for i in range(0, 16, 2): a(f"v_max3_f32 v31, v31, v{S+i}, v{S+i+1}")
    a("s_add_u32 s65, s65, 1")
    a("s_cmp_lt_u32 s65, 64")
    a("s_cbranch_scc1 MAXL")
    a(f"v_mov_b32 v{S}, v31")
    a("s_nop 1")
    a(f"v_permlane32_swap_b32 v31, v{S}")
    a("s_nop 1")
    a(f"v_max_f32 v31, v31, v{S}")
    for i in range(16): a(f"v_sub_f32 v{NM+i}, 0, v31")
    a("s_branch RUN")

def gen_loader(a):
    vm = VM(a)
    VX = 16; VW = 24; VQ = 40; VXR = 48
    a("""
    v_lshrrev_b32 v4, 3, v2
    v_lshrrev_b32 v5, 4, v2
    v_and_b32 v6, 7, v2
    v_xor_b32 v7, v6, v5
    v_lshlrev_b32 v7, 4, v7
    """)
    a(f"v_lshl_add_u32 v{VX}, v4, 10, v7")
    a(f"v_xor_b32 v{VX+1}, 64, v{VX}")
    a(f"v_add_u32 v{VX+1}, {8192-1024}, v{VX+1}")
    a(f"v_add_u32 v{VX+2}, {2*(8192-1024)}, v{VX}")
    a(f"v_add_u32 v{VX+3}, {2*(8192-1024)}, v{VX+1}")
    a("""
    v_bfe_u32 v7, v2, 2, 2
    v_xor_b32 v7, v7, v5
    v_mul_u32_u24 v8, 3072, v5
    v_lshrrev_b32 v9, 1, v7
    v_lshl_add_u32 v8, v9, 10, v8
    v_and_b32 v9, 1, v7
    v_lshl_add_u32 v8, v9, 6, v8
    v_and_b32 v9, 3, v2
    """)
    a(f"v_lshl_add_u32 v{VW}, v9, 4, v8")
    for i in range(1, 4):
        a(f"v_add_u32 v{VW+i}, {4*3072 - 1024}, v{VW+i-1}")
    a("""
    v_lshlrev_b32 v10, 4, v6
    v_lshl_add_u32 v10, v4, 10, v10
    s_lshl_b32 s56, s49, 16
    s_lshl_b32 s57, s48, 7
    s_add_u32 s56, s56, s57
    v_add_u32 v11, s56, v10
    v_subrev_u32 v10, 8192, v11
    s_lshl_b32 s62, s48, 9
    s_lshl_b32 s57, s53, 16
    s_lshl_b32 s58, s52, 7
    s_mov_b32 s59, s55
    s_mov_b32 s63, 0
    """)
    a(f"s_mov_b32 m0, {L_A1}")
    a("s_waitcnt lgkmcnt(0)")
    stamp(a, 0)
    srd(a, 32, P_K, 2048*512*2)
    srd(a, 36, P_V, 2048*512*2)
    srd(a, 40, P_SHK, 512*4*2)
    a("buffer_load_dwordx4 v10, s[32:35], 0 offen lds")
    a.label("LDA")
    a("s_add_u32 m0, m0, 1024")
    a("s_add_u32 s56, m0, 8192")
    a("buffer_load_dwordx4 v11, s[32:35], s63 offen lds")
    a("s_mov_b32 m0, s56")
    a("s_nop 0")
    a("buffer_load_dwordx4 v11, s[36:39], s63 offen lds")
    a("s_sub_u32 m0, m0, 8192")
    a("s_add_u32 s63, s63, 8192")
    a("s_cmp_lt_u32 s63, 65536")
    a("s_cbranch_scc1 LDA")
    a(f"s_mov_b32 m0, {L_A1 + 17408}")
    a("s_mov_b32 exec_hi, 0")
    a("buffer_load_dwordx4 v3, s[40:43], s62 offen lds")
    a("s_mov_b64 exec, -1")
    a("s_mov_b32 s56, 0")
    srd(a, 32, P_X, 2048*512*2)
    srd(a, 36, P_WQKV, 512*1536*2)
    a.label("LD1")
    a(f"s_cmp_lt_u32 s56, {GA_TRIP}")
    a("s_cbranch_scc1 LD1B")
    a(f"s_cmp_eq_u32 s56, {GA_TRIP}")
    a("s_cbranch_scc0 LD1C")
    a(f"s_waitcnt vmcnt({24*GA_TRIP})")
    a("s_barrier")
    a.label("LD1C")
    a("s_cmp_lt_u32 s56, 3")
    a("s_cbranch_scc1 LD1B")
    a("s_waitcnt vmcnt(48)")
    a("s_barrier")
    a.label("LD1B")
    a("s_lshl_b32 s66, s56, 13")
    a("s_mov_b32 m0, s66")
    a("s_lshl_b32 s64, s59, 7")
    a("s_add_u32 s64, s64, s57")
    for i in range(4): a(f"buffer_load_dwordx4 v{VX+i}, s[32:35], s64 offen offset:{1024*i} lds")
    a("s_add_u32 m0, s66, 4096")
    a("s_add_u32 s64, s64, 32768")
    for i in range(4): a(f"buffer_load_dwordx4 v{VX+i}, s[32:35], s64 offen offset:{1024*i} lds")
    a("s_and_b32 s66, s56, 3")
    a("s_lshl_b32 s66, s66, 14")
    a(f"s_add_u32 m0, s66, {L_RING}")
    a(f"s_mul_i32 s65, s59, {64*3072}")
    a("s_add_u32 s65, s65, s58")
    a("s_add_u32 s65, s65, 1024")
    for G in range(4):
        if G:
            a("s_add_u32 m0, m0, 4096")
            a(f"s_add_u32 s65, s65, {16*3072}")
        for i in range(4): a(f"buffer_load_dwordx4 v{VW+i}, s[36:39], s65 offen offset:{1024*i} lds")
    a("s_add_u32 s59, s59, 1")
    a("s_and_b32 s59, s59, 7")
    a("s_add_u32 s56, s56, 1")
    a("s_cmp_lt_u32 s56, 8")
    a("s_cbranch_scc1 LD1")
    a("s_branch LOADER2")
    a.raw("@@SPLIT@@")
    a.label("LOADER2")
    stamp(a, 3)
    for c in (5, 6, 7): vm.ops += [f"c{c}"]*24
    srd(a, 28, P_WS, WS_SIZE)
    srd(a, 40, P_WO, 512*512*2)
    def kc(c):
        a(f"s_add_u32 s59, s55, {c}")
        a("s_and_b32 s59, s59, 7")
    def issue2(c):
        j = c - 8
        for hf in range(2):
            kc(2*j + hf)
            a(f"s_mul_i32 s65, s59, {64*3072}")
            a("s_add_u32 s65, s65, s58")
            for g in range(2):
                a(f"s_mov_b32 m0, {L_RING + (c&3)*16384 + hf*8192 + g*4096}")
                a(f"s_add_u32 s65, s65, {32*3072*g}")
                for i in range(4):
                    vm.op(f"buffer_load_dwordx4 v{VQ+i}, s[36:39], s65 offen offset:{1024*i} lds", f"c{c}")
    a("""
    v_bfe_u32 v7, v2, 4, 1
    v_lshlrev_b32 v7, 2, v7
    v_xor_b32 v7, v7, v6
    v_lshlrev_b32 v7, 4, v7
    v_mul_u32_u24 v8, 3072, v4
    v_add_u32 v8, v8, v7
    v_lshl_add_u32 v10, v4, 10, v7
    """)
    for i in range(4):
        a(f"v_add_u32 v{VQ+i}, {8*i*3072 - 1024*i}, v8")
    for c in range(5, 12):
        vm.wait(f"c{c}")
        a("s_barrier")
        if c in (8, 11): stamp(a, {8:4, 11:5}[c])
        if c + 3 < 12: issue2(c + 3)
        if c == 5:
            for i in range(5):
                a(f"v_add_u32 v8, {64*i}, v2")
                a("v_mul_u32_u24 v9, 205, v8")
                a("v_lshrrev_b32 v9, 10, v9")
                a("v_mul_u32_u24 v11, 5, v9")
                a("v_sub_u32 v8, v8, v11")
                a("v_min_u32 v8, 3, v8")
                a("v_lshlrev_b32 v8, 4, v8")
                a(f"v_lshl_add_u32 v{VXR+i}, v9, 6, v8")
            a("v_lshlrev_b32 v12, 3, v2")
            a("v_mov_b32 v13, 0")
            for i in range(4): a(f"v_mov_b32 v{56+i}, 0")
        if c == 6:
            for q in range(2):
                a(f"v_add_u32 v8, {L_XR[q]}, v3")
                a("ds_write_b128 v8, v[56:59] offset:5120")
                a("ds_write_b128 v8, v[56:59] offset:6144")
                a("s_mov_b32 exec_hi, 0")
                a("ds_write_b128 v8, v[56:59] offset:7168")
                a("s_mov_b64 exec, -1")
        if c == H_AT:
            srd(a, 32, P_SSMK, 512*2048*2)
            a("s_lshl_b32 s64, s48, 5")
            a("s_add_u32 s64, s64, s49")
            a("s_lshl_b32 s64, s64, 13")
            for cp in range(2):
                for q in range(2):
                    a(f"s_mov_b32 m0, {(L_HO if cp else L_HE)[q]}")
                    a(f"s_add_u32 s65, s64, {4096*q + 2*cp}")
                    for i in range(4):
                        vm.op(f"buffer_load_dwordx4 v3, s[32:35], s65 offen offset:{1024*i} lds", "h")
        if c == F0_AT + 2:
            a(f"v_mov_b32 v8, {L_MISC}")
            a("ds_read_b64 v[14:15], v8")
            a("s_waitcnt lgkmcnt(0)")
            a("v_readfirstlane_b32 s60, v14")
            a("v_readfirstlane_b32 s61, v15")
    vm.ops = []
    poll(a, 0, 48, 12, 60)
    stamp(a, 6)
    a("s_lshl_b32 s64, s48, 5")
    a("s_add_u32 s64, s64, s49")
    a("s_lshl_b32 s64, s64, 13")
    a(f"s_add_u32 s64, s64, {WS_XR}")
    for q in range(2):
        for i in range(5):
            a(f"s_mov_b32 m0, {L_XR[q] + 1024*i}")
            a("s_nop 0")
            a(f"buffer_load_dwordx4 v{VXR+i}, {WS}, s64 offen sc1 lds")
        if q == 0: a("s_add_u32 s64, s64, 4096")
    a("s_waitcnt vmcnt(0) lgkmcnt(0)")
    a("s_barrier")
    a("s_barrier")
    publish(a, 1, 52, 53, 13, 14)
    stamp(a, 7)
    a("s_barrier")
    poll(a, 1, 48, 12, 60)
    stamp(a, 8)
    a("s_lshl_b32 s64, s54, 6")
    a("s_lshl_b32 s65, s51, 3")
    a("s_add_u32 s64, s64, s65")
    a("s_lshl_b32 s64, s64, 10")
    a(f"s_add_u32 s64, s64, {WS_QF}")
    a("s_lshl_b32 s65, s54, 17")
    a(f"s_add_u32 s65, s65, {WS_KV}")
    def lin(ldsb, sreg, n4, tag, sc="sc1", srdr=WS):
        for g in range(n4):
            a(f"s_mov_b32 m0, {ldsb + 4096*g}")
            a("s_nop 0")
            for i in range(4):
                vm.op(f"buffer_load_dwordx4 v3, {srdr}, s{sreg} offen offset:{1024*i} {sc} lds", tag)
            a(f"s_add_u32 s{sreg}, s{sreg}, 4096")
    lin(L_Q, 64, 2, "q")
    lin(0, 65, 3, "k0")
    lin(12288, 65, 6, "k1")
    vm.wait("k0")
    a("s_barrier")
    stamp(a, 9)
    lin(36864, 65, 5, "k2")
    vm.wait("k1")
    a("s_barrier")
    publish(a, 2, 48, 49, 13, 14)
    vm.ops.append("f2")
    lin(57344, 65, 9, "k3")
    vm.wait("k2")
    lin(94208, 65, 9, "k4")
    vm.wait_all()
    a("s_barrier")
    stamp(a, 10)
    poll(a, 2, 48, 12, 60)
    a("s_lshl_b32 s64, s48, 18")
    a("s_lshl_b32 s65, s49, 7")
    a("s_add_u32 s64, s64, s65")
    a(f"s_add_u32 s64, s64, {WS_ZT}")
    for i in range(8):
        a(f"v_xor_b32 v8, {i}, v6")
        a("v_lshlrev_b32 v8, 4, v8")
        a("v_lshl_add_u32 v8, v4, 12, v8")
        a(f"s_mov_b32 m0, {L_Z + 1024*i}")
        a("s_nop 0")
        a(f"buffer_load_dwordx4 v8, {WS}, s64 offen sc1 lds")
        a("s_add_u32 s64, s64, 32768")
    a("""
    v_bfe_u32 v7, v2, 2, 2
    v_xor_b32 v7, v7, v5
    v_lshlrev_b32 v8, 10, v5
    v_lshl_add_u32 v8, v7, 6, v8
    v_and_b32 v9, 3, v2
    v_lshl_add_u32 v8, v9, 4, v8
    """)
    for i in range(4):
        a(f"v_add_u32 v{VW+i}, {4*i*1024 - 1024*i}, v8")
    a("s_lshl_b32 s66, s50, 8")
    a("s_lshl_b32 s67, s51, 16")
    a("s_add_u32 s67, s67, s66")
    for g in range(4):
        for i in range(4):
            a(f"buffer_load_dwordx4 v[64:67], v{VW+i}, s[40:43], s67 offen offset:{1024*i}")
        a("s_add_u32 s67, s67, 16384")
    a("s_waitcnt vmcnt(0)")
    a("s_barrier")
    a("s_barrier")
    publish(a, 3, 51, 54, 13, 14)
    stamp(a, 11)
    a(f"s_mov_b32 s67, {L_WO}")
    a.label("WOL")
    for g in range(4):
        a("s_mov_b32 m0, s67")
        a("s_add_u32 s67, s67, 4096")
        for i in range(4):
            a(f"buffer_load_dwordx4 v{VW+i}, s[40:43], s66 offen offset:{1024*i} lds")
        a("s_add_u32 s66, s66, 16384")
    a(f"s_cmp_lt_u32 s67, {L_WO + 131072}")
    a("s_cbranch_scc1 WOL")
    a("s_waitcnt vmcnt(0)")
    a("s_barrier")
    poll(a, 3, 48, 12, 60)
    stamp(a, 12)
    vm.ops = []
    a("s_lshl_b32 s64, s48, 3")
    a("s_add_u32 s64, s64, s51")
    a("s_lshl_b32 s64, s64, 15")
    a(f"s_add_u32 s64, s64, {WS_OF}")
    for n, g in enumerate((0, 4, 1, 5, 2, 6, 3, 7)):
        a(f"s_mov_b32 m0, {L_O + 4096*g}")
        a(f"s_add_u32 s65, s64, {4096*g}")
        for i in range(4):
            vm.op(f"buffer_load_dwordx4 v3, {WS}, s65 offen offset:{1024*i} sc1 lds", "o0" if n < 4 else "o1")
    vm.wait("o0")
    a("s_barrier")
    vm.wait_all()
    a("s_barrier")
    stamp(a, 13)
    a("s_barrier")
    endpgm(a)

def main():
    ref = open(f"cdna_kernels/{NAME}.s.ref").read().split("\n")
    hdr = []
    for line in ref:
        if line.startswith(";") and "@launch" not in line: hdr.append(line)
        elif not line.startswith(";"): break
    a = Asm()
    gen(a)
    b = Asm()
    gen_loader(b)
    b.label("END")
    b("s_endpgm")
    b.label("CODE_END")
    l1, l2 = b.text().split("@@SPLIT@@\n")
    txt = a.text().replace("@@LOADER1@@\n", l1) + l2
    txt = txt.replace("    s_mov_b32 s68, 0\n", f"    s_mov_b32 s68, 0\n    s_mov_b32 s69, {(1<<1)|(1<<4)|(1<<12)}\n", 1)
    out = "\n".join(hdr) + "\n"
    out += f"; @launch grid=(256,1,1) block=(576,1,1) lds={L_TOTAL}\n"
    out += '.amdgcn_target "amdgcn-amd-amdhsa--gfx950"\n.text\n'
    out += txt
    out += f""".section .rodata,"a"
.p2align 6
.amdhsa_kernel {KN}
  .amdhsa_next_free_vgpr 128
  .amdhsa_next_free_sgpr 96
  .amdhsa_accum_offset 128
  .amdhsa_group_segment_fixed_size 0
  .amdhsa_kernarg_size 96
  .amdhsa_user_sgpr_count 2
  .amdhsa_user_sgpr_kernarg_segment_ptr 1
  .amdhsa_system_sgpr_workgroup_id_x 1
  .amdhsa_float_denorm_mode_32 3
.end_amdhsa_kernel
"""
    dst = sys.argv[1] if len(sys.argv) > 1 else f"cdna_kernels/{NAME}.s"
    open(dst, "w").write(out)

if __name__ == "__main__":
    main()
```

```python
import sys, math, struct, os

NAME = "concat_heads__ssm_conv_h3__softmax_full_mha__prompt"
KN = NAME + "_kernel"
STAMP = int(os.environ.get("STAMP", "0"))
DBGT = int(os.environ.get("DBGT", "0"))
DIAG = int(os.environ.get("DIAG", "0"))

WS_QF  = 0
WS_KV  = 2 << 20
WS_OF  = 6 << 20
WS_XR  = 8 << 20
WS_ZT  = 10 << 20
WS_FL  = 12 << 20
WS_WOF = 13 << 20
WS_ST  = 16 << 20
WS_SIZE = 18 << 20

L_X = 0; L_RING = 65536
L_CONV = 131072
L_XR = [L_CONV, L_CONV + 7680]
L_HE = [L_CONV + 15360 + 64, L_CONV + 15360 + 8324 + 64]
L_HO = [L_HE[0] + 4096 + 68, L_HE[1] + 4096 + 68]
L_TOTAL = 163840
L_MISC = L_CONV + 15360 + 2*8324
L_Q = 57344
L_Z = L_CONV
L_O = 0
L_RED = 65536
L_A1 = 40960
L_A1S = L_CONV
L_WT = L_CONV + 8192

def f32bits(x): return struct.unpack("<I", struct.pack("<f", x))[0]

class Asm:
    def __init__(self): self.l = []
    def __call__(self, s):
        for line in s.strip("\n").split("\n"):
            if line.strip(): self.l.append("    " + line.strip())
    def label(self, n): self.l.append(n + ":")
    def raw(self, s): self.l.append(s)
    def text(self): return "\n".join(self.l) + "\n"

class VM:
    def __init__(self, a): self.a = a; self.ops = []
    def op(self, s, tag): self.a(s); self.ops.append(tag)
    def wait(self, tag):
        idx = max(i for i, t in enumerate(self.ops) if t == tag)
        n = min(63, len(self.ops) - 1 - idx)
        self.a(f"s_waitcnt vmcnt({n})")
    def wait_all(self):
        self.a("s_waitcnt vmcnt(0)"); self.ops = []

def vr(b, n): return f"v[{b}:{b+n-1}]"
P_Q, P_K, P_V, P_SHK, P_SSMK, P_SSMD, P_X, P_WQKV, P_WO, P_OUT, P_DBG, P_WS = [4 + 2*i for i in range(12)]
def srd(a, d, ptr, size):
    a(f"s_mov_b32 s{d}, s{ptr}")
    a(f"s_and_b32 s{d+1}, s{ptr+1}, 0xffff")
    a(f"s_mov_b32 s{d+2}, {size}")
    a(f"s_mov_b32 s{d+3}, 0x00020000")
WS = "s[28:31]"

NST = 14
def stamp_begin(a):
    if STAMP:
        a("s_memrealtime s[72:73]")
        a("s_memtime s[76:77]")
def dstamp(a, k):
    if DIAG: stamp(a, k, True)
def stamp(a, k, d=False):
    if STAMP and (d or not DIAG or k == 0):
        a("s_memtime s[94:95]")
        a("s_waitcnt lgkmcnt(0)")
        a(f"s_sub_u32 s{80+k}, s94, s76")
def endpgm(a):
    if STAMP: a("s_branch STAMPOUT")
    else: a("s_endpgm")
def stampout(a):
    if STAMP:
        a.label("STAMPOUT")
        a("s_waitcnt vmcnt(0)")
        a("s_memrealtime s[74:75]")
        a("s_memtime s[78:79]")
        a("s_waitcnt lgkmcnt(0)")
        a("s_sub_u32 s78, s78, s76")
        a("s_mov_b64 exec, 1")
        a("v_mov_b32 v4, s72")
        a("v_mov_b32 v5, s74")
        a("v_mov_b32 v6, s78")
        for k in range(NST): a(f"v_mov_b32 v{7+k}, s{80+k}")
        a("s_lshl_b32 s76, s2, 4")
        a("s_add_u32 s76, s76, s3")
        a("s_lshl_b32 s76, s76, 7")
        a(f"s_add_u32 s76, s76, {WS_ST}")
        a("v_mov_b32 v30, 0")
        for k in range(5):
            a(f"buffer_store_dwordx4 v[{4+4*k}:{7+4*k}], v30, {WS}, s76 offen offset:{16*k}")
        a("s_endpgm")

_uid = [0]
def poll(a, stage, grp_sreg, mode=0, sleep=1):
    _uid[0] += 1; u = _uid[0]
    if mode == 3: a(f"s_mov_b32 s62, {WS_FL + stage*8192}")
    else:
        a(f"s_lshl_b32 s62, s{grp_sreg}, 10")
        a(f"s_add_u32 s62, s62, {WS_FL + stage*8192}")
    a("s_mov_b32 s63, 0")
    if mode == 0: a("s_mov_b32 exec_hi, 0")
    a.label(f"POLL{u}")
    if mode >= 2: a(f"buffer_load_dwordx4 v[60:63], v3, {WS}, s62 offen sc1")
    else:         a(f"buffer_load_dwordx2 v[60:61], v12, {WS}, s62 offen sc1")
    if mode == 3: a(f"buffer_load_dwordx4 v[64:67], v3, {WS}, s62 offen offset:1024 sc1")
    a("s_add_u32 s63, s63, 1")
    a("s_cmp_gt_u32 s63, 0x40000")
    a(f"s_cbranch_scc1 POLLX{u}")
    a("s_waitcnt vmcnt(0)")
    a("v_cmp_ne_u64 vcc, s[60:61], v[60:61]")
    if mode >= 2:
        for r in ([62] if mode == 2 else [62, 64, 66]):
            a(f"v_cmp_ne_u64 s[70:71], s[60:61], v[{r}:{r+1}]")
            a("s_or_b64 vcc, s[70:71], vcc")
        a(f"s_cbranch_scc0 POLLX{u}")
    else:
        a(f"s_cbranch_vccz POLLX{u}")
    a(f"s_sleep {sleep}")
    a(f"s_branch POLL{u}")
    a.label(f"POLLX{u}")
    a("s_mov_b64 exec, -1")

def publish(a, stage, grp_sreg, slot_sreg):
    a(f"s_lshl_b32 s62, s{slot_sreg}, 3")
    if grp_sreg is not None:
        a(f"s_lshl_b32 s63, s{grp_sreg}, 10")
        a("s_add_u32 s62, s62, s63")
    a(f"s_add_u32 s62, s62, {WS_FL + stage*8192}")
    a("s_mov_b64 exec, 1")
    a(f"buffer_store_dwordx2 v[14:15], v13, {WS}, s62 offen sc1")
    a("s_mov_b64 exec, -1")

def nonce_issue(a):
    a("buffer_load_dwordx2 v[14:15], v13, s[44:47], 0 offen sc1")
def nonce_get(a):
    _uid[0] += 1; u = _uid[0]
    a("s_mov_b32 s63, 0")
    a.label(f"NP{u}")
    a("v_cmp_ne_u32 vcc, 0, v14")
    a(f"s_cbranch_vccnz NPX{u}")
    a("s_add_u32 s63, s63, 1")
    a("s_cmp_gt_u32 s63, 0x40000")
    a(f"s_cbranch_scc1 NPX{u}")
    nonce_issue(a)
    a("s_waitcnt vmcnt(0)")
    a(f"s_branch NP{u}")
    a.label(f"NPX{u}")
    a("v_readfirstlane_b32 s60, v14")
    a("v_readfirstlane_b32 s61, v15")

def barriers(a, n):
    for _ in range(n): a("s_barrier")

VX = 16; VW = 20; VQ = 24; VO = 28

def gen_entry(a):
    a.raw(f".globl {KN}")
    a.raw(".p2align 10")
    a.raw(f".type {KN},@function")
    a.label(KN)
    a("s_cmp_ge_u32 s2, 256")
    a("s_cbranch_scc1 END")
    stamp_begin(a)
    if DBGT: a("s_memrealtime s[72:73]")
    a("s_load_dwordx16 s[4:19], s[0:1], 0")
    a("s_load_dwordx8 s[20:27], s[0:1], 64")
    a("""
    v_lshrrev_b32 v1, 6, v0
    v_and_b32 v2, 63, v0
    v_readfirstlane_b32 s3, v1
    v_lshlrev_b32 v3, 4, v2
    s_and_b32 s48, s2, 7
    s_lshr_b32 s49, s2, 3
    s_and_b32 s50, s49, 3
    s_lshr_b32 s51, s49, 2
    s_and_b32 s52, s48, 4
    s_add_u32 s52, s52, s50
    s_and_b32 s53, s48, 3
    s_lshl_b32 s53, s53, 3
    s_add_u32 s53, s53, s51
    s_lshl_b32 s54, s48, 2
    s_add_u32 s54, s54, s50
    s_lshl_b32 s55, s50, 1
    s_add_u32 s55, s55, s51
    s_and_b32 s55, s55, 7
    s_lshl_b32 s66, s48, 5
    s_add_u32 s66, s66, s49
    """)
    a("s_cmp_lt_u32 s3, 8")
    a("s_cbranch_scc1 CPATH")
    a("""
    v_lshrrev_b32 v4, 3, v2
    v_lshrrev_b32 v5, 4, v2
    v_and_b32 v6, 7, v2
    v_lshlrev_b32 v12, 3, v2
    v_mov_b32 v13, 0
    """)
    a("s_cmp_eq_u32 s3, 8")
    a("s_cbranch_scc1 LOADER")
    a("s_cmp_lg_u32 s3, 9")
    a("s_cbranch_scc1 HPATH")
    a("s_getpc_b64 s[56:57]")
    a("s_lshl_b32 s58, s50, 13")
    a("v_lshlrev_b32 v7, 7, v2")
    a("v_add_u32 v7, s58, v7")
    a(f"v_min_u32 v7, CODE_END - {KN} - 256, v7")
    a("global_load_dword v11, v7, s[56:57]")
    a("s_branch HPATH")

def gen_loader1(a):
    a.label("LOADER")
    a("v_xor_b32 v7, v6, v5")
    a("v_lshlrev_b32 v7, 4, v7")
    a(f"v_lshl_add_u32 v{VX}, v4, 10, v7")
    a(f"v_xor_b32 v{VX+1}, 64, v{VX}")
    a(f"v_add_u32 v{VX+1}, {8192-1024}, v{VX+1}")
    a(f"v_add_u32 v{VX+2}, {2*(8192-1024)}, v{VX}")
    a(f"v_add_u32 v{VX+3}, {2*(8192-1024)}, v{VX+1}")
    a("""
    v_bfe_u32 v7, v2, 2, 2
    v_xor_b32 v7, v7, v5
    v_mul_u32_u24 v8, 3072, v5
    v_lshrrev_b32 v9, 1, v7
    v_lshl_add_u32 v8, v9, 10, v8
    v_and_b32 v9, 1, v7
    v_lshl_add_u32 v8, v9, 6, v8
    v_and_b32 v9, 3, v2
    """)
    a(f"v_lshl_add_u32 v{VW}, v9, 4, v8")
    for i in range(1, 4):
        a(f"v_add_u32 v{VW+i}, {4*3072 - 1024}, v{VW+i-1}")
    a("""
    v_lshlrev_b32 v10, 4, v6
    v_lshl_add_u32 v10, v4, 10, v10
    s_lshl_b32 s56, s49, 16
    s_lshl_b32 s57, s48, 7
    s_add_u32 s56, s56, s57
    v_add_u32 v11, s56, v10
    v_subrev_u32 v10, 8192, v11
    s_lshl_b32 s62, s48, 9
    s_lshl_b32 s57, s53, 16
    s_lshl_b32 s58, s52, 7
    s_mov_b32 s59, s55
    s_mov_b32 s56, 0
    s_waitcnt lgkmcnt(0)
    """)
    stamp(a, 0)
    srd(a, 40, P_K, 2048*512*2)
    srd(a, 44, P_V, 2048*512*2)
    a(f"s_mov_b32 m0, {L_A1}")
    a("s_mov_b32 s63, 0")
    a("buffer_load_dwordx4 v10, s[40:43], 0 offen lds")
    a.label("LDA")
    a("s_add_u32 m0, m0, 1024")
    a("s_add_u32 s64, m0, 8192")
    a("buffer_load_dwordx4 v11, s[40:43], s63 offen lds")
    a("s_mov_b32 m0, s64")
    a("s_nop 0")
    a("buffer_load_dwordx4 v11, s[44:47], s63 offen lds")
    a("s_sub_u32 m0, m0, 8192")
    a("s_add_u32 s63, s63, 8192")
    a("s_cmp_lt_u32 s63, 65536")
    a("s_cbranch_scc1 LDA")
    srd(a, 40, P_SHK, 512*4*2)
    a(f"s_mov_b32 m0, {L_A1 + 17408}")
    a("s_mov_b32 exec_hi, 0")
    a("buffer_load_dwordx4 v3, s[40:43], s62 offen lds")
    a("s_mov_b64 exec, -1")
    srd(a, 32, P_X, 2048*512*2)
    srd(a, 36, P_WQKV, 512*1536*2)
    a("s_branch LD1B")
    a.label("LD1")
    a("s_cmp_eq_u32 s56, 2")
    a("s_cbranch_scc1 LD1B")
    a("s_cmp_eq_u32 s56, 3")
    a("s_cbranch_scc1 LDGATH")
    a("s_cmp_eq_u32 s56, 1")
    a("s_cbranch_scc0 LD1C")
    a("s_waitcnt vmcnt(24)")
    a.label("LD1C")
    a("s_cmp_lt_u32 s56, 6")
    a("s_cbranch_scc1 LD1D")
    a("s_waitcnt vmcnt(48)")
    a.label("LD1D")
    a(f"s_waitcnt vmcnt({48 + NG})")
    a("s_barrier")
    a.label("LD1B")
    a("s_lshl_b32 s67, s56, 13")
    a("s_mov_b32 m0, s67")
    a("s_lshl_b32 s64, s59, 7")
    a("s_add_u32 s64, s64, s57")
    for i in range(4): a(f"buffer_load_dwordx4 v{VX+i}, s[32:35], s64 offen offset:{1024*i} lds")
    a("s_add_u32 m0, s67, 4096")
    a("s_add_u32 s64, s64, 32768")
    for i in range(4): a(f"buffer_load_dwordx4 v{VX+i}, s[32:35], s64 offen offset:{1024*i} lds")
    a("s_and_b32 s67, s56, 3")
    a("s_lshl_b32 s67, s67, 14")
    a(f"s_add_u32 m0, s67, {L_RING}")
    a(f"s_mul_i32 s65, s59, {64*3072}")
    a("s_add_u32 s65, s65, s58")
    a("s_add_u32 s65, s65, 1024")
    for G in range(4):
        if G:
            a("s_add_u32 m0, m0, 4096")
            a(f"s_add_u32 s65, s65, {16*3072}")
        for i in range(4): a(f"buffer_load_dwordx4 v{VW+i}, s[36:39], s65 offen offset:{1024*i} lds")
    a("s_cmp_eq_u32 s56, 3")
    a("s_addc_u32 s59, s59, 2")
    a("s_and_b32 s59, s59, 7")
    a("s_add_u32 s56, s56, 1")
    a("s_cmp_lt_u32 s56, 8")
    a("s_cbranch_scc1 LD1")
    a("s_branch LOADER2")

def order(c): return 2*c + (1 if c >= 4 else 0)

def gen_loader2(a):
    vm = VM(a)
    a.label("LDGATH")
    srd(a, 40, P_SSMK, 512*2048*2)
    a("""
    s_add_u32 s64, s55, 1
    s_and_b32 s64, s64, 7
    s_lshl_b32 s64, s64, 7
    s_add_u32 s64, s64, s57
    v_lshlrev_b32 v8, 10, v2
    buffer_load_dword v11, v8, s[32:35], s64 offen
    v_mul_u32_u24 v8, 3072, v2
    """)
    a(f"s_mul_i32 s64, s55, {64*3072}")
    a("""
    s_add_u32 s64, s64, s58
    buffer_load_dword v11, v8, s[36:39], s64 offen
    v_lshlrev_b32 v8, 7, v2
    s_lshl_b32 s64, s66, 13
    buffer_load_dword v11, v8, s[40:43], s64 offen
    s_branch LD1D
    """)
    a.label("LOADER2")
    stamp(a, 2)
    for c in (5, 6, 7): vm.ops += [f"c{c}"]*24
    srd(a, 28, P_WS, WS_SIZE)
    srd(a, 44, P_DBG, 256)
    a("""
    v_bfe_u32 v10, v2, 4, 1
    v_lshlrev_b32 v10, 2, v10
    v_xor_b32 v10, v10, v6
    v_lshlrev_b32 v10, 4, v10
    v_mul_u32_u24 v8, 3072, v4
    """)
    a(f"v_add_u32 v{VQ}, v8, v10")
    for i in range(1, 4): a(f"v_add_u32 v{VQ+i}, {8*3072 - 1024}, v{VQ+i-1}")
    def issue2(c):
        j = c - 8
        for hf in range(2):
            a(f"s_add_u32 s59, s55, {order(2*j + hf)}")
            a("s_and_b32 s59, s59, 7")
            a(f"s_mul_i32 s65, s59, {64*3072}")
            a("s_add_u32 s65, s65, s58")
            for g in range(2):
                a(f"s_mov_b32 m0, {L_RING + (c&3)*16384 + hf*8192 + g*4096}")
                a(f"s_add_u32 s65, s65, {32*3072*g}")
                for i in range(4):
                    vm.op(f"buffer_load_dwordx4 v{VQ+i}, s[36:39], s65 offen offset:{1024*i} lds", f"c{c}")
    for c in range(5, 12):
        vm.wait(f"c{c}")
        a("s_barrier")
        if c in (8, 11): stamp(a, {8:4, 11:5}[c])
        if c + 3 < 12: issue2(c + 3)
        if c == 8:
            vm.op("buffer_load_dwordx2 v[14:15], v13, s[44:47], 0 offen sc1", "n")
    vm.wait_all()
    nonce_get(a)
    stamp(a, 6)
    a("s_barrier")
    a("s_barrier")
    publish(a, 1, 52, 53)
    stamp(a, 7)
    poll(a, 1, 48)
    stamp(a, 8)
    a("s_lshl_b32 s64, s54, 6")
    a("s_lshl_b32 s65, s51, 3")
    a("s_add_u32 s64, s64, s65")
    a("s_lshl_b32 s64, s64, 10")
    a(f"s_add_u32 s64, s64, {WS_QF}")
    a("s_lshl_b32 s65, s54, 17")
    a(f"s_add_u32 s65, s65, {WS_KV}")
    def linloop(ldsb, sreg, n4, lab):
        a(f"s_mov_b32 m0, {ldsb}")
        a("s_nop 0")
        a.label(lab)
        for i in range(4):
            a(f"buffer_load_dwordx4 v3, {WS}, s{sreg} offen offset:{1024*i} sc1 lds")
        a("s_add_u32 m0, m0, 4096")
        a(f"s_add_u32 s{sreg}, s{sreg}, 4096")
        a(f"s_cmp_lt_u32 m0, {ldsb + 4096*n4}")
        a(f"s_cbranch_scc1 {lab}")
    linloop(L_Q, 64, 2, "KVL0")
    linloop(0, 65, 9, "KVL1")
    a("s_waitcnt vmcnt(24)")
    a("s_barrier")
    stamp(a, 9)
    linloop(36864, 65, 5, "KVL2")
    a("s_waitcnt vmcnt(20)")
    a("s_barrier")
    linloop(57344, 65, 18, "KVL3")
    a("s_waitcnt vmcnt(0)")
    a("s_barrier")
    stamp(a, 10)
    a("s_barrier")
    publish(a, 3, 51, 54)
    stamp(a, 11)
    poll(a, 3, 48)
    stamp(a, 12)
    vm.ops = []
    a("s_lshl_b32 s64, s48, 3")
    a("s_add_u32 s64, s64, s51")
    a("s_lshl_b32 s64, s64, 15")
    a(f"s_add_u32 s64, s64, {WS_OF}")
    for n, g in enumerate((0, 4, 1, 5, 2, 6, 3, 7)):
        a(f"s_mov_b32 m0, {L_O + 4096*g}")
        a(f"s_add_u32 s65, s64, {4096*g}")
        for i in range(4):
            vm.op(f"buffer_load_dwordx4 v3, {WS}, s65 offen offset:{1024*i} sc1 lds", "o0" if n < 4 else "o1")
    vm.wait("o0")
    a("s_barrier")
    vm.wait_all()
    a("s_barrier")
    stamp(a, 13)
    endpgm(a)

def gen_helpers(a):
    a.label("HPATH")
    a("s_memrealtime s[60:61]")
    a("s_waitcnt lgkmcnt(0)")
    stamp(a, 0)
    srd(a, 28, P_WS, WS_SIZE)
    srd(a, 44, P_DBG, 256)
    a("s_cmp_eq_u32 s3, 10")
    a("s_cbranch_scc1 H10")
    a("s_cmp_eq_u32 s3, 9")
    a("s_cbranch_scc1 H9")
    a("s_cmp_lg_u32 s2, 0")
    a("s_cbranch_scc1 H11_NN")
    a("s_or_b32 s60, s60, 1")
    a("v_mov_b32 v14, s60")
    a("v_mov_b32 v15, s61")
    a("s_mov_b64 exec, 1")
    a("buffer_store_dwordx2 v[14:15], v13, s[44:47], 0 offen sc1")
    a("s_mov_b64 exec, -1")
    a.label("H11_NN")
    a("s_branch HX")
    a.label("H9")
    a.label("HX")
    a("""
    s_bfe_u32 s64, s3, 0x10001
    s_lshl_b32 s65, s64, 12
    v_add_u32 v19, s65, v3
    v_xor_b32 v20, v6, v5
    v_lshlrev_b32 v20, 4, v20
    v_lshl_add_u32 v20, v4, 12, v20
    v_xor_b32 v21, 64, v20
    s_lshl_b32 s67, s48, 18
    s_lshl_b32 s65, s64, 17
    s_add_u32 s67, s67, s65
    s_sub_u32 s65, 31, s49
    s_lshl_b32 s65, s65, 7
    s_add_u32 s67, s67, s65
    s_lshl_b32 s68, s49, 1
    s_add_u32 s68, s68, s64
    """)
    a(f"v_add_u32 v19, {L_A1S}, v19")
    a(f"s_add_u32 s67, s67, {WS_XR}")
    a("s_barrier")
    for n in range(12):
        a("s_barrier")
        if n == 0:
            for i in range(4): a(f"ds_read_b128 {vr(28+4*i,4)}, v19 offset:{1024*i}")
            for i in range(4):
                a(f"s_waitcnt lgkmcnt({3-i})")
                a(f"buffer_store_dwordx4 {vr(28+4*i,4)}, v{20 + (i&1)}, {WS}, s67 offen sc1")
                a("s_add_u32 s67, s67, 32768")
            nonce_issue(a)
        if n == F0_AT:
            a("s_waitcnt vmcnt(0)")
            nonce_get(a)
            publish(a, 0, 48, 68)
            stamp(a, 1)
            a("s_cmp_eq_u32 s3, 9")
            a("s_cbranch_scc1 HEND")
    srd(a, 40, P_WO, 512*512*2)
    a("""
    v_lshlrev_b32 v16, 10, v4
    v_lshl_add_u32 v16, v6, 4, v16
    s_lshl_b32 s56, s49, 14
    s_lshl_b32 s57, s48, 7
    s_add_u32 s56, s56, s57
    s_add_u32 s57, s56, 7168
    v_lshrrev_b32 v17, 5, v2
    v_bfe_u32 v18, v2, 2, 2
    v_lshl_add_u32 v17, v17, 2, v18
    v_lshlrev_b32 v17, 7, v17
    v_bfe_u32 v18, v2, 4, 1
    v_lshl_add_u32 v17, v18, 5, v17
    v_and_b32 v18, 3, v2
    v_lshl_add_u32 v17, v18, 3, v17
    s_lshl_b32 s58, s48, 16
    s_lshl_b32 s59, s49, 10
    s_add_u32 s58, s58, s59
    """)
    a(f"v_add_u32 v17, {L_WT}, v17")
    a(f"s_add_u32 s58, s58, {WS_WOF}")
    a("s_add_u32 s59, s58, 32768")
    a(f"s_mov_b32 m0, {L_WT}")
    barriers(a, 4)
    a("buffer_load_dwordx4 v16, s[40:43], s56 offen lds")
    a("buffer_load_dwordx4 v16, s[40:43], s57 offen offset:1024 lds")
    a("s_waitcnt vmcnt(0)")
    a("ds_read_b64_tr_b16 v[20:21], v17")
    a("ds_read_b64_tr_b16 v[22:23], v17 offset:1024")
    a("ds_read_b64_tr_b16 v[24:25], v17 offset:64")
    a("ds_read_b64_tr_b16 v[26:27], v17 offset:1088")
    a("s_waitcnt lgkmcnt(0)")
    a(f"buffer_store_dwordx4 v[20:23], v3, {WS}, s58 offen sc1")
    a(f"buffer_store_dwordx4 v[24:27], v3, {WS}, s59 offen sc1")
    a("s_barrier")
    a("s_waitcnt vmcnt(0)")
    publish(a, 4, None, 2)
    stamp(a, 2)
    endpgm(a)
    a.label("H10")
    srd(a, 32, P_SSMK, 512*2048*2)
    VXR = 48
    for i in range(5):
        a(f"v_add_u32 v8, {64*i}, v2")
        a("v_mul_u32_u24 v9, 205, v8")
        a("v_lshrrev_b32 v9, 10, v9")
        a("v_mul_u32_u24 v11, 5, v9")
        a("v_sub_u32 v8, v8, v11")
        a("v_min_u32 v8, 3, v8")
        a("v_lshlrev_b32 v8, 4, v8")
        a(f"v_lshl_add_u32 v{VXR+i}, v9, 6, v8")
    for i in range(4): a(f"v_mov_b32 v{56+i}, 0")
    a("s_lshl_b32 s64, s66, 13")
    a(f"v_mov_b32 v8, {L_MISC}")
    a("ds_write_b64 v8, v[56:57]")
    barriers(a, 6)
    nonce_issue(a)
    a(f"s_load_dword s67, s[{P_SSMK}:{P_SSMK+1}], s64")
    a("s_add_u32 s65, s64, 4096")
    a(f"s_load_dword s68, s[{P_SSMK}:{P_SSMK+1}], s65")
    for q in range(2):
        a(f"v_add_u32 v8, {L_XR[q]}, v3")
        a("ds_write_b128 v8, v[56:59] offset:5120")
        a("ds_write_b128 v8, v[56:59] offset:6144")
        a("s_mov_b32 exec_hi, 0")
        a("ds_write_b128 v8, v[56:59] offset:7168")
        a("s_mov_b64 exec, -1")
    barriers(a, H_AT - 4)
    for cp in range(2):
        for q in range(2):
            a(f"s_mov_b32 m0, {(L_HO if cp else L_HE)[q]}")
            a(f"s_add_u32 s65, s64, {4096*q + 2*cp}")
            for i in range(4):
                a(f"buffer_load_dwordx4 v3, s[32:35], s65 offen offset:{1024*i} lds")
    a("s_waitcnt lgkmcnt(0)")
    a("s_lshl_b32 s67, s67, 16")
    a("s_lshl_b32 s68, s68, 16")
    a("v_mov_b32 v9, 0")
    a("v_mov_b32 v10, 0")
    a("v_writelane_b32 v9, s67, 15")
    a("v_writelane_b32 v10, s68, 15")
    a("v_lshlrev_b32 v8, 2, v2")
    a(f"v_add_u32 v8, {L_HE[0] - 64}, v8")
    a("s_mov_b64 exec, 0xffff")
    a("ds_write_b32 v8, v56")
    a(f"ds_write_b32 v8, v9 offset:{L_HO[0] - L_HE[0]}")
    a(f"ds_write_b32 v8, v56 offset:{L_HE[1] - L_HE[0]}")
    a(f"ds_write_b32 v8, v10 offset:{L_HO[1] - L_HE[0]}")
    a("s_mov_b64 exec, -1")
    a("s_waitcnt vmcnt(16)")
    nonce_get(a)
    barriers(a, 11 - H_AT)
    poll(a, 0, 48, mode=1)
    stamp(a, 1)
    a(f"s_add_u32 s64, s64, {WS_XR}")
    for q in range(2):
        for i in range(5):
            a(f"s_mov_b32 m0, {L_XR[q] + 1024*i}")
            a("s_nop 0")
            a(f"buffer_load_dwordx4 v{VXR+i}, {WS}, s64 offen sc1 lds")
        if q == 0: a("s_add_u32 s64, s64, 4096")
    a("s_waitcnt vmcnt(0) lgkmcnt(0)")
    stamp(a, 2)
    barriers(a, 4)
    publish(a, 2, 48, 49)
    a("s_barrier")
    poll(a, 2, 48, sleep=4)
    a("s_lshl_b32 s64, s48, 18")
    a("s_lshl_b32 s65, s49, 7")
    a("s_add_u32 s64, s64, s65")
    a(f"s_add_u32 s64, s64, {WS_ZT}")
    for i in range(8):
        a(f"v_xor_b32 v8, {i}, v6")
        a("v_lshlrev_b32 v8, 4, v8")
        a("v_lshl_add_u32 v8, v4, 12, v8")
        a(f"s_mov_b32 m0, {L_Z + 1024*i}")
        a("s_nop 0")
        a(f"buffer_load_dwordx4 v8, {WS}, s64 offen sc1 lds")
        a("s_add_u32 s64, s64, 32768")
    poll(a, 4, None, mode=3, sleep=4)
    a("v_lshlrev_b32 v8, 7, v2")
    a("s_lshl_b32 s64, s49, 14")
    a(f"s_add_u32 s64, s64, {WS_WOF}")
    a(f"buffer_load_dword v11, v8, {WS}, s64 offen sc1")
    a("s_add_u32 s64, s64, 8192")
    a(f"buffer_load_dword v11, v8, {WS}, s64 offen sc1")
    a("s_waitcnt vmcnt(0)")
    stamp(a, 4)
    a.label("HEND")
    endpgm(a)
def s_h(): return False

def gen_compute(a):
    a.raw(".p2align 10")
    a.label("CPATH")
    a("""
    v_and_b32 v4, 31, v2
    v_lshrrev_b32 v5, 5, v2
    v_bfe_u32 v63, v2, 1, 3
    v_xor_b32 v63, v63, v5
    s_and_b32 s56, s3, 1
    s_lshl_b32 s56, s56, 12
    v_lshlrev_b32 v61, 7, v4
    v_add_u32 v61, s56, v61
    """)
    for st in range(4):
        a(f"v_xor_b32 v60, {2*st}, v63")
        a(f"v_lshl_add_u32 v{56+st}, v60, 4, v61")
    a("""
    v_bfe_u32 v61, v2, 2, 2
    v_lshl_add_u32 v62, v5, 3, v61
    v_lshlrev_b32 v60, 8, v62
    v_bfe_u32 v63, v2, 4, 1
    v_lshl_add_u32 v60, v63, 5, v60
    v_and_b32 v63, 3, v2
    v_lshl_add_u32 v60, v63, 3, v60
    s_lshr_b32 s56, s3, 1
    v_xor_b32 v63, s56, v61
    v_lshl_add_u32 v60, v63, 6, v60
    """)
    a(f"v_add_u32 v60, {L_RING}, v60")
    for i in range(32): a(f"v_mov_b32 v{64+i}, 0")
    a("""
    s_lshl_b32 s56, s52, 2
    s_and_b32 s57, s3, 2
    s_add_u32 s56, s56, s57
    s_lshl_b32 s56, s56, 6
    s_lshl_b32 s57, s53, 1
    s_add_u32 s56, s56, s57
    s_and_b32 s57, s3, 1
    s_add_u32 s64, s56, s57
    s_lshl_b32 s56, s64, 11
    s_mov_b32 s59, 0xffff0000
    s_waitcnt lgkmcnt(0)
    """)
    stamp(a, 0)
    srd(a, 28, P_WS, WS_SIZE)
    srd(a, 32, P_Q, 2048*512*2)
    srd(a, 36, P_OUT, 2048*1024*2)
    a("""
    s_lshl_b32 s57, s3, 10
    v_lshlrev_b32 v10, 9, v5
    v_lshl_add_u32 v10, v4, 2, v10
    v_add_u32 v10, s57, v10
    v_lshlrev_b32 v11, 4, v4
    s_sub_u32 s57, 7, s3
    v_and_b32 v12, 7, v4
    v_xor_b32 v12, s57, v12
    v_lshlrev_b32 v12, 4, v12
    v_lshl_add_u32 v12, v4, 8, v12
    v_lshlrev_b32 v13, 3, v5
    v_sub_u32 v12, v12, v13
    """)
    a(f"v_add_u32 v12, {L_A1S + 8}, v12")
    def a1_compute():
        KR = 128; VR = 135; SK = 140; KF = 144; TAP = 152; KVv = 156; KS = 160; OUT = 164
        a(f"ds_read_b128 {vr(SK,4)}, v11 offset:{L_A1 + 17408}")
        for r in range(7): a(f"ds_read_b32 v{KR+r}, v10 offset:{L_A1 + (5+r)*128}")
        for r in range(4): a(f"ds_read_b32 v{VR+r}, v10 offset:{L_A1 + 9216 + r*128}")
        a("s_waitcnt lgkmcnt(0)")
        for c in range(2):
            def unpack(dst, src, hi):
                if hi: a(f"v_and_b32 v{dst}, s59, v{src}")
                else:  a(f"v_lshlrev_b32 v{dst}, 16, v{src}")
            for r in range(7): unpack(KF + r, KR + r, c)
            for j in range(4): unpack(TAP + j, SK + 2*c + (j >> 1), j & 1)
            for r in range(4): unpack(KVv + r, VR + r, c)
            for r in range(4): a(f"v_mul_f32 v{KS+r}, v{KF+r}, v{TAP+3}")
            for r in range(4): a(f"v_fmac_f32 v{KS+r}, v{KF+r+1}, v{TAP+2}")
            for r in range(4): a(f"v_fmac_f32 v{KS+r}, v{KF+r+2}, v{TAP+1}")
            for r in range(4): a(f"v_fmac_f32 v{KS+r}, v{KF+r+3}, v{TAP+0}")
            for r in range(4): a(f"v_mul_f32 v{KVv+r}, v{KVv+r}, v{KS+r}")
            o = OUT + 2*c
            a(f"v_cvt_pk_bf16_f32 v{o}, v{KVv+3}, v{KVv+2}")
            a(f"v_cvt_pk_bf16_f32 v{o+1}, v{KVv+1}, v{KVv}")
            a(f"ds_write_b64 v12, {vr(o,2)} offset:{128*c}")
    a("s_barrier")
    stamp(a, 1)
    dstamp(a, 13)
    a1_compute()
    a("s_waitcnt lgkmcnt(0)")
    a("s_cmp_ge_u32 s3, 4")
    a("s_cbranch_scc1 VPATH")
    FS = [16, 96]
    def p1_reads(c):
        xo = c*8192; wo = (c & 3)*16384
        for st in range(4):
            b = FS[c & 1] + 8*st
            a(f"ds_read_b128 {vr(b,4)}, v{56+st} offset:{xo}")
            a(f"ds_read_b64_tr_b16 {vr(b+4,2)}, v60 offset:{wo + 16*st*256}")
            a(f"ds_read_b64_tr_b16 {vr(b+6,2)}, v60 offset:{wo + (16*st+4)*256}")
    def p1_mfma(c, isv):
        for st in range(4):
            b = FS[c & 1] + 8*st
            x = vr(b,4); w = vr(b+4,4)
            if isv: a(f"v_mfma_f32_32x32x16_bf16 v[64:79], {x}, {w}, v[64:79]")
            else:   a(f"v_mfma_f32_32x32x16_bf16 v[64:79], {w}, {x}, v[64:79]")
    def pass1(isv):
        for c in range(8):
            a("s_barrier")
            dstamp(a, 1 + c)
            if c in (0, 4): stamp(a, 2 + c//4)
            p1_reads(c)
            if c: p1_mfma(c - 1, isv)
            a("s_waitcnt lgkmcnt(0)")
    a("""
    v_and_b32 v7, 0x33, v2
    v_bfe_u32 v6, v2, 2, 1
    v_lshl_or_b32 v7, v6, 3, v7
    v_bfe_u32 v6, v2, 3, 1
    v_lshl_or_b32 v7, v6, 2, v7
    v_lshlrev_b32 v7, 4, v7
    v_lshlrev_b32 v61, 7, v62
    v_bfe_u32 v63, v2, 4, 1
    v_lshl_add_u32 v61, v63, 5, v61
    v_and_b32 v63, 3, v2
    v_lshl_add_u32 v61, v63, 3, v61
    v_bfe_u32 v63, v2, 3, 1
    s_lshr_b32 s58, s3, 1
    v_xor_b32 v63, s58, v63
    v_lshl_add_u32 v61, v63, 6, v61
    """)
    a(f"v_add_u32 v61, {L_RING}, v61")
    a(f"s_add_u32 s56, s56, {WS_KV}")
    a("s_add_u32 s57, s56, 131072")
    pass1(False)
    def p2_regs(j, st):
        if j % 2 == 0: return (16 + 8*st) if st < 4 else (128 + 8*(st-4))
        return (96 + 8*st) if st < 4 else [48, 160, 64, 72][st-4]
    def p2_read1(j, st):
        wo = ((8 + j) & 3)*16384
        b = p2_regs(j, st)
        a(f"ds_read_b128 {vr(b,4)}, v{56+(st&3)} offset:{(2*j + (st>>2))*8192}")
        a(f"ds_read_b64_tr_b16 {vr(b+4,2)}, v61 offset:{wo + (16*st)*128}")
        a(f"ds_read_b64_tr_b16 {vr(b+6,2)}, v61 offset:{wo + (16*st + 4)*128}")
    def p2_mfma1(j, st):
        b = p2_regs(j, st)
        a(f"v_mfma_f32_32x32x16_bf16 v[80:95], {vr(b+4,4)}, {vr(b,4)}, v[80:95]")
    for j in range(4):
        a("s_barrier")
        dstamp(a, 9 + j)
        for st in range(5): p2_read1(j, st)
        if j == 0:
            p1_mfma(7, False)
            a("s_waitcnt lgkmcnt(6)")
            for st in range(5, 8): p2_read1(j, st)
            a("s_nop 2")
            for hh in range(2):
                for p in range(4):
                    a(f"v_cvt_pk_bf16_f32 v{8+4*hh+p}, v{64+8*hh+2*p}, v{64+8*hh+2*p+1}")
                a(f"buffer_store_dwordx4 {vr(8+4*hh,4)}, v7, {WS}, s{56+hh} offen sc1")
            stamp(a, 4)
        else:
            for st in range(4): p2_mfma1(j - 1, st)
            a("s_waitcnt lgkmcnt(6)")
            for st in range(5, 8): p2_read1(j, st)
            for st in range(4, 8): p2_mfma1(j - 1, st)
        if j < 3: a("s_waitcnt lgkmcnt(0)")
    for st in range(8):
        if st >= 3: a(f"s_waitcnt lgkmcnt({3*(7-st)})")
        p2_mfma1(3, st)
    qs = f32bits(0.25 * math.log2(math.e))
    a(f"s_mov_b32 s58, {qs:#x}")
    a("s_lshl_b32 s56, s64, 10")
    a(f"s_add_u32 s56, s56, {WS_QF}")
    a("s_add_u32 s57, s56, 65536")
    a("s_nop 9")
    for i in range(16): a(f"v_mul_f32 v{80+i}, s58, v{80+i}")
    for hh in range(2):
        for p in range(4):
            a(f"v_cvt_pk_bf16_f32 v{136+4*hh+p}, v{80+8*hh+2*p}, v{80+8*hh+2*p+1}")
        a(f"buffer_store_dwordx4 {vr(136+4*hh,4)}, v3, {WS}, s{56+hh} offen sc1")
    a("s_branch WIN1")

    a.label("VPATH")
    a("""
    v_bfe_u32 v7, v2, 4, 1
    v_lshlrev_b32 v7, 17, v7
    v_lshl_add_u32 v7, v5, 8, v7
    v_and_b32 v6, 15, v2
    v_lshl_add_u32 v7, v6, 4, v7
    """)
    a(f"s_add_u32 s56, s56, {WS_KV + 1024}")
    pass1(True)
    a("s_barrier")
    p1_mfma(7, True)
    a("s_nop 11")
    for j in range(2):
        for p in range(4):
            a(f"v_cvt_pk_bf16_f32 v{48+4*j+p}, v{64+8*j+2*p}, v{64+8*j+2*p+1}")
        a(f"buffer_store_dwordx4 {vr(48+4*j,4)}, v7, {WS}, s56 offen offset:{512*j} sc1")
    stamp(a, 4)
    barriers(a, 3)

    a.label("WIN1")
    WF = 104
    a("""
    s_lshr_b32 s64, s3, 2
    s_and_b32 s65, s3, 3
    s_lshl_b32 s67, s66, 2
    """)
    a(f"s_load_dword s68, s[{P_SSMD}:{P_SSMD+1}], s67")
    AL = 8; AH = 9; AB = 10
    a("""
    v_and_b32 v4, 31, v2
    v_lshrrev_b32 v5, 5, v2
    v_and_b32 v6, 1, v2
    """)
    a(f"v_mul_u32_u24 v6, {L_HO[0] - 64 - (L_HE[0] - 62)}, v6")
    a(f"v_sub_u32 v6, {L_HO[0] - 64}, v6")
    a("v_lshl_add_u32 v6, v4, 1, v6")
    a("v_lshl_add_u32 v6, v5, 4, v6")
    a("s_mul_i32 s56, s64, 8324")
    a("s_lshl_b32 s57, s65, 9")
    a("s_add_u32 s56, s56, s57")
    a(f"v_add_u32 v{AL}, s56, v6")
    a(f"v_add_u32 v{AH}, 2048, v{AL}")
    a("v_sub_u32 v6, 31, v4")
    a("v_mul_u32_u24 v6, 80, v6")
    a("v_lshl_add_u32 v6, v5, 4, v6")
    a("s_mul_i32 s56, s64, 7680")
    a("s_mul_i32 s57, s65, 640")
    a("s_add_u32 s56, s56, s57")
    a(f"s_add_u32 s56, s56, {L_XR[0]}")
    a(f"v_add_u32 v{AB}, s56, v6")
    C0 = 104; C1 = 120
    for i in range(32): a(f"v_mov_b32 v{C0+i}, 0")
    stamp(a, 5)
    a("s_waitcnt lgkmcnt(0)")
    a("s_barrier")
    stamp(a, 6)
    def creads(i):
        b = 16 + 16*(i & 1)
        a(f"ds_read2_b32 {vr(b,2)}, v{AL} offset0:{8*i} offset1:{8*i+1}")
        a(f"ds_read2_b32 {vr(b+2,2)}, v{AL} offset0:{8*i+2} offset1:{8*i+3}")
        a(f"ds_read_b128 {vr(b+8,4)}, v{AB} offset:{(i>>1)*80 + (i&1)*32 + 2560}")
        a(f"ds_read_b128 {vr(b+12,4)}, v{AB} offset:{(i>>1)*80 + (i&1)*32}")
        a(f"ds_read2_b32 {vr(b+4,2)}, v{AH} offset0:{8*i} offset1:{8*i+1}")
        a(f"ds_read2_b32 {vr(b+6,2)}, v{AH} offset0:{8*i+2} offset1:{8*i+3}")
    creads(0)
    for i in range(16):
        if i == CMID_AT:
            a("s_waitcnt vmcnt(0)")
            a("s_barrier")
        if i < 15: creads(i + 1)
        n = 6 if i < 15 else 0
        b = 16 + 16*(i & 1)
        a(f"s_waitcnt lgkmcnt({n+3})")
        a(f"v_mfma_f32_32x32x16_bf16 {vr(C0,16)}, {vr(b,4)}, {vr(b+8,4)}, {vr(C0,16)}")
        a(f"s_waitcnt lgkmcnt({n+2})")
        a(f"v_mfma_f32_32x32x16_bf16 {vr(C1,16)}, {vr(b,4)}, {vr(b+12,4)}, {vr(C1,16)}")
        a(f"s_waitcnt lgkmcnt({n})")
        a(f"v_mfma_f32_32x32x16_bf16 {vr(C1,16)}, {vr(b+4,4)}, {vr(b+8,4)}, {vr(C1,16)}")
    a("s_lshl_b32 s56, s3, 13")
    a(f"s_add_u32 s56, s56, {L_RED}")
    a("v_add_u32 v6, s56, v3")
    a("v_xor_b32 v7, 64, v6")
    a("v_xor_b32 v11, 128, v6")
    a("v_xor_b32 v12, 192, v6")
    a("""
    v_and_b32 v13, 3, v2
    v_lshrrev_b32 v14, 2, v2
    s_and_b32 s56, s65, 1
    s_lshl_b32 s56, s56, 4
    v_add_u32 v14, s56, v14
    v_lshlrev_b32 v15, 2, v13
    v_xor_b32 v14, v14, v15
    v_lshlrev_b32 v14, 4, v14
    v_lshl_add_u32 v14, v13, 10, v14
    s_lshr_b32 s56, s65, 1
    s_lshl_b32 s56, s56, 12
    s_lshl_b32 s57, s64, 15
    s_add_u32 s56, s56, s57
    """)
    a(f"s_add_u32 s56, s56, {L_RED}")
    a("v_add_u32 v14, s56, v14")
    for T in range(2):
        for j in range(4):
            a(f"ds_write_b128 v{[6,7,11,12][j]}, {vr(C0+16*T+4*j,4)} offset:{T*4096 + j*1024}")
    a("""
    s_lshl_b32 s56, s65, 6
    s_sub_u32 s56, 255, s56
    v_sub_u32 v15, s56, v2
    v_lshrrev_b32 v13, 2, v15
    v_mul_u32_u24 v13, 80, v13
    v_and_b32 v15, 3, v15
    v_lshl_add_u32 v13, v15, 4, v13
    s_mul_i32 s56, s64, 7680
    """)
    a(f"s_add_u32 s56, s56, {L_XR[0]}")
    a("v_add_u32 v13, s56, v13")
    a("ds_read_b128 v[48:51], v13")
    a("""
    s_lshl_b32 s56, s68, 16
    s_and_b32 s57, s68, 0xffff0000
    s_cmp_eq_u32 s64, 0
    s_cselect_b32 s58, s56, s57
    s_mov_b32 s59, 0xffff0000
    s_lshl_b32 s56, s66, 1
    s_add_u32 s56, s56, s64
    s_lshl_b32 s56, s56, 12
    s_lshl_b32 s57, s65, 10
    s_add_u32 s56, s56, s57
    """)
    a(f"s_add_u32 s56, s56, {WS_ZT}")
    a("s_lshl_b32 s57, s64, 2")
    a(f"s_add_u32 s57, s57, {L_MISC}")
    a("v_mov_b32 v60, s57")
    a("v_mov_b32 v61, 1")
    a("s_waitcnt lgkmcnt(0)")
    a("s_mov_b64 exec, 1")
    a("ds_add_u32 v60, v61")
    a.label("C1SPIN")
    a("ds_read_b32 v62, v60")
    a("s_waitcnt lgkmcnt(0)")
    a("v_cmp_gt_u32 vcc, 4, v62")
    a("s_cbranch_vccnz C1SPIN")
    a("s_mov_b64 exec, -1")
    stamp(a, 7)
    for src in range(4):
        a(f"ds_read_b128 {vr(16+8*src,4)}, v14 offset:{src*8192}")
        a(f"ds_read_b128 {vr(20+8*src,4)}, v14 offset:{src*8192 + 512}")
    for d in range(4):
        a(f"v_lshlrev_b32 v{52+7-2*d}, 16, v{48+d}")
        a(f"v_and_b32 v{52+6-2*d}, s59, v{48+d}")
    a("s_waitcnt lgkmcnt(4)")
    for i in range(8): a(f"v_add_f32 v{16+i}, v{16+i}, v{24+i}")
    a("s_waitcnt lgkmcnt(0)")
    for i in range(8): a(f"v_add_f32 v{32+i}, v{32+i}, v{40+i}")
    for i in range(8): a(f"v_fmac_f32 v{16+i}, s58, v{52+i}")
    for i in range(8): a(f"v_add_f32 v{16+i}, v{16+i}, v{32+i}")
    for i in range(4): a(f"v_cvt_pk_bf16_f32 v{100+i}, v{16+2*i}, v{17+2*i}")
    a(f"buffer_store_dwordx4 v[100:103], v3, {WS}, s56 offen sc1")

    a("""
    v_lshrrev_b32 v96, 3, v2
    v_and_b32 v97, 7, v2
    v_lshlrev_b32 v96, 10, v96
    v_lshl_add_u32 v96, v97, 4, v96
    s_lshl_b32 s64, s49, 16
    s_lshl_b32 s57, s3, 13
    s_add_u32 s64, s64, s57
    s_lshl_b32 s57, s48, 7
    s_add_u32 s64, s64, s57
    s_lshl_b32 s55, s50, 2
    s_and_b32 s57, s3, 3
    s_add_u32 s55, s55, s57
    s_lshl_b32 s55, s55, 15
    s_lshr_b32 s57, s3, 2
    s_lshl_b32 s57, s57, 14
    s_add_u32 s55, s55, s57
    """)
    a(f"s_add_u32 s55, s55, {WS_WOF}")
    Q = 4; KF = 8; V = 12; IDX = 28; AK = 29; AV = 30; S = 32; O = 64; NM = 80
    for i in range(16): a(f"v_mov_b32 v{NM+i}, 0")
    a("v_and_b32 v31, 27, v2")
    a("v_cmp_eq_u32 vcc, 16, v31")
    a("v_mov_b32 v31, 0x3f803f80")
    a(f"v_mov_b32 v{IDX}, 0xdddd")
    a(f"v_cndmask_b32 v{V}, 0, v31, vcc")
    for i in range(1, 16): a(f"v_mov_b32 v{V+i}, v{V}")
    a("s_mov_b32 s66, 0xffff")
    a("s_mov_b32 s67, 0xffff")
    a("s_mov_b32 s68, 0")
    a(f"s_mov_b32 s69, {(1<<1)|(1<<4)}")
    a("s_lshl_b32 s56, s3, 10")
    a(f"s_add_u32 s56, s56, {L_Q}")
    a(f"v_add_u32 v{S}, s56, v3")
    a.label("RUN")
    a(f"v_mov_b32 v{AK}, v3")
    a("v_and_b32 v31, 15, v2")
    a("v_lshlrev_b32 v31, 4, v31")
    a(f"v_lshrrev_b32 v{AV}, 5, v2")
    a(f"v_lshl_add_u32 v{AV}, v{AV}, 8, v31")
    a(f"v_add_u32 v{AV}, 1024, v{AV}")
    for i in range(16): a(f"v_mov_b32 v{O+i}, 0")
    for i in range(8): a(f"v_mov_b32 v{S+16+8+i}, 0")
    a("s_mov_b32 s65, 0")
    a("s_cmp_lg_u32 s68, 0")
    a("s_cbranch_scc1 RUN2")
    stamp(a, 8)
    a("s_barrier")
    stamp(a, 9)
    a(f"ds_read_b128 {vr(Q,4)}, v{S}")
    a.label("RUN2")
    a(f"ds_read_b128 {vr(KF,4)}, v3")
    a("s_mov_b64 exec, s[66:67]")
    a(f"ds_read_b128 {vr(V,4)}, v{AV}")
    a(f"ds_read_b128 {vr(V+4,4)}, v{AV} offset:512")
    a(f"ds_read_b128 {vr(V+12,4)}, v{AV} offset:512")
    a("s_mov_b64 exec, -1")
    a("s_waitcnt lgkmcnt(3)")
    a(f"v_mfma_f32_32x32x16_bf16 {vr(S,16)}, {vr(KF,4)}, {vr(Q,4)}, {vr(NM,16)}")
    a(f"ds_read_b128 {vr(KF,4)}, v{AK} offset:2048")
    a("s_waitcnt lgkmcnt(1)")
    a("s_nop 9")
    a.raw(".p2align 6")
    a.label("LOOP")
    U = 4
    for u in range(U):
        c = u & 1; p = c ^ 1
        Sc = S + 16*c; Sp = S + 16*p
        def ex(i): a(f"v_exp_f32 v{Sc+i}, v{Sc+i}")
        a(f"s_setprio {PRIOS[u]}")
        ex(0); ex(1)
        a(f"v_smfmac_f32_32x32x32_bf16 {vr(O,16)}, {vr(V+8*p+4,4)}, {vr(Sp+8,8)}, v{IDX}")
        ex(2); ex(3); ex(4)
        a("s_waitcnt lgkmcnt(0)")
        a(f"v_mfma_f32_32x32x16_bf16 {vr(Sp,16)}, {vr(KF,4)}, {vr(Q,4)}, {vr(NM,16)}")
        a(f"ds_read_b128 {vr(KF,4)}, v{AK} offset:{(u+2)*2048}")
        a("s_mov_b64 exec, s[66:67]")
        a(f"ds_read_b128 {vr(V+8*p,4)}, v{AV} offset:{(u+1)*2048}")
        a(f"ds_read_b128 {vr(V+8*p+4,4)}, v{AV} offset:{(u+1)*2048+512}")
        a("s_mov_b64 exec, -1")
        for i in range(5, 10): ex(i)
        a(f"v_smfmac_f32_32x32x32_bf16 {vr(O,16)}, {vr(V+8*c,4)}, {vr(Sc,8)}, v{IDX}")
        for i in range(10, 16): ex(i)
    a(f"v_add_u32 v{AK}, {U*2048}, v{AK}")
    a(f"v_add_u32 v{AV}, {U*2048}, v{AV}")
    a("s_add_u32 s65, s65, 1")
    a("s_bitcmp1_b32 s69, s65")
    a("s_cbranch_scc1 LOOPB")
    a(f"s_cmp_lt_u32 s65, {64//U}")
    a("s_cbranch_scc1 LOOP")
    a(f"v_smfmac_f32_32x32x32_bf16 {vr(O,16)}, {vr(V+8+4,4)}, {vr(S+16+8,8)}, v{IDX}")
    a("s_setprio 0")
    a("""
    s_lshl_b32 s56, s51, 3
    s_add_u32 s56, s56, s3
    s_lshl_b32 s56, s56, 5
    s_add_u32 s56, s56, s54
    s_lshl_b32 s56, s56, 10
    """)
    a(f"s_add_u32 s64, s56, {WS_OF}")
    a(f"s_mov_b32 s56, {f32bits(2.0**100):#x}")
    a(f"s_mov_b32 s57, {f32bits(2.0**40):#x}")
    a(f"s_mov_b32 s58, {f32bits(2.0**-40):#x}")
    a("s_waitcnt lgkmcnt(0)")
    a("s_nop 1")
    a(f"v_rcp_f32 v{AK}, v{O+8}")
    a("s_cmp_lg_u32 s68, 0")
    a("s_cbranch_scc1 FIN")
    a(f"v_add_f32 v31, abs(v{O}), abs(v{O+1})")
    for i in range(2, 8): a(f"v_add_f32 v31, v31, abs(v{O+i})")
    a("v_cmp_ngt_f32 vcc, s56, v31")
    a(f"v_cmp_ngt_f32 s[62:63], s57, v{O+8}")
    a(f"v_cmp_nlt_f32 s[70:71], s58, v{O+8}")
    a("s_or_b64 s[62:63], s[62:63], s[70:71]")
    a("s_or_b64 s[62:63], vcc, s[62:63]")
    a("s_cbranch_scc1 FALLBACK")
    a.label("FIN")
    for i in range(8): a(f"v_mul_f32 v{O+i}, v{O+i}, v{AK}")
    for i in range(4): a(f"v_cvt_pk_bf16_f32 v{KF+i}, v{O+2*i}, v{O+2*i+1}")
    a(f"buffer_store_dwordx4 {vr(KF,4)}, v3, {WS}, s64 offen sc1")
    stamp(a, 10)
    a("""
    v_lshrrev_b32 v4, 3, v2
    v_and_b32 v5, 7, v2
    v_xor_b32 v6, s3, v5
    v_lshlrev_b32 v6, 4, v6
    v_lshl_add_u32 v6, v5, 10, v6
    v_lshl_add_u32 v6, v4, 1, v6
    v_lshlrev_b32 v7, 11, v4
    v_lshl_add_u32 v7, v5, 4, v7
    s_lshl_b32 s64, s49, 17
    s_lshl_b32 s57, s3, 14
    s_add_u32 s64, s64, s57
    s_lshl_b32 s57, s48, 7
    s_add_u32 s64, s64, s57
    s_lshr_b32 s57, s3, 2
    s_lshl_b32 s56, s57, 14
    v_add_u32 v13, s56, v3
    v_and_b32 v14, 3, v2
    s_lshl_b32 s56, s3, 12
    v_add_u32 v80, s56, v3
    """)
    a(f"v_add_u32 v6, {L_Z}, v6")
    a(f"v_add_u32 v80, {L_RED}, v80")
    a("""
    v_xor_b32 v81, 16, v80
    v_xor_b32 v82, 32, v80
    v_xor_b32 v83, 48, v80
    v_lshrrev_b32 v84, 4, v2
    s_lshl_b32 s56, s3, 2
    v_add_u32 v85, s56, v84
    v_xor_b32 v85, v85, v14
    v_lshlrev_b32 v85, 4, v85
    v_lshl_add_u32 v85, v14, 10, v85
    v_bfe_u32 v86, v2, 2, 2
    v_lshl_add_u32 v85, v86, 12, v85
    v_lshlrev_b32 v87, 11, v84
    v_and_b32 v86, 15, v2
    v_lshl_add_u32 v87, v86, 4, v87
    s_lshl_b32 s56, s48, 3
    s_add_u32 s56, s56, s51
    s_lshl_b32 s56, s56, 16
    s_lshl_b32 s57, s3, 13
    s_add_u32 s56, s56, s57
    s_lshl_b32 s57, s50, 8
    s_add_u32 s56, s56, s57
    s_add_u32 s56, s56, 1024
    """)
    a(f"v_add_u32 v85, {L_RED}, v85")
    for i in range(16): a(f"v_mov_b32 v{64+i}, 0")
    a("s_waitcnt vmcnt(0)")
    a("s_barrier")
    stamp(a, 11)
    for jj in range(8): a(f"ds_read_u16_d16_hi v{32+jj}, v6 offset:{128*jj}")
    for p in range(4):
        a(f"v_lshlrev_b32 v{40+2*p}, 16, v{100+p}")
        a(f"v_and_b32 v{41+2*p}, s59, v{100+p}")
    a("s_waitcnt lgkmcnt(0)")
    for i in range(8):
        a(f"v_and_b32 v{32+i}, s59, v{32+i}")
        a(f"v_mul_f32 v{32+i}, v{32+i}, v{40+i}")
    for i in range(4): a(f"v_cvt_pk_bf16_f32 v{48+i}, v{32+2*i}, v{33+2*i}")
    for st in range(16):
        a(f"buffer_load_dwordx4 {vr(WF+4*st,4)}, v3, {WS}, s55 offen offset:{1024*(st&3)} sc1")
        if st % 4 == 3 and st < 15: a("s_add_u32 s55, s55, 4096")
    a("buffer_store_dwordx4 v[48:51], v7, s[36:39], s64 offen")
    a("s_waitcnt vmcnt(1)")
    for ph in range(2):
        a("s_barrier")
        if ph == 0: stamp(a, 12)
        for st in range(8):
            a(f"ds_read_b128 {vr(16+4*st,4)}, v13 offset:{L_O + (8*ph+st)*1024}")
        for st in range(8):
            a(f"s_waitcnt lgkmcnt({7-st})")
            a(f"v_mfma_f32_32x32x16_bf16 v[64:79], {vr(WF+4*(8*ph+st),4)}, {vr(16+4*st,4)}, v[64:79]")
    a("s_nop 11")
    for j in range(4):
        a(f"ds_write_b128 v{80+j}, {vr(64+4*j,4)} offset:{j*1024}")
    a("""
    s_waitcnt lgkmcnt(0)
    s_barrier
    ds_read_b128 v[16:19], v85
    ds_read_b128 v[20:23], v85 offset:512
    ds_read_b128 v[24:27], v85 offset:16384
    ds_read_b128 v[28:31], v85 offset:16896
    s_waitcnt lgkmcnt(0)
    """)
    for i in range(8): a(f"v_add_f32 v{16+i}, v{16+i}, v{24+i}")
    for i in range(4): a(f"v_cvt_pk_bf16_f32 v{32+i}, v{16+2*i}, v{17+2*i}")
    a("buffer_store_dwordx4 v[32:35], v87, s[36:39], s56 offen")
    stamp(a, 13)
    if DBGT:
        srd(a, 44, P_DBG, 256)
        a("s_waitcnt vmcnt(0)")
        a("s_memrealtime s[74:75]")
        a("s_waitcnt lgkmcnt(0)")
        a("s_cmp_lg_u32 s3, 0")
        a("s_cbranch_scc1 END")
        a("s_mov_b64 exec, 1")
        a("v_mov_b32 v4, s72")
        a("v_mov_b32 v5, s74")
        a("v_not_b32 v6, v4")
        a("v_not_b32 v7, v5")
        a("v_mov_b32 v8, 0")
        a("buffer_atomic_umax v4, v8, s[44:47], 0 offen offset:8 sc1")
        a("buffer_atomic_umax v5, v8, s[44:47], 0 offen offset:12 sc1")
        a("buffer_atomic_umax v6, v8, s[44:47], 0 offen offset:16 sc1")
        a("buffer_atomic_umax v7, v8, s[44:47], 0 offen offset:20 sc1")
        a("s_cmp_ge_u32 s2, 8")
        a("s_cbranch_scc1 END")
        a("s_lshl_b32 s56, s2, 2")
        a("buffer_store_dword v4, v8, s[44:47], s56 offen offset:32")
    endpgm(a)
    a.label("LOOPB")
    a("s_waitcnt vmcnt(0)")
    a("s_barrier")
    a("s_cmp_lg_u32 s65, 4")
    a("s_cbranch_scc1 LOOP")
    a("buffer_load_dwordx4 v[100:103], v96, s[32:35], s64 offen")
    a("s_branch LOOP")

    a.label("FALLBACK")
    a("s_mov_b32 s68, 1")
    a("s_mov_b32 s69, 0")
    a(f"v_mov_b32 v{AK}, v3")
    a(f"v_mov_b32 v31, {f32bits(float('-inf')):#x}")
    a("s_mov_b32 s65, 0")
    a.label("MAXL")
    a(f"ds_read_b128 {vr(KF,4)}, v{AK}")
    a(f"v_add_u32 v{AK}, 2048, v{AK}")
    a("s_waitcnt lgkmcnt(0)")
    a(f"v_mfma_f32_32x32x16_bf16 {vr(S,16)}, {vr(KF,4)}, {vr(Q,4)}, 0")
    a("s_nop 15")
    for i in range(0, 16, 2): a(f"v_max3_f32 v31, v31, v{S+i}, v{S+i+1}")
    a("s_add_u32 s65, s65, 1")
    a("s_cmp_lt_u32 s65, 64")
    a("s_cbranch_scc1 MAXL")
    a(f"v_mov_b32 v{S}, v31")
    a("s_nop 1")
    a(f"v_permlane32_swap_b32 v31, v{S}")
    a("s_nop 1")
    a(f"v_max_f32 v31, v31, v{S}")
    for i in range(16): a(f"v_sub_f32 v{NM+i}, 0, v31")
    a("s_branch RUN")

PT = (int(os.environ.get("PT_X", "1")), int(os.environ.get("PT_Q", "3")), int(os.environ.get("PT_H", "4")))
F0_AT = int(os.environ.get("F0_AT", "5"))
NG = 3
H_AT = int(os.environ.get("H_AT", "9"))
CMID_AT = int(os.environ.get("CMID_AT", "4"))
A4_AT = int(os.environ.get("A4_AT", "10"))
A1_SLEEP = int(os.environ.get("A1_SLEEP", "8"))
CONV_PRIO = int(os.environ.get("CONV_PRIO", "3"))
PRIOS = [3, 2, 1, 0]

def main():
    ref = open(f"cdna_kernels/{NAME}.s.ref").read().split("\n")
    hdr = []
    for line in ref:
        if line.startswith(";") and "@launch" not in line: hdr.append(line)
        elif not line.startswith(";"): break
    a = Asm()
    gen_entry(a)
    gen_loader1(a)
    gen_compute(a)
    gen_loader2(a)
    gen_helpers(a)
    stampout(a)
    a.label("END")
    a("s_endpgm")
    a.label("CODE_END")
    out = "\n".join(hdr) + "\n"
    out += f"; @launch grid=(256,1,1) block=(768,1,1) lds={L_TOTAL}\n"
    out += '.amdgcn_target "amdgcn-amd-amdhsa--gfx950"\n.text\n'
    out += a.text()
    out += f""".section .rodata,"a"
.p2align 6
.amdhsa_kernel {KN}
  .amdhsa_next_free_vgpr 168
  .amdhsa_next_free_sgpr 96
  .amdhsa_accum_offset 168
  .amdhsa_group_segment_fixed_size 0
  .amdhsa_kernarg_size 96
  .amdhsa_user_sgpr_count 2
  .amdhsa_user_sgpr_kernarg_segment_ptr 1
  .amdhsa_system_sgpr_workgroup_id_x 1
  .amdhsa_float_denorm_mode_32 3
.end_amdhsa_kernel
"""
    dst = sys.argv[1] if len(sys.argv) > 1 else f"cdna_kernels/{NAME}.s"
    open(dst, "w").write(out)

if __name__ == "__main__":
    main()
```

```python
import sys, math, struct, os, subprocess, re

NAME = "concat_heads__ssm_conv_h3__softmax_full_mha__prompt"
KN = NAME + "_kernel"
E = lambda n, d: int(os.environ.get(n, str(d)))
STAMP = E("STAMP", 0); DIAG = E("DIAG", 0)
F0_AT = E("F0_AT", 4); ST_AT = E("ST_AT", 5); ST_AV = E("ST_AV", 2); WF_AT = E("WF_AT", 7); PADS = E("PADS", 0); GATH = E("GATH", 2); XRP = E("XRP", 7); QST = E("QST", 8); KST = E("KST", 30); WFM = E("WFM", 1); HAT = E("HAT", 6); NON_AT = E("NON_AT", 0)

WS_QF  = 0; WS_KV = 2 << 20; WS_OF = 6 << 20; WS_XR = 8 << 20; WS_ZT = 10 << 20
WS_FL  = 12 << 20; WS_WOF = 13 << 20; WS_ST = 16 << 20; WS_SIZE = 18 << 20

L_X = 0; L_RING = 65536; L_CONV = 131072
L_XR = [L_CONV, L_CONV + 7680]
L_HE = [L_CONV + 15360 + 64, L_CONV + 15360 + 8324 + 64]
L_HO = [L_HE[0] + 4096 + 68, L_HE[1] + 4096 + 68]
L_MISC = L_CONV + 15360 + 2*8324
L_TOTAL = 163840
L_Q = 57344; L_Z = L_CONV; L_O = 0; L_RED = 65536
L_A1 = L_CONV
L_A1S = L_CONV + 18432
L_WT = L_CONV + 26624
F_X = 0; F_W = 4; F_QX = 8; F_FULL = 0; F_FULLA = 48; F_FREE = 64; F_STG = 112; F_XRD = 116; F_C1 = 120; F_ISS = 128
F_CONV = 176; F_P2D = 148; F_ST = 152; F_WOF = 156; F_NONCE = 160; F_HE = 168

def f32bits(x): return struct.unpack("<I", struct.pack("<f", x))[0]

class Asm:
    def __init__(self): self.l = []; self.nopad = 0
    def __call__(self, s):
        for line in s.strip("\n").split("\n"):
            if line.strip(): self.l.append(("    " + line.strip(), self.nopad))
    def label(self, n): self.l.append((n + ":", 1))
    def raw(self, s): self.l.append((s, 1))

class Cnt:
    def __init__(self, a, name, mx): self.a = a; self.ops = []; self.name = name; self.mx = mx
    def op(self, s, tag): self.a(s); self.ops.append(tag)
    def wait(self, tag):
        idx = max(i for i, t in enumerate(self.ops) if t == tag)
        n = len(self.ops) - 1 - idx
        assert n <= self.mx, n
        self.a(f"s_waitcnt {self.name}({n})")
        self.ops = self.ops[idx+1:]

def vr(b, n): return f"v[{b}:{b+n-1}]"
P_Q, P_K, P_V, P_SHK, P_SSMK, P_SSMD, P_X, P_WQKV, P_WO, P_OUT, P_DBG, P_WS = [4 + 2*i for i in range(12)]
def srd(a, d, ptr, size):
    a(f"s_mov_b32 s{d}, s{ptr}")
    a(f"s_and_b32 s{d+1}, s{ptr+1}, 0xffff")
    a(f"s_mov_b32 s{d+2}, {size}")
    a(f"s_mov_b32 s{d+3}, 0x00020000")
WS = "s[28:31]"
NST = 14
def stamp_begin(a):
    if STAMP:
        a("s_memrealtime s[72:73]")
        a("s_memtime s[76:77]")
def dstamp(a, k):
    if DIAG == 1: stamp(a, k, True)
def estamp(a, k):
    if DIAG == 2: stamp(a, k, True)
def fstamp(a, k):
    if DIAG == 3: stamp(a, k, True)
def stamp(a, k, d=False):
    if STAMP and (d or not DIAG or k == 0):
        a("s_memtime s[94:95]")
        a("s_waitcnt lgkmcnt(0)")
        a(f"s_sub_u32 s{80+k}, s94, s76")
def endpgm(a):
    if STAMP: a("s_branch STAMPOUT")
    else: a("s_endpgm")
def stampout(a):
    if STAMP:
        a.label("STAMPOUT")
        srd(a, 28, P_WS, WS_SIZE)
        a("s_waitcnt vmcnt(0)")
        a("s_memrealtime s[74:75]")
        a("s_memtime s[78:79]")
        a("s_waitcnt lgkmcnt(0)")
        a("s_sub_u32 s78, s78, s76")
        a("s_mov_b64 exec, 1")
        a("v_mov_b32 v4, s72")
        a("v_mov_b32 v5, s74")
        a("v_mov_b32 v6, s78")
        for k in range(NST): a(f"v_mov_b32 v{7+k}, s{80+k}")
        a("s_lshl_b32 s76, s2, 4")
        a("s_add_u32 s76, s76, s3")
        a("s_lshl_b32 s76, s76, 7")
        a(f"s_add_u32 s76, s76, {WS_ST}")
        a("v_mov_b32 v30, 0")
        for k in range(5):
            a(f"buffer_store_dwordx4 v[{4+4*k}:{7+4*k}], v30, {WS}, s76 offen offset:{16*k}")
        a("s_endpgm")

_uid = [0]
def uid(): _uid[0] += 1; return _uid[0]
def poll(a, stage, grp_sreg, mode=0, sleep=1):
    u = uid()
    if mode == 3: a(f"s_mov_b32 s62, {WS_FL + stage*16384}")
    else:
        a(f"s_lshl_b32 s62, s{grp_sreg}, 11")
        a(f"s_add_u32 s62, s62, {WS_FL + stage*16384}")
    a("s_mov_b32 s63, 0")
    if mode == 0: a("s_mov_b32 exec_hi, 0")
    a.nopad += 1
    a.label(f"POLL{u}")
    if mode == 3:
        a(f"buffer_load_dwordx4 v[60:63], v3, {WS}, s62 offen sc1")
        a(f"buffer_load_dwordx4 v[64:67], v3, {WS}, s62 offen offset:1024 sc1")
    else: a(f"buffer_load_dwordx2 v[60:61], v12, {WS}, s62 offen sc1")
    a("s_add_u32 s63, s63, 1")
    a("s_cmp_gt_u32 s63, 0x40000")
    a(f"s_cbranch_scc1 POLLX{u}")
    a("s_waitcnt vmcnt(0)")
    a("v_cmp_ne_u64 vcc, s[60:61], v[60:61]")
    if mode == 3:
        for r in (62, 64, 66):
            a(f"v_cmp_ne_u64 s[70:71], s[60:61], v[{r}:{r+1}]")
            a("s_or_b64 vcc, s[70:71], vcc")
        a(f"s_cbranch_scc0 POLLX{u}")
    else: a(f"s_cbranch_vccz POLLX{u}")
    a(f"s_sleep {sleep}")
    a(f"s_branch POLL{u}")
    a.label(f"POLLX{u}")
    a.nopad -= 1
    a("s_mov_b64 exec, -1")
def publish(a, stage, grp_sreg, slot_sreg):
    a(f"s_lshl_b32 s62, s{slot_sreg}, {3 if grp_sreg is None else 6}")
    if grp_sreg is not None:
        a(f"s_lshl_b32 s63, s{grp_sreg}, 11")
        a("s_add_u32 s62, s62, s63")
    a(f"s_add_u32 s62, s62, {WS_FL + stage*16384}")
    a("s_mov_b64 exec, 1")
    a(f"buffer_store_dwordx2 v[14:15], v13, {WS}, s62 offen sc1")
    a("s_mov_b64 exec, -1")
def nonce_lds(a, sgpr=True):
    u = uid()
    a.nopad += 1
    a.label(f"NL{u}")
    a(f"ds_read_b64 v[14:15], v1 offset:{F_NONCE}")
    a("s_waitcnt lgkmcnt(0)")
    a("v_cmp_eq_u32 vcc, 0, v14")
    a(f"s_cbranch_vccnz NL{u}")
    a.nopad -= 1
    if sgpr:
        a("v_readfirstlane_b32 s60, v14")
        a("v_readfirstlane_b32 s61, v15")
def lwait(a, vaddr, off, n, vt, pre=False, sleep=None):
    u = uid()
    a.nopad += 1
    if pre:
        a(f"v_cmp_gt_u32 vcc, {n}, v{vt}")
        a(f"s_cbranch_vccz LWX{u}")
    a.label(f"LW{u}")
    if sleep is None and pre and vt == 55: sleep = E("CSL", 0)
    if sleep: a(f"s_sleep {sleep*E('SLM',1)}")
    a(f"ds_read_b32 v{vt}, v{vaddr} offset:{off}")
    a("s_waitcnt lgkmcnt(0)")
    a(f"v_cmp_gt_u32 vcc, {n}, v{vt}")
    a(f"s_cbranch_vccnz LW{u}")
    a.label(f"LWX{u}")
    a.nopad -= 1
def lwait2(a, n):
    u = uid()
    a.nopad += 1
    a("v_min_u32 v55, v52, v53")
    a(f"v_cmp_gt_u32 vcc, {n}, v55")
    a(f"s_cbranch_vccz LWX{u}")
    a.label(f"LW{u}")
    a(f"ds_read_b64 v[52:53], v1 offset:{F_X}")
    a("s_waitcnt lgkmcnt(0)")
    a("v_min_u32 v55, v52, v53")
    a(f"v_cmp_gt_u32 vcc, {n}, v55")
    a(f"s_cbranch_vccnz LW{u}")
    a.label(f"LWX{u}")
    a.nopad -= 1
def ladd(a, vaddr, off, vone):
    a("s_mov_b64 exec, 1")
    a(f"ds_add_u32 v{vaddr}, v{vone} offset:{off}")
    a("s_mov_b64 exec, -1")
def barriers(a, n):
    for _ in range(n): a("s_barrier")

VX = 16; VW = 20; VQ = 24

def gen_entry(a):
    a.nopad += 1
    a.raw(f".globl {KN}")
    a.raw(".p2align 10")
    a.raw(f".type {KN},@function")
    a.label(KN)
    a("s_cmp_ge_u32 s2, 256")
    a("s_cbranch_scc1 END")
    stamp_begin(a)
    a("s_load_dwordx16 s[4:19], s[0:1], 0")
    a("s_load_dwordx8 s[20:27], s[0:1], 64")
    a("""
    v_lshrrev_b32 v1, 6, v0
    v_and_b32 v2, 63, v0
    v_readfirstlane_b32 s3, v1
    v_lshlrev_b32 v3, 4, v2
    s_and_b32 s48, s2, 7
    s_lshr_b32 s49, s2, 3
    s_and_b32 s50, s49, 3
    s_lshr_b32 s51, s49, 2
    s_and_b32 s52, s48, 4
    s_add_u32 s52, s52, s50
    s_and_b32 s53, s48, 3
    s_lshl_b32 s53, s53, 3
    s_add_u32 s53, s53, s51
    s_lshl_b32 s54, s48, 2
    s_add_u32 s54, s54, s50
    s_lshl_b32 s55, s50, 1
    s_add_u32 s55, s55, s51
    s_and_b32 s55, s55, 7
    s_lshl_b32 s66, s48, 5
    s_add_u32 s66, s66, s49
    """)
    a(f"v_mov_b32 v1, {L_MISC}")
    a("v_mov_b32 v54, 1")
    a("v_mov_b32 v13, 0")
    a("s_cmp_lt_u32 s3, 8")
    a("s_cbranch_scc1 CPATH")
    a("s_setprio 3")
    a("""
    v_lshrrev_b32 v4, 3, v2
    v_lshrrev_b32 v5, 4, v2
    v_and_b32 v6, 7, v2
    v_lshlrev_b32 v12, 6, v2
    s_cmp_eq_u32 s3, 8
    s_cbranch_scc1 XL0
    s_cmp_lg_u32 s3, 9
    s_cbranch_scc1 HPATH
    s_getpc_b64 s[56:57]
    s_lshl_b32 s58, s50, 13
    v_lshlrev_b32 v7, 7, v2
    v_add_u32 v7, s58, v7
    """)
    a(f"v_min_u32 v7, END - {KN} - 256, v7")
    a("global_load_dword v31, v7, s[56:57]")
    a("s_branch LQPAD")

def gen_loader1(a):
    a.label("XL0")
    a("""
    v_lshlrev_b32 v10, 4, v6
    v_lshl_add_u32 v10, v4, 10, v10
    s_lshl_b32 s63, s49, 16
    s_lshl_b32 s64, s48, 7
    s_add_u32 s63, s63, s64
    v_add_u32 v28, s63, v10
    v_subrev_u32 v10, 8192, v28
    """)
    for i in range(1, 4): a(f"v_add_u32 v{28+i}, {8192-1024}, v{28+i-1}")
    a("v_xor_b32 v7, v6, v5")
    a("v_lshlrev_b32 v7, 4, v7")
    a(f"v_lshl_add_u32 v{VX}, v4, 10, v7")
    a(f"v_xor_b32 v{VX+1}, 64, v{VX}")
    a(f"v_add_u32 v{VX+1}, {8192-1024}, v{VX+1}")
    a(f"v_add_u32 v{VX+2}, {2*(8192-1024)}, v{VX}")
    a(f"v_add_u32 v{VX+3}, {2*(8192-1024)}, v{VX+1}")
    a("""
    v_bfe_u32 v7, v2, 2, 2
    v_xor_b32 v7, v7, v5
    v_mul_u32_u24 v8, 3072, v5
    v_lshrrev_b32 v9, 1, v7
    v_lshl_add_u32 v8, v9, 10, v8
    v_and_b32 v9, 1, v7
    v_lshl_add_u32 v8, v9, 6, v8
    v_and_b32 v9, 3, v2
    """)
    a(f"v_lshl_add_u32 v{VW}, v9, 4, v8")
    for i in range(1, 4): a(f"v_add_u32 v{VW+i}, {4*3072 - 1024}, v{VW+i-1}")
    a("""
    s_lshl_b32 s62, s48, 9
    s_lshl_b32 s57, s53, 16
    s_lshl_b32 s58, s52, 7
    s_mov_b32 s59, s55
    s_mov_b32 s56, 0
    s_mov_b32 s63, 32768
    """)
    a(f"s_mov_b32 m0, {L_A1}")
    a("s_waitcnt lgkmcnt(0)")
    stamp(a, 0)
    srd(a, 40, P_K, 2048*512*2)
    a("buffer_load_dwordx4 v10, s[40:43], 0 offen lds")
    for n, base in enumerate((1024, 9216)):
        if n:
            a(f"s_mov_b32 s40, s{P_V}")
            a(f"s_and_b32 s41, s{P_V+1}, 0xffff")
        for g in range(2):
            a(f"s_mov_b32 m0, {L_A1 + base + 4096*g}")
            a("s_nop 0")
            for i in range(4): a(f"buffer_load_dwordx4 v{28+i}, s[40:43], {'s63' if g else '0'} offen offset:{1024*i} lds")
    a(f"s_mov_b32 s40, s{P_SHK}")
    a(f"s_and_b32 s41, s{P_SHK+1}, 0xffff")
    a("s_movk_i32 s42, 4096")
    a(f"s_mov_b32 m0, {L_A1 + 17408}")
    a("s_mov_b32 exec_hi, 0")
    a("buffer_load_dwordx4 v3, s[40:43], s62 offen lds")
    a("s_mov_b64 exec, -1")
    srd(a, 32, P_X, 2048*512*2)
    srd(a, 36, P_WQKV, 512*1536*2)
    a("s_branch XLB")
    a.label("XL")
    a("s_cmp_eq_u32 s56, 2")
    a("s_cbranch_scc1 XLB")
    a("s_cmp_eq_u32 s56, 1")
    a("s_cbranch_scc0 XLC")
    a("s_waitcnt vmcnt(24)")
    a.label("XLC")
    a("s_waitcnt vmcnt(48)")
    a("s_barrier")
    a.label("XLB")
    a("s_lshl_b32 s67, s56, 13")
    a("s_mov_b32 m0, s67")
    a("s_lshl_b32 s64, s59, 7")
    a("s_add_u32 s64, s64, s57")
    for i in range(4): a(f"buffer_load_dwordx4 v{VX+i}, s[32:35], s64 offen offset:{1024*i} lds")
    a("s_add_u32 m0, s67, 4096")
    a("s_add_u32 s64, s64, 32768")
    for i in range(4): a(f"buffer_load_dwordx4 v{VX+i}, s[32:35], s64 offen offset:{1024*i} lds")
    a("s_and_b32 s67, s56, 3")
    a("s_lshl_b32 s67, s67, 14")
    a(f"s_add_u32 m0, s67, {L_RING}")
    a(f"s_mul_i32 s65, s59, {64*3072}")
    a("s_add_u32 s65, s65, s58")
    a("s_add_u32 s65, s65, 1024")
    for G in range(4):
        if G:
            a("s_add_u32 m0, m0, 4096")
            a(f"s_add_u32 s65, s65, {16*3072}")
        for i in range(4): a(f"buffer_load_dwordx4 v{VW+i}, s[36:39], s65 offen offset:{1024*i} lds")
    a("s_cmp_eq_u32 s56, 3")
    a("s_addc_u32 s59, s59, 2")
    a("s_and_b32 s59, s59, 7")
    a("s_add_u32 s56, s56, 1")
    a("s_cmp_lt_u32 s56, 8")
    a("s_cbranch_scc1 XL")
    a("s_branch LQ2")
    a.nopad -= 1
    a.label("LQ")
    a.label("LQPAD")
    a("s_branch HPATH")
    a.label("LQ2")
    a("""
    v_bfe_u32 v10, v2, 4, 1
    v_lshlrev_b32 v10, 2, v10
    v_xor_b32 v10, v10, v6
    v_lshlrev_b32 v10, 4, v10
    v_mul_u32_u24 v8, 3072, v4
    """)
    a(f"v_add_u32 v{VQ}, v8, v10")
    for i in range(1, 4): a(f"v_add_u32 v{VQ+i}, {8*3072 - 1024}, v{VQ+i-1}")
    def sig(n, vm):
        a(f"v_mov_b32 v9, {n}")
        a(f"s_waitcnt vmcnt({vm})")
        a(f"ds_write_b32 v1, v9 offset:{F_W}")
    a("s_mov_b32 s56, 0")
    a("s_mov_b32 s59, s55")
    a(f"s_mov_b32 s67, {L_RING}")
    a.nopad += 1
    a.label("LQL")
    a("s_cmp_eq_u32 s56, 0")
    a("s_cbranch_scc1 LQW")
    a("s_cmp_eq_u32 s56, 1")
    a("s_cbranch_scc1 LQV")
    a("s_waitcnt vmcnt(32)")
    a.label("LQV")
    a("s_waitcnt vmcnt(40)")
    a.label("LQW")
    a("s_waitcnt vmcnt(48)")
    a("s_barrier")
    for hf in range(2):
        a("s_and_b32 s59, s59, 7")
        a(f"s_mul_i32 s65, s59, {64*3072}")
        a("s_add_u32 s65, s65, s58")
        for g in range(2):
            a(f"s_add_u32 m0, s67, {hf*8192 + g*4096}")
            a(f"s_add_u32 s65, s65, {32*3072*g}")
            for i in range(4):
                a(f"buffer_load_dwordx4 v{VQ+i}, s[36:39], s65 offen offset:{1024*i} lds")
        if hf == 0: a("s_add_u32 s59, s59, 2")
    a("s_cmp_eq_u32 s56, 1")
    a("s_addc_u32 s59, s59, 2")
    a("s_add_u32 s67, s67, 16384")
    a("s_add_u32 s56, s56, 1")
    a("s_cmp_lt_u32 s56, 4")
    a("s_cbranch_scc1 LQL")
    a.nopad -= 1
    a("s_mov_b64 exec, 1")
    a(f"ds_write_b32 v1, v54 offset:{F_QX}")
    sig(1, 32); sig(2, 16); sig(3, 0)
    a("s_mov_b64 exec, -1")
    stamp(a, 5)
    srd(a, 28, P_WS, WS_SIZE)
    nonce_lds(a)
    lwait(a, 1, F_ST, 8, 61, sleep=1)
    a.label("L0B")
    stamp(a, 7)
    a(f"s_sleep {E('P1S', 8)}")
    poll(a, 1, 48)
    stamp(a, 8)
    a("s_lshl_b32 s64, s54, 6")
    a("s_lshl_b32 s65, s51, 3")
    a("s_add_u32 s64, s64, s65")
    a("s_lshl_b32 s64, s64, 10")
    a(f"s_add_u32 s64, s64, {WS_QF}")
    a("s_lshl_b32 s65, s54, 17")
    a(f"s_add_u32 s65, s65, {WS_KV}")
    def linloop(ldsb, sreg, n4, lab):
        a(f"s_mov_b32 m0, {ldsb}")
        a("s_nop 0")
        a.nopad += 1
        a.label(lab)
        for i in range(4):
            a(f"buffer_load_dwordx4 v3, {WS}, s{sreg} offen offset:{1024*i} sc1 lds")
        a("s_add_u32 m0, m0, 4096")
        a(f"s_add_u32 s{sreg}, s{sreg}, 4096")
        a(f"s_cmp_lt_u32 m0, {ldsb + 4096*n4}")
        a(f"s_cbranch_scc1 {lab}")
        a.nopad -= 1
    linloop(L_Q, 64, 2, "KVL0")
    linloop(0, 65, 9, "KVL1")
    a("s_waitcnt vmcnt(24)")
    a("s_barrier")
    stamp(a, 9)
    linloop(36864, 65, 5, "KVL2")
    a("s_waitcnt vmcnt(20)")
    a("s_barrier")
    linloop(57344, 65, 18, "KVL3")
    a("s_waitcnt vmcnt(0)")
    a("s_barrier")
    stamp(a, 10)
    a("s_lshl_b32 s64, s48, 3")
    a("s_add_u32 s64, s64, s51")
    a("s_lshl_b32 s64, s64, 15")
    a(f"s_add_u32 s64, s64, {WS_OF}")
    a("s_barrier")
    stamp(a, 11)
    a(f"s_sleep {E('P3S', 8)}")
    poll(a, 3, 48)
    stamp(a, 12)
    for n, g in enumerate((0, 4, 1, 5, 2, 6, 3, 7)):
        a(f"s_mov_b32 m0, {L_O + 4096*g}")
        a(f"s_add_u32 s65, s64, {4096*g}")
        for i in range(4):
            a(f"buffer_load_dwordx4 v3, {WS}, s65 offen offset:{1024*i} sc1 lds")
    a("s_waitcnt vmcnt(16)")
    a("s_barrier")
    a("s_waitcnt vmcnt(0)")
    a("s_barrier")
    stamp(a, 13)
    endpgm(a)

    a.label("HPATH")
    a("s_memrealtime s[60:61]")
    a.label("HP3")
    a("s_waitcnt lgkmcnt(0)")
    stamp(a, 0)
    srd(a, 28, P_WS, WS_SIZE)
    srd(a, 40, P_SSMK, 512*2048*2)
    a("s_xor_b32 s56, s3, 11")
    a("s_or_b32 s56, s56, s2")
    a("s_cmp_lg_u32 s56, 0")
    a("s_cbranch_scc1 HP4")
    srd(a, 44, P_DBG, 256)
    a("s_or_b32 s60, s60, 1")
    a("v_mov_b32 v14, s60")
    a("v_mov_b32 v15, s61")
    a("s_mov_b64 exec, 1")
    a("buffer_store_dwordx2 v[14:15], v13, s[44:47], 0 offen sc1")
    a("s_mov_b64 exec, -1")
    a.label("HP4")
    a("s_cmp_eq_u32 s3, 10")
    a("s_cbranch_scc1 H10")
    a("s_cmp_eq_u32 s3, 11")
    a("s_cbranch_scc1 H11")
    a("v_lshl_add_u32 v8, v2, 2, v1")
    a("ds_write_b32 v8, v13")
    srd(a, 44, P_DBG, 256)
    a("s_waitcnt lgkmcnt(0)")
    barriers(a, 1 + NON_AT)
    a("buffer_load_dwordx2 v[14:15], v13, s[44:47], 0 offen sc1")
    barriers(a, F0_AT + 1 - NON_AT)
    a("s_mov_b32 s63, 0")
    a.nopad += 1
    a.label("LD2P")
    a("s_waitcnt vmcnt(0)")
    a("v_cmp_ne_u32 vcc, 0, v14")
    a("s_cbranch_vccnz LD2Q")
    a("s_add_u32 s63, s63, 1")
    a("v_mov_b32 v14, 1")
    a("s_cmp_gt_u32 s63, 0x40000")
    a("s_cbranch_scc1 LD2Q")
    a("buffer_load_dwordx2 v[14:15], v13, s[44:47], 0 offen sc1")
    a("s_branch LD2P")
    a.label("LD2Q")
    a.nopad -= 1
    publish(a, 0, 48, 49)
    a(f"ds_write_b64 v1, v[14:15] offset:{F_NONCE}")
    a("s_waitcnt lgkmcnt(0)")
    stamp(a, 1)
    a("v_readfirstlane_b32 s60, v14")
    a("v_readfirstlane_b32 s61, v15")
    a("s_lshl_b32 s56, s50, 1")
    barriers(a, 8 - F0_AT)
    if WFM == 0:
        lwait(a, 1, F_QX, 1, 61)
        poll(a, 0, 56, mode=1, sleep=2)
        ladd(a, 1, F_CONV, 54)
    stamp(a, 2)
    lwait(a, 1, F_ST, 8, 61, sleep=1)
    publish(a, 1, 52, 53)
    barriers(a, 2)
    if WFM == 1: poll(a, 0, 56, mode=1, sleep=2)
    barriers(a, 2)
    publish(a, 3, 51, 54)
    endpgm(a)
    a.label("H11")
    srd(a, 40, P_WO, 512*512*2)
    a("""
    v_lshlrev_b32 v16, 10, v4
    v_lshl_add_u32 v16, v6, 4, v16
    s_lshl_b32 s56, s49, 14
    s_lshl_b32 s57, s48, 7
    s_add_u32 s56, s56, s57
    s_add_u32 s57, s56, 7168
    v_lshrrev_b32 v17, 5, v2
    v_bfe_u32 v18, v2, 2, 2
    v_lshl_add_u32 v17, v17, 2, v18
    v_lshlrev_b32 v17, 7, v17
    v_bfe_u32 v18, v2, 4, 1
    v_lshl_add_u32 v17, v18, 5, v17
    v_and_b32 v18, 3, v2
    v_lshl_add_u32 v17, v18, 3, v17
    s_lshl_b32 s58, s48, 16
    s_lshl_b32 s59, s49, 10
    s_add_u32 s58, s58, s59
    """)
    a(f"v_add_u32 v17, {L_WT}, v17")
    a(f"s_add_u32 s58, s58, {WS_WOF}")
    a("s_add_u32 s59, s58, 32768")
    a(f"s_mov_b32 m0, {L_WT}")
    a("s_nop 0")
    a("buffer_load_dwordx4 v16, s[40:43], s56 offen lds")
    a("buffer_load_dwordx4 v16, s[40:43], s57 offen offset:1024 lds")
    barriers(a, 2)
    a("s_waitcnt vmcnt(0)")
    a("ds_read_b64_tr_b16 v[20:21], v17")
    a("ds_read_b64_tr_b16 v[22:23], v17 offset:1024")
    a("ds_read_b64_tr_b16 v[24:25], v17 offset:64")
    a("ds_read_b64_tr_b16 v[26:27], v17 offset:1088")
    a("s_waitcnt lgkmcnt(0)")
    a(f"buffer_store_dwordx4 v[20:23], v3, {WS}, s58 offen sc1")
    a(f"buffer_store_dwordx4 v[24:27], v3, {WS}, s59 offen sc1")
    srd(a, 40, P_SSMK, 512*2048*2)
    a("s_lshl_b32 s64, s66, 13")
    a("v_and_b32 v8, 1, v2")
    a("v_mul_u32_u24 v8, 8324, v8")
    a(f"v_add_u32 v8, {L_HE[0]}, v8")
    for n in range(1, 9):
        if n == F0_AT: a("s_waitcnt vmcnt(0)")
        a("s_barrier")
        if n == HAT:
            for q in range(2):
                a(f"s_mov_b32 m0, {L_HE[q]}")
                a(f"s_add_u32 s65, s64, {4096*q}")
                for i in range(4):
                    a(f"buffer_load_dwordx4 v3, s[40:43], s65 offen offset:{1024*i} lds")
    lwait(a, 1, F_QX, 1, 62)
    for q in (1, 0):
        a(f"s_mov_b32 m0, {L_HO[q]}")
        a(f"s_add_u32 s65, s64, {4096*q + 2}")
        for i in range(4):
            a(f"buffer_load_dwordx4 v3, s[40:43], s65 offen offset:{1024*i} lds")
    a("s_waitcnt vmcnt(8)")
    a("ds_read_b32 v9, v8")
    a("s_waitcnt lgkmcnt(0)")
    a("v_lshlrev_b32 v9, 16, v9")
    a("s_mov_b64 exec, 3")
    a(f"ds_write_b32 v8, v9 offset:{L_HO[0] - L_HE[0] - 4}")
    a("s_mov_b64 exec, -1")
    a("s_waitcnt vmcnt(4) lgkmcnt(0)")
    ladd(a, 1, F_CONV + 4, 54)
    a("s_waitcnt vmcnt(0)")
    ladd(a, 1, F_CONV, 54)
    stamp(a, 1)
    endpgm(a)

    a.label("H10")
    VXR = 48
    for i in range(5):
        a(f"v_add_u32 v8, {64*i}, v2")
        a("v_mul_u32_u24 v9, 205, v8")
        a("v_lshrrev_b32 v9, 10, v9")
        a("v_mul_u32_u24 v11, 5, v9")
        a("v_sub_u32 v8, v8, v11")
        a("v_min_u32 v8, 3, v8")
        a("v_lshlrev_b32 v8, 4, v8")
        a(f"v_lshl_add_u32 v{VXR+i}, v9, 6, v8")
    for i in range(4): a(f"v_mov_b32 v{32+i}, 0")
    a("s_lshl_b32 s64, s66, 13")
    def hdma():
        for q in range(2):
            a(f"s_mov_b32 m0, {L_HE[q]}")
            a(f"s_add_u32 s65, s64, {4096*q}")
            for i in range(4):
                a(f"buffer_load_dwordx4 v3, s[40:43], s65 offen offset:{1024*i} lds")
    barriers(a, 3)
    for q in range(2):
        a(f"v_add_u32 v8, {L_XR[q]}, v3")
        a("ds_write_b128 v8, v[32:35] offset:5120")
        a("ds_write_b128 v8, v[32:35] offset:6144")
        a("s_mov_b32 exec_hi, 0")
        a("ds_write_b128 v8, v[32:35] offset:7168")
        a("s_mov_b64 exec, -1")
    a("v_lshlrev_b32 v8, 2, v2")
    a(f"v_add_u32 v8, {L_HE[0] - 64}, v8")
    a("s_mov_b64 exec, 0xffff")
    a("ds_write_b32 v8, v32")
    a(f"ds_write_b32 v8, v32 offset:{L_HO[0] - L_HE[0] - 4}")
    a(f"ds_write_b32 v8, v32 offset:{L_HE[1] - L_HE[0]}")
    a(f"ds_write_b32 v8, v32 offset:{L_HO[1] - L_HE[0] - 4}")
    a("s_mov_b64 exec, -1")
    a("s_lshl_b32 s62, s48, 11")
    a(f"s_add_u32 s62, s62, {WS_FL}")
    for n in range(2, 9):
        a("s_barrier")
        if n == F0_AT + 1: nonce_lds(a)
        if n == XRP:
            a("s_mov_b32 exec_hi, 0")
            a(f"buffer_load_dwordx2 v[60:61], v12, {WS}, s62 offen sc1")
            a("s_mov_b64 exec, -1")
    lwait(a, 1, F_QX, 1, 62)
    a("s_waitcnt vmcnt(0)")
    a("s_mov_b32 exec_hi, 0")
    a("v_cmp_ne_u64 vcc, s[60:61], v[60:61]")
    a("s_mov_b64 exec, -1")
    a("s_cbranch_vccz F0OK")
    stamp(a, 6)
    poll(a, 0, 48, sleep=E('F0_PS', 2))
    a.label("F0OK")
    stamp(a, 1)
    a(f"s_add_u32 s64, s64, {WS_XR}")
    for q in (1, 0):
        a(f"s_add_u32 s65, s64, {4096*q}")
        for i in range(5):
            a(f"s_mov_b32 m0, {L_XR[q] + 1024*i}")
            a("s_nop 0")
            a(f"buffer_load_dwordx4 v{VXR+i}, {WS}, s65 offen sc1 lds")
    a("s_waitcnt vmcnt(5)")
    ladd(a, 1, F_CONV + 4, 54)
    a("s_waitcnt vmcnt(0)")
    ladd(a, 1, F_CONV, 54)
    stamp(a, 2)
    barriers(a, 2)
    publish(a, 2, 48, 49)
    a("s_barrier")
    poll(a, 2, 48, sleep=4)
    a("s_lshl_b32 s64, s48, 18")
    a("s_lshl_b32 s65, s49, 7")
    a("s_add_u32 s64, s64, s65")
    a(f"s_add_u32 s64, s64, {WS_ZT}")
    for i in range(8):
        a(f"v_xor_b32 v8, {i}, v6")
        a("v_lshlrev_b32 v8, 4, v8")
        a("v_lshl_add_u32 v8, v4, 12, v8")
        a(f"s_mov_b32 m0, {L_Z + 1024*i}")
        a("s_nop 0")
        a(f"buffer_load_dwordx4 v8, {WS}, s64 offen sc1 lds")
        a("s_add_u32 s64, s64, 32768")
    a("s_waitcnt vmcnt(0)")
    stamp(a, 4)
    a.label("HEND")
    endpgm(a)

def gen_compute(a):
    a.label("CPATH")
    a.label("C_NN")
    a("""
    v_and_b32 v4, 31, v2
    v_lshrrev_b32 v5, 5, v2
    v_bfe_u32 v63, v2, 1, 3
    v_xor_b32 v63, v63, v5
    s_and_b32 s56, s3, 1
    s_lshl_b32 s56, s56, 12
    v_lshlrev_b32 v61, 7, v4
    v_add_u32 v61, s56, v61
    """)
    for st in range(4):
        a(f"v_xor_b32 v60, {2*st}, v63")
        a(f"v_lshl_add_u32 v{56+st}, v60, 4, v61")
    a("""
    v_bfe_u32 v61, v2, 2, 2
    v_lshl_add_u32 v62, v5, 3, v61
    v_lshlrev_b32 v60, 8, v62
    v_bfe_u32 v63, v2, 4, 1
    v_lshl_add_u32 v60, v63, 5, v60
    v_and_b32 v63, 3, v2
    v_lshl_add_u32 v60, v63, 3, v60
    s_lshr_b32 s56, s3, 1
    v_xor_b32 v63, s56, v61
    v_lshl_add_u32 v60, v63, 6, v60
    """)
    a(f"v_add_u32 v60, {L_RING}, v60")
    for i in range(32): a(f"v_mov_b32 v{64+i}, 0")
    a("""
    s_lshl_b32 s56, s52, 2
    s_and_b32 s57, s3, 2
    s_add_u32 s56, s56, s57
    s_lshl_b32 s56, s56, 6
    s_lshl_b32 s57, s53, 1
    s_add_u32 s56, s56, s57
    s_and_b32 s57, s3, 1
    s_add_u32 s64, s56, s57
    s_lshl_b32 s56, s64, 11
    s_mov_b32 s59, 0xffff0000
    """)
    a("s_waitcnt lgkmcnt(0)")
    stamp(a, 0)
    a("v_lshlrev_b32 v11, 4, v4")
    a(f"v_add_u32 v11, {L_A1 + 17408}, v11")
    srd(a, 28, P_WS, WS_SIZE)
    srd(a, 32, P_Q, 2048*512*2)
    srd(a, 36, P_OUT, 2048*1024*2)
    a(f"s_lshl_b32 s67, s66, 2")
    a(f"s_load_dword s68, s[{P_SSMD}:{P_SSMD+1}], s67")
    a("""
    s_lshl_b32 s57, s3, 10
    v_lshlrev_b32 v10, 9, v5
    v_lshl_add_u32 v10, v4, 2, v10
    v_add_u32 v10, s57, v10
    v_add_u32 v0, s57, v3
    s_sub_u32 s57, 7, s3
    v_and_b32 v12, 7, v4
    v_xor_b32 v12, s57, v12
    v_lshlrev_b32 v12, 4, v12
    v_lshl_add_u32 v12, v4, 8, v12
    v_lshlrev_b32 v9, 3, v5
    v_sub_u32 v12, v12, v9
    s_lshl_b32 s57, s3, 2
    v_lshrrev_b32 v8, 4, v2
    v_add_u32 v8, s57, v8
    v_xor_b32 v8, v8, v2
    v_and_b32 v8, 7, v8
    v_lshlrev_b32 v8, 4, v8
    v_lshrrev_b32 v9, 3, v2
    v_lshl_add_u32 v8, v9, 12, v8
    s_lshl_b32 s65, s48, 18
    s_lshl_b32 s57, s3, 15
    s_add_u32 s65, s65, s57
    s_sub_u32 s57, 31, s49
    s_lshl_b32 s57, s57, 7
    s_add_u32 s65, s65, s57
    v_mov_b32 v54, 1
    """)
    a(f"v_add_u32 v10, {L_A1}, v10")
    a(f"v_add_u32 v12, {L_A1S + 8}, v12")
    a(f"v_add_u32 v0, {L_A1S}, v0")
    a(f"s_add_u32 s65, s65, {WS_XR}")
    a("""
    v_and_b32 v7, 0x33, v2
    v_bfe_u32 v6, v2, 2, 1
    v_lshl_or_b32 v7, v6, 3, v7
    v_bfe_u32 v6, v2, 3, 1
    v_lshl_or_b32 v7, v6, 2, v7
    v_lshlrev_b32 v7, 4, v7
    v_lshlrev_b32 v61, 7, v62
    v_bfe_u32 v63, v2, 4, 1
    v_lshl_add_u32 v61, v63, 5, v61
    v_lshlrev_b32 v9, 17, v63
    v_and_b32 v63, 3, v2
    v_lshl_add_u32 v61, v63, 3, v61
    v_bfe_u32 v63, v2, 3, 1
    s_lshr_b32 s58, s3, 1
    v_xor_b32 v63, s58, v63
    v_lshl_add_u32 v61, v63, 6, v61
    v_lshl_add_u32 v9, v5, 8, v9
    v_and_b32 v6, 15, v2
    v_lshl_add_u32 v9, v6, 4, v9
    """)
    a(f"v_add_u32 v61, {L_RING}, v61")
    a(f"s_add_u32 s56, s56, {WS_KV}")
    a("s_add_u32 s57, s56, 131072")
    a("s_barrier")
    a("ds_read_b128 v[140:143], v11")
    stamp(a, 1)
    dstamp(a, 13)
    KR = 128; VR = 135; SK = 140; KF = 144; TAP = 152; KVv = 156; KS = 160; OUT = 164
    for r in range(7): a(f"ds_read_b32 v{KR+r}, v10 offset:{(5+r)*128}")
    for r in range(4): a(f"ds_read_b32 v{VR+r}, v10 offset:{9216 + r*128}")
    a("s_waitcnt lgkmcnt(0)")
    estamp(a, 5)
    for c in range(2):
        def unpack(dst, src, hi):
            if hi: a(f"v_and_b32 v{dst}, s59, v{src}")
            else:  a(f"v_lshlrev_b32 v{dst}, 16, v{src}")
        for r in range(7): unpack(KF + r, KR + r, c)
        for j in range(4): unpack(TAP + j, SK + 2*c + (j >> 1), j & 1)
        for r in range(4): unpack(KVv + r, VR + r, c)
        for r in range(4): a(f"v_mul_f32 v{KS+r}, v{KF+r}, v{TAP+3}")
        for r in range(4): a(f"v_fmac_f32 v{KS+r}, v{KF+r+1}, v{TAP+2}")
        for r in range(4): a(f"v_fmac_f32 v{KS+r}, v{KF+r+2}, v{TAP+1}")
        for r in range(4): a(f"v_fmac_f32 v{KS+r}, v{KF+r+3}, v{TAP+0}")
        for r in range(4): a(f"v_mul_f32 v{KVv+r}, v{KVv+r}, v{KS+r}")
        o = OUT + 2*c
        a(f"v_cvt_pk_bf16_f32 v{o}, v{KVv+3}, v{KVv+2}")
        a(f"v_cvt_pk_bf16_f32 v{o+1}, v{KVv+1}, v{KVv}")
        a(f"ds_write_b64 v12, {vr(o,2)} offset:{128*c}")
        estamp(a, 6 + c)
    a("s_waitcnt lgkmcnt(0)")
    a("s_cmp_ge_u32 s3, 4")
    a("s_cbranch_scc1 VPATH")
    FS = [16, 96]
    def p1_reads(c):
        xo = c*8192; wo = (c & 3)*16384
        for st in range(4):
            b = FS[c & 1] + 8*st
            a(f"ds_read_b128 {vr(b,4)}, v{56+st} offset:{xo}")
            a(f"ds_read_b64_tr_b16 {vr(b+4,2)}, v60 offset:{wo + 16*st*256}")
            a(f"ds_read_b64_tr_b16 {vr(b+6,2)}, v60 offset:{wo + (16*st+4)*256}")
    def p1_mfma(c, isv):
        for st in range(4):
            b = FS[c & 1] + 8*st
            x = vr(b,4); w = vr(b+4,4)
            if isv: a(f"v_mfma_f32_32x32x16_bf16 v[64:79], {x}, {w}, v[64:79]")
            else:   a(f"v_mfma_f32_32x32x16_bf16 v[64:79], {w}, {x}, v[64:79]")
    def pass1(isv):
        for c in range(8):
            if c == F0_AT: a("s_waitcnt vmcnt(0)")
            a("s_barrier")
            dstamp(a, 1 + c)
            if c in (0, 4): stamp(a, 2 + c//4)
            if c == 0: a("ds_read_b128 v[48:51], v0")
            p1_reads(c)
            if c: p1_mfma(c - 1, isv)
            else:
                a("s_waitcnt lgkmcnt(12)")
                a(f"buffer_store_dwordx4 v[48:51], v8, {WS}, s65 offen sc1")
            a("s_waitcnt lgkmcnt(0)")
        a("s_barrier")
    pass1(False)
    P2B = [16, 24, 32, 40, 128, 136]
    lg2 = Cnt(a, "lgkmcnt", 15)
    def p2_read1(n):
        j = n >> 3; st = n & 7
        b = P2B[n % 6]
        if st == 0 and j:
            u = uid()
            lg2.wait(f"f{j}")
            a.nopad += 1
            a(f"v_cmp_gt_u32 vcc, {j}, v55")
            a(f"s_cbranch_vccz P2X{u}")
            a.label(f"P2W{u}")
            a(f"ds_read_b32 v55, v1 offset:{F_W}")
            a("s_waitcnt lgkmcnt(0)")
            a(f"v_cmp_gt_u32 vcc, {j}, v55")
            a(f"s_cbranch_vccnz P2W{u}")
            a.label(f"P2X{u}")
            a.nopad -= 1
        lg2.op(f"ds_read_b128 {vr(b,4)}, v{56+(st&3)} offset:{(2*j + (st>>2))*8192}", f"s{n}")
        lg2.op(f"ds_read_b64_tr_b16 {vr(b+4,2)}, v61 offset:{j*16384 + (16*st)*128}", f"s{n}")
        lg2.op(f"ds_read_b64_tr_b16 {vr(b+6,2)}, v61 offset:{j*16384 + (16*st + 4)*128}", f"s{n}")
        if st == 4 and j < 3: lg2.op(f"ds_read_b32 v55, v1 offset:{F_W}", f"f{j+1}")
    a("s_setprio 2")
    dstamp(a, 9)
    for n in range(4): p2_read1(n)
    p1_mfma(7, False)
    for n in range(32):
        if f"s{n}" in lg2.ops: lg2.wait(f"s{n}")
        b = P2B[n % 6]
        a(f"v_mfma_f32_32x32x16_bf16 v[80:95], {vr(b+4,4)}, {vr(b,4)}, v[80:95]")
        if n + 4 < 32: p2_read1(n + 4)
        if n in (KST, KST + 1):
            hh = n - KST
            for p in range(4):
                a(f"v_cvt_pk_bf16_f32 v{[48,160][hh]+p}, v{64+8*hh+2*p}, v{64+8*hh+2*p+1}")
            a(f"buffer_store_dwordx4 {vr([48,160][hh],4)}, v7, {WS}, s{56+hh} offen sc1")
    ladd(a, 1, F_P2D, 54)
    qs = f32bits(0.25 * math.log2(math.e))
    a(f"s_mov_b32 s58, {qs:#x}")
    a("s_lshl_b32 s56, s64, 10")
    a(f"s_add_u32 s56, s56, {WS_QF}")
    a("s_add_u32 s57, s56, 65536")
    a("s_nop 6")
    for hh in range(2):
        for i in range(8): a(f"v_mul_f32 v{80+8*hh+i}, s58, v{80+8*hh+i}")
        for p in range(4):
            a(f"v_cvt_pk_bf16_f32 v{96+4*hh+p}, v{80+8*hh+2*p}, v{80+8*hh+2*p+1}")
        a(f"buffer_store_dwordx4 {vr(96+4*hh,4)}, v3, {WS}, s{56+hh} offen sc1")
    a("s_setprio 0")
    stamp(a, 4)
    a("s_branch WIN1")

    a.label("VPATH")
    pass1(True)
    p1_mfma(7, True)
    a("s_nop 7")
    lwait(a, 1, F_QX, 1, 55)
    for j in range(2):
        for p in range(4):
            a(f"v_cvt_pk_bf16_f32 v{16+4*j+p}, v{64+8*j+2*p}, v{64+8*j+2*p+1}")
        a(f"buffer_store_dwordx4 {vr(16+4*j,4)}, v9, {WS}, s56 offen offset:{1024 + 512*j} sc1")
    stamp(a, 4)

    a.label("WIN1")
    AL = 48; AH = 49; AB = 50
    WF = 104
    Q = 4; KF = 8; V = 12; IDX = 28; AK = 29; AV = 30; S = 32; O = 64; NM = 80
    C0 = 136; C1 = 152; CB = [104, 120]
    a("""
    s_mov_b32 s59, 0xffff0000
    s_lshr_b32 s64, s3, 2
    s_and_b32 s65, s3, 3
    v_and_b32 v6, 1, v2
    """)
    a(f"v_mul_u32_u24 v6, {L_HO[0] - 64 - (L_HE[0] - 62)}, v6")
    a(f"v_sub_u32 v6, {L_HO[0] - 64}, v6")
    a("v_lshl_add_u32 v6, v4, 1, v6")
    a("v_lshl_add_u32 v6, v5, 4, v6")
    a("s_mul_i32 s56, s64, 8324")
    a("s_lshl_b32 s57, s65, 9")
    a("s_add_u32 s56, s56, s57")
    a(f"v_add_u32 v{AL}, s56, v6")
    a(f"v_add_u32 v{AH}, 2048, v{AL}")
    a("v_sub_u32 v6, 31, v4")
    a("v_mul_u32_u24 v6, 80, v6")
    a("v_lshl_add_u32 v6, v5, 4, v6")
    a("s_mul_i32 s56, s64, 7680")
    a("s_mul_i32 s57, s65, 640")
    a("s_add_u32 s57, s56, s57")
    a(f"s_add_u32 s57, s57, {L_XR[0]}")
    a(f"v_add_u32 v{AB}, s57, v6")
    for i in range(32): a(f"v_mov_b32 v{C0+i}, 0")
    a("v_mov_b32 v0, 1")
    a("s_lshl_b32 s57, s64, 2")
    a("v_add_u32 v51, s57, v1")
    stamp(a, 5)
    fstamp(a, 1)
    lwait(a, 51, F_CONV, 2, 55)
    fstamp(a, 2)
    stamp(a, 6)
    def cr1(i):
        b = CB[i & 1]
        a(f"ds_read2_b32 {vr(b,2)}, v{AL} offset0:{8*i} offset1:{8*i+1}")
        a(f"ds_read2_b32 {vr(b+2,2)}, v{AL} offset0:{8*i+2} offset1:{8*i+3}")
        a(f"ds_read_b128 {vr(b+8,4)}, v{AB} offset:{(i>>1)*80 + (i&1)*32 + 2560}")
    def cr2(i):
        b = CB[i & 1]
        a(f"ds_read_b128 {vr(b+12,4)}, v{AB} offset:{(i>>1)*80 + (i&1)*32}")
        a(f"ds_read2_b32 {vr(b+4,2)}, v{AH} offset0:{8*i} offset1:{8*i+1}")
        a(f"ds_read2_b32 {vr(b+6,2)}, v{AH} offset0:{8*i+2} offset1:{8*i+3}")
    fil = Asm()
    f = fil
    f("s_lshl_b32 s57, s3, 13")
    f(f"s_add_u32 s57, s57, {L_RED}")
    f("""
    v_add_u32 v40, s57, v3
    v_xor_b32 v41, 64, v40
    v_xor_b32 v42, 128, v40
    v_xor_b32 v43, 192, v40
    v_and_b32 v6, 3, v2
    v_lshrrev_b32 v44, 2, v2
    s_and_b32 s57, s65, 1
    s_lshl_b32 s57, s57, 4
    v_add_u32 v44, s57, v44
    v_lshlrev_b32 v7, 2, v6
    v_xor_b32 v44, v44, v7
    v_lshlrev_b32 v44, 4, v44
    v_lshl_add_u32 v44, v6, 10, v44
    s_lshr_b32 s57, s65, 1
    s_lshl_b32 s57, s57, 12
    s_lshl_b32 s58, s64, 15
    s_add_u32 s57, s57, s58
    """)
    f(f"s_add_u32 s57, s57, {L_RED}")
    f("""
    v_add_u32 v44, s57, v44
    s_lshl_b32 s57, s65, 6
    s_sub_u32 s57, 255, s57
    v_sub_u32 v7, s57, v2
    v_lshrrev_b32 v45, 2, v7
    v_mul_u32_u24 v45, 80, v45
    v_and_b32 v7, 3, v7
    v_lshl_add_u32 v45, v7, 4, v45
    """)
    f(f"s_add_u32 s56, s56, {L_XR[0]}")
    f("""
    v_add_u32 v45, s56, v45
    s_lshl_b32 s57, s64, 4
    s_lshr_b32 s58, s68, s57
    s_lshl_b32 s58, s58, 16
    s_lshl_b32 s56, s66, 1
    s_add_u32 s56, s56, s64
    s_lshl_b32 s56, s56, 12
    s_lshl_b32 s57, s65, 10
    s_add_u32 s56, s56, s57
    """)
    f(f"s_add_u32 s56, s56, {WS_ZT}")
    f("""
    s_lshl_b32 s55, s50, 2
    s_add_u32 s55, s55, s65
    s_lshl_b32 s55, s55, 15
    s_lshl_b32 s57, s64, 14
    s_add_u32 s55, s55, s57
    """)
    f(f"s_add_u32 s55, s55, {WS_WOF}")
    f("""
    v_lshrrev_b32 v46, 3, v2
    v_and_b32 v7, 7, v2
    v_lshlrev_b32 v46, 10, v46
    v_lshl_add_u32 v46, v7, 4, v46
    s_lshl_b32 s64, s49, 16
    s_lshl_b32 s57, s3, 13
    s_add_u32 s64, s64, s57
    s_lshl_b32 s57, s48, 7
    s_add_u32 s64, s64, s57
    """)
    for i in range(16): f(f"v_mov_b32 v{NM+i}, 0")
    f("v_and_b32 v31, 27, v2")
    f("v_cmp_eq_u32 vcc, 16, v31")
    f("v_mov_b32 v31, 0x3f803f80")
    f(f"v_mov_b32 v{IDX}, 0xdddd")
    f(f"v_cndmask_b32 v{V}, 0, v31, vcc")
    for i in range(1, 16): f(f"v_mov_b32 v{V+i}, v{V}")
    f("s_mov_b32 s66, 0xffff")
    f("s_mov_b32 s67, 0xffff")
    f("s_mov_b32 s68, 0")
    f(f"s_mov_b32 s69, {(1<<1)|(1<<4)}")
    f("s_lshl_b32 s57, s3, 10")
    f(f"s_add_u32 s57, s57, {L_Q}")
    f(f"v_add_u32 v{S}, s57, v3")
    f(f"v_mov_b32 v{AK}, v3")
    f("v_and_b32 v31, 15, v2")
    f("v_lshlrev_b32 v31, 4, v31")
    f(f"v_lshrrev_b32 v{AV}, 5, v2")
    f(f"v_lshl_add_u32 v{AV}, v{AV}, 8, v31")
    f(f"v_add_u32 v{AV}, 1024, v{AV}")
    for i in range(16): f(f"v_mov_b32 v{O+i}, 0")
    for i in range(8): f(f"v_mov_b32 v{S+16+8+i}, 0")
    f("s_mov_b32 s65, 0")
    fl = [l for l, _ in fil.l]
    per = -(-len(fl) // 42)
    def fill():
        for _ in range(per):
            if fl: a(fl.pop(0))
    cr1(0); cr2(0)
    for i in range(16):
        b = CB[i & 1]
        if i < 15: cr1(i + 1)
        a(f"s_waitcnt lgkmcnt({6 if i < 15 else 5})")
        a(f"v_mfma_f32_32x32x16_bf16 {vr(C0,16)}, {vr(b,4)}, {vr(b+8,4)}, {vr(C0,16)}")
        fill()
        a(f"s_waitcnt lgkmcnt({3 if i < 15 else 2})")
        a(f"v_mfma_f32_32x32x16_bf16 {vr(C1,16)}, {vr(b,4)}, {vr(b+12,4)}, {vr(C1,16)}")
        if i < 15: cr2(i + 1)
        if i == 14:
            a(f"ds_read_b32 v55, v1 offset:{F_P2D}")
            a("ds_read_b128 v[36:39], v45")
        fill()
        a(f"v_mfma_f32_32x32x16_bf16 {vr(C1,16)}, {vr(b+4,4)}, {vr(b+8,4)}, {vr(C1,16)}")
        fill()
        if i in (ST_AT, ST_AV):
            u = uid()
            if ST_AT != ST_AV:
                a("s_cmp_lt_u32 s3, 4")
                a(f"s_cbranch_scc{0 if i == ST_AT else 1} STS{u}")
            a("s_waitcnt vmcnt(0) lgkmcnt(0)")
            ladd(a, 1, F_ST, 0)
            a("s_waitcnt lgkmcnt(0)")
            a.label(f"STS{u}")
    assert not fl
    fstamp(a, 5)
    a("s_waitcnt lgkmcnt(0)")
    lwait(a, 1, F_P2D, 4, 55, pre=True)
    for d in range(4):
        a(f"v_lshlrev_b32 v{Q+7-2*d}, 16, v{36+d}")
        a(f"v_and_b32 v{Q+6-2*d}, s59, v{36+d}")
    for j in range(4): a(f"ds_write_b128 v{40+j}, {vr(C0+4*j,4)} offset:{j*1024}")
    for j in range(4): a(f"ds_write_b128 v{40+j}, {vr(C1+4*j,4)} offset:{4096 + j*1024}")
    a("v_mov_b32 v96, v46")
    a("s_waitcnt lgkmcnt(0)")
    fstamp(a, 8)
    ladd(a, 51, F_C1, 0)
    lwait(a, 51, F_C1, 4, 55)
    fstamp(a, 9)
    stamp(a, 7)
    R = 104
    for src in range(4):
        a(f"ds_read_b128 {vr(R+8*src,4)}, v44 offset:{src*8192}")
        a(f"ds_read_b128 {vr(R+4+8*src,4)}, v44 offset:{src*8192 + 512}")
    a("s_waitcnt lgkmcnt(6)")
    for i in range(8): a(f"v_fmac_f32 v{R+i}, s58, v{Q+i}")
    for src in range(1, 4):
        a(f"s_waitcnt lgkmcnt({6 - 2*src})")
        for i in range(8): a(f"v_add_f32 v{R+i}, v{R+i}, v{R+8*src+i}")
    for i in range(4): a(f"v_cvt_pk_bf16_f32 v{100+i}, v{R+2*i}, v{R+1+2*i}")
    a(f"buffer_store_dwordx4 v[100:103], v3, {WS}, s56 offen sc1")
    a("s_branch RUN1")
    a.label("RUN")
    a(f"v_mov_b32 v{AK}, v3")
    a("v_and_b32 v31, 15, v2")
    a("v_lshlrev_b32 v31, 4, v31")
    a(f"v_lshrrev_b32 v{AV}, 5, v2")
    a(f"v_lshl_add_u32 v{AV}, v{AV}, 8, v31")
    a(f"v_add_u32 v{AV}, 1024, v{AV}")
    for i in range(16): a(f"v_mov_b32 v{O+i}, 0")
    for i in range(8): a(f"v_mov_b32 v{S+16+8+i}, 0")
    a("s_mov_b32 s65, 0")
    a("s_branch RUN2")
    a.label("RUN1")
    stamp(a, 8)
    fstamp(a, 12)
    a("s_barrier")
    fstamp(a, 13)
    stamp(a, 9)
    a(f"ds_read_b128 {vr(Q,4)}, v{S}")
    a.label("RUN2")
    a(f"ds_read_b128 {vr(KF,4)}, v3")
    a("s_mov_b64 exec, s[66:67]")
    a(f"ds_read_b128 {vr(V,4)}, v{AV}")
    a(f"ds_read_b128 {vr(V+4,4)}, v{AV} offset:512")
    a(f"ds_read_b128 {vr(V+12,4)}, v{AV} offset:512")
    a("s_mov_b64 exec, -1")
    a("s_waitcnt lgkmcnt(3)")
    a(f"v_mfma_f32_32x32x16_bf16 {vr(S,16)}, {vr(KF,4)}, {vr(Q,4)}, {vr(NM,16)}")
    a(f"ds_read_b128 {vr(KF,4)}, v{AK} offset:2048")
    a("s_waitcnt lgkmcnt(1)")
    a("s_nop 9")
    a.raw("@@FORCEPAD@@")
    a.nopad += 1
    a.raw(".p2align 6")
    a.label("LOOP")
    U = 4
    def tile(u, wf=None):
        c = u & 1; p = c ^ 1
        Sc = S + 16*c; Sp = S + 16*p
        def ex(i): a(f"v_exp_f32 v{Sc+i}, v{Sc+i}")
        def wl(st):
            a(f"buffer_load_dwordx4 {vr(WF+4*st,4)}, v3, {WS}, s55 offen offset:{1024*(st&3)} sc1")
            if st % 4 == 3: a("s_add_u32 s55, s55, 4096")
        a(f"s_setprio {3-(u&3)}")
        ex(0); ex(1)
        a(f"v_smfmac_f32_32x32x32_bf16 {vr(O,16)}, {vr(V+8*p+4,4)}, {vr(Sp+8,8)}, v{IDX}")
        if wf is not None: wl(2*wf)
        ex(2); ex(3); ex(4)
        a("s_waitcnt lgkmcnt(0)")
        a(f"v_mfma_f32_32x32x16_bf16 {vr(Sp,16)}, {vr(KF,4)}, {vr(Q,4)}, {vr(NM,16)}")
        a(f"ds_read_b128 {vr(KF,4)}, v{AK} offset:{(u+2)*2048}")
        a("s_mov_b64 exec, s[66:67]")
        a(f"ds_read_b128 {vr(V+8*p,4)}, v{AV} offset:{(u+1)*2048}")
        a(f"ds_read_b128 {vr(V+8*p+4,4)}, v{AV} offset:{(u+1)*2048+512}")
        a("s_mov_b64 exec, -1")
        for i in range(5, 10): ex(i)
        a(f"v_smfmac_f32_32x32x32_bf16 {vr(O,16)}, {vr(V+8*c,4)}, {vr(Sc,8)}, v{IDX}")
        if wf is not None: wl(2*wf + 1)
        for i in range(10, 16): ex(i)
    for u in range(U): tile(u)
    a(f"v_add_u32 v{AK}, {U*2048}, v{AK}")
    a(f"v_add_u32 v{AV}, {U*2048}, v{AV}")
    a("s_add_u32 s65, s65, 1")
    a("s_bitcmp1_b32 s69, s65")
    a("s_cbranch_scc1 LOOPB")
    a(f"s_cmp_lt_u32 s65, {64//U}")
    a("s_cbranch_scc1 LOOP")
    a.nopad -= 1
    a(f"v_smfmac_f32_32x32x32_bf16 {vr(O,16)}, {vr(V+8+4,4)}, {vr(S+16+8,8)}, v{IDX}")
    a("s_setprio 0")
    a("""
    s_lshl_b32 s56, s51, 3
    s_add_u32 s56, s56, s3
    s_lshl_b32 s56, s56, 5
    s_add_u32 s56, s56, s54
    s_lshl_b32 s56, s56, 10
    """)
    a(f"s_add_u32 s64, s56, {WS_OF}")
    a(f"s_mov_b32 s56, {f32bits(2.0**100):#x}")
    a(f"s_mov_b32 s57, {f32bits(2.0**40):#x}")
    a(f"s_mov_b32 s58, {f32bits(2.0**-40):#x}")
    a("s_waitcnt lgkmcnt(0)")
    a("s_nop 1")
    a(f"v_rcp_f32 v{AK}, v{O+8}")
    a("s_cmp_lg_u32 s68, 0")
    a("s_cbranch_scc1 FIN")
    a(f"v_add_f32 v31, abs(v{O}), abs(v{O+1})")
    for i in range(2, 8): a(f"v_add_f32 v31, v31, abs(v{O+i})")
    a("v_cmp_ngt_f32 vcc, s56, v31")
    a(f"v_cmp_ngt_f32 s[62:63], s57, v{O+8}")
    a(f"v_cmp_nlt_f32 s[70:71], s58, v{O+8}")
    a("s_or_b64 s[62:63], s[62:63], s[70:71]")
    a("s_or_b64 s[62:63], vcc, s[62:63]")
    a("s_cbranch_scc1 FALLBACK")
    a.label("FIN")
    for i in range(8): a(f"v_mul_f32 v{O+i}, v{O+i}, v{AK}")
    for i in range(4): a(f"v_cvt_pk_bf16_f32 v{KF+i}, v{O+2*i}, v{O+2*i+1}")
    a(f"buffer_store_dwordx4 {vr(KF,4)}, v3, {WS}, s64 offen sc1")
    stamp(a, 10)
    a("""
    v_lshrrev_b32 v4, 3, v2
    v_and_b32 v5, 7, v2
    v_xor_b32 v6, s3, v5
    v_lshlrev_b32 v6, 4, v6
    v_lshl_add_u32 v6, v5, 10, v6
    v_lshl_add_u32 v6, v4, 1, v6
    v_lshlrev_b32 v7, 11, v4
    v_lshl_add_u32 v7, v5, 4, v7
    s_lshl_b32 s64, s49, 17
    s_lshl_b32 s57, s3, 14
    s_add_u32 s64, s64, s57
    s_lshl_b32 s57, s48, 7
    s_add_u32 s64, s64, s57
    s_lshr_b32 s57, s3, 2
    s_lshl_b32 s56, s57, 14
    v_add_u32 v13, s56, v3
    v_and_b32 v14, 3, v2
    s_lshl_b32 s56, s3, 12
    v_add_u32 v80, s56, v3
    """)
    a(f"v_add_u32 v6, {L_Z}, v6")
    a(f"v_add_u32 v80, {L_RED}, v80")
    a("""
    v_xor_b32 v81, 16, v80
    v_xor_b32 v82, 32, v80
    v_xor_b32 v83, 48, v80
    v_lshrrev_b32 v84, 4, v2
    s_lshl_b32 s56, s3, 2
    v_add_u32 v85, s56, v84
    v_xor_b32 v85, v85, v14
    v_lshlrev_b32 v85, 4, v85
    v_lshl_add_u32 v85, v14, 10, v85
    v_bfe_u32 v86, v2, 2, 2
    v_lshl_add_u32 v85, v86, 12, v85
    v_lshlrev_b32 v87, 11, v84
    v_and_b32 v86, 15, v2
    v_lshl_add_u32 v87, v86, 4, v87
    s_lshl_b32 s56, s48, 3
    s_add_u32 s56, s56, s51
    s_lshl_b32 s56, s56, 16
    s_lshl_b32 s57, s3, 13
    s_add_u32 s56, s56, s57
    s_lshl_b32 s57, s50, 8
    s_add_u32 s56, s56, s57
    s_add_u32 s56, s56, 1024
    """)
    a(f"v_add_u32 v85, {L_RED}, v85")
    for i in range(16): a(f"v_mov_b32 v{64+i}, 0")
    a("s_waitcnt vmcnt(0)")
    a("s_barrier")
    stamp(a, 11)
    for jj in range(8): a(f"ds_read_u16_d16_hi v{32+jj}, v6 offset:{128*jj}")
    for p in range(4):
        a(f"v_lshlrev_b32 v{40+2*p}, 16, v{100+p}")
        a(f"v_and_b32 v{41+2*p}, s59, v{100+p}")
    a("s_waitcnt lgkmcnt(0)")
    for i in range(8):
        a(f"v_and_b32 v{32+i}, s59, v{32+i}")
        a(f"v_mul_f32 v{32+i}, v{32+i}, v{40+i}")
    for i in range(4): a(f"v_cvt_pk_bf16_f32 v{48+i}, v{32+2*i}, v{33+2*i}")
    a(f"buffer_store_dwordx4 v[48:51], v7, s[36:39], s64 offen {'sc1' if E('A3SC',0) else ''}")
    for ph in range(2):
        a("s_barrier")
        if ph == 0: stamp(a, 12)
        for st in range(8):
            a(f"ds_read_b128 {vr(16+4*st,4)}, v13 offset:{L_O + (8*ph+st)*1024}")
        for st in range(8):
            a(f"s_waitcnt lgkmcnt({7-st})")
            a(f"v_mfma_f32_32x32x16_bf16 v[64:79], {vr(WF+4*(8*ph+st),4)}, {vr(16+4*st,4)}, v[64:79]")
    a("s_nop 11")
    for j in range(4):
        a(f"ds_write_b128 v{80+j}, {vr(64+4*j,4)} offset:{j*1024}")
    a("""
    s_waitcnt lgkmcnt(0)
    s_barrier
    ds_read_b128 v[16:19], v85
    ds_read_b128 v[20:23], v85 offset:512
    ds_read_b128 v[24:27], v85 offset:16384
    ds_read_b128 v[28:31], v85 offset:16896
    s_waitcnt lgkmcnt(0)
    """)
    for i in range(8): a(f"v_add_f32 v{16+i}, v{16+i}, v{24+i}")
    for i in range(4): a(f"v_cvt_pk_bf16_f32 v{32+i}, v{16+2*i}, v{17+2*i}")
    a("buffer_store_dwordx4 v[32:35], v87, s[36:39], s56 offen")
    stamp(a, 13)
    endpgm(a)
    a.label("LOOPB")
    a("s_waitcnt vmcnt(0)")
    a("s_barrier")
    a("s_cmp_lg_u32 s65, 4")
    a("s_cbranch_scc1 LOOP")
    a("buffer_load_dwordx4 v[100:103], v96, s[32:35], s64 offen")
    if WFM == 1:
        for u in range(8): tile(u, u)
        a(f"v_add_u32 v{AK}, {8*2048}, v{AK}")
        a(f"v_add_u32 v{AV}, {8*2048}, v{AV}")
        a("s_add_u32 s65, s65, 2")
    a("s_branch LOOP")

    a.nopad += 1
    a.label("FALLBACK")
    a("s_mov_b32 s68, 1")
    a("s_mov_b32 s69, 0")
    a(f"v_mov_b32 v{AK}, v3")
    a(f"v_mov_b32 v31, {f32bits(float('-inf')):#x}")
    a("s_mov_b32 s65, 0")
    a.label("MAXL")
    a(f"ds_read_b128 {vr(KF,4)}, v{AK}")
    a(f"v_add_u32 v{AK}, 2048, v{AK}")
    a("s_waitcnt lgkmcnt(0)")
    a(f"v_mfma_f32_32x32x16_bf16 {vr(S,16)}, {vr(KF,4)}, {vr(Q,4)}, 0")
    a("s_nop 15")
    for i in range(0, 16, 2): a(f"v_max3_f32 v31, v31, v{S+i}, v{S+i+1}")
    a("s_add_u32 s65, s65, 1")
    a("s_cmp_lt_u32 s65, 64")
    a("s_cbranch_scc1 MAXL")
    a(f"v_mov_b32 v{S}, v31")
    a("s_nop 1")
    a(f"v_permlane32_swap_b32 v31, v{S}")
    a("s_nop 1")
    a(f"v_max_f32 v31, v31, v{S}")
    for i in range(16): a(f"v_sub_f32 v{NM+i}, 0, v31")
    a("s_branch RUN")

HEAD = '.amdgcn_target "amdgcn-amd-amdhsa--gfx950"\n.text\n'
def sizes(lines):
    txt = HEAD
    for i, (l, _) in enumerate(lines):
        if l.startswith("@@") or l.startswith(".p2align"): continue
        txt += f"ZZ{i}:\n{l}\n"
    txt += "ZZEND:\n"
    open("_sz.s", "w").write(txt)
    subprocess.run(["clang", "-x", "assembler", "-target", "amdgcn-amd-amdhsa", "-mcpu=gfx950", "-c", "_sz.s", "-o", "_sz.o"], check=True)
    out = subprocess.run(["llvm-objdump", "-t", "_sz.o"], capture_output=True, text=True).stdout
    ad = {}
    for m in re.finditer(r"^([0-9a-f]+) .* ZZ(\w+)$", out, re.M): ad[m.group(2)] = int(m.group(1), 16)
    keys = sorted((int(k) for k in ad if k != "END"))
    sz = {}
    for x, y in zip(keys, keys[1:] + ["END"]): sz[x] = ad[str(y)] - ad[str(x)]
    return sz

def layout(lines):
    NW = 8
    if not PADS:
        return "\n".join(l for l, _ in lines if not l.startswith("@@")) + "\n"
    sz = sizes(lines)
    CALL = 8*NW
    out = []; pos = 0; npad = 0; i = 0; n = len(lines)
    def emit_pad():
        nonlocal pos, npad
        prev = out[-1].strip() if out else ""
        if not (prev.startswith("s_branch") or prev.startswith("s_endpgm")):
            out.append(f"    s_branch PSK{npad}"); pos += 4
        out.append(".p2align 10"); pos = (pos + 1023)//1024*1024
        out.append(f"PAD{npad}:"); out.append(f"@@PADNEXT{npad}@@"); pos += 4
        out.append(f"PSK{npad}:")
        npad += 1
    def lsize(k, p):
        l = lines[k][0]
        if l == "@@PADCALL@@": return CALL
        if l.startswith("@@"): return 0
        if l.startswith(".p2align"):
            al = 1 << int(l.split()[1]); return (-p) % al
        return sz.get(k, 0)
    while i < n:
        l, np_ = lines[i]
        if l == "@@FORCEPAD@@":
            emit_pad(); i += 1; continue
        if not np_ and pos >= 1024:
            p = pos; k = i
            p += lsize(k, p); k += 1
            while k < n and lines[k][1] and lines[k][0] != "@@FORCEPAD@@":
                p += lsize(k, p); k += 1
            lim = (pos // 1024 + 1)*1024 if pos % 1024 else pos + 1024
            if p + 4 > lim and k < n and lines[k][0] != "@@FORCEPAD@@" and (pos % 1024) > 8:
                emit_pad()
        out.append(l); pos += lsize(i, pos); i += 1
    txt = "\n".join(out) + "\n"
    call = ""
    for w in range(NW):
        call += f"    s_cmp_eq_u32 s3, {w}\n    s_cbranch_scc1 {'PAD%d' % w if w < npad else 'PADRET'}\n"
    txt = txt.replace("@@PADCALL@@\n", call)
    for k in range(npad):
        nxt = f"PAD{k+NW}" if k + NW < npad else "PADRET"
        txt = txt.replace(f"@@PADNEXT{k}@@", f"    s_branch {nxt}")
    return txt

def main():
    ref = open(f"cdna_kernels/{NAME}.s.ref").read().split("\n")
    hdr = []
    for line in ref:
        if line.startswith(";") and "@launch" not in line: hdr.append(line)
        elif not line.startswith(";"): break
    a = Asm(); gen_entry(a); gen_loader1(a)
    cut = next(i for i, (l, _) in enumerate(a.l) if "L0: " in l or l.strip().startswith("@@CUT")) if False else None
    b = Asm(); gen_compute(b)
    c = Asm(); c.nopad = 1; stampout(c); c.label("END"); c("s_endpgm")
    k = max(i for i, (l, _) in enumerate(a.l) if l == "LQ:")
    first = a.l[:k]; second = a.l[k:]
    kf = next(i for i, (l, _) in enumerate(b.l) if l == "FALLBACK:")
    lines = first + b.l[:kf] + second + b.l[kf:] + c.l
    out = "\n".join(hdr) + "\n"
    out += f"; @launch grid=(256,1,1) block=(768,1,1) lds={L_TOTAL}\n"
    out += HEAD + layout(lines)
    out += f""".section .rodata,"a"
.p2align 6
.amdhsa_kernel {KN}
  .amdhsa_next_free_vgpr 168
  .amdhsa_next_free_sgpr 96
  .amdhsa_accum_offset 168
  .amdhsa_group_segment_fixed_size 0
  .amdhsa_kernarg_size 96
  .amdhsa_user_sgpr_count 2
  .amdhsa_user_sgpr_kernarg_segment_ptr 1
  .amdhsa_system_sgpr_workgroup_id_x 1
  .amdhsa_float_denorm_mode_32 3
.end_amdhsa_kernel
"""
    dst = sys.argv[1] if len(sys.argv) > 1 else f"cdna_kernels/{NAME}.s"
    open(dst, "w").write(out)

if __name__ == "__main__":
    main()
```

```python
import sys, math, struct, os, subprocess, re

NAME = "concat_heads__ssm_conv_h3__softmax_full_mha__prompt"
KN = NAME + "_kernel"
E = lambda n, d: int(os.environ.get(n, str(d)))
STAMP = E("STAMP", 0); DIAG = E("DIAG", 0)
F0_AT = E("F0_AT", 4); ST_AT = E("ST_AT", 5); ST_AV = E("ST_AV", 2); WF_AT = E("WF_AT", 7); PADS = E("PADS", 0); GATH = E("GATH", 2); XRP = E("XRP", 7); QST = E("QST", 8); KST = E("KST", 30); WFM = E("WFM", 1); HAT = E("HAT", 6); NON_AT = E("NON_AT", 0)

WS_QF  = 0; WS_KV = 2 << 20; WS_OF = 6 << 20; WS_XR = 8 << 20; WS_ZT = 10 << 20
WS_FL  = 12 << 20; WS_WOF = 13 << 20; WS_ST = 16 << 20; WS_SIZE = 18 << 20

L_X = 0; L_RING = 65536; L_CONV = 131072
L_XR = [L_CONV, L_CONV + 7680]
L_HE = [L_CONV + 15360 + 64, L_CONV + 15360 + 8324 + 64]
L_HO = [L_HE[0] + 4096 + 68, L_HE[1] + 4096 + 68]
L_MISC = L_CONV + 15360 + 2*8324
L_TOTAL = 163840
L_Q = 57344; L_Z = L_CONV; L_O = 4096; L_RED = 65536
L_A1 = L_CONV
L_A1S = L_CONV + 18432
L_WT = L_CONV + 26624
F_X = 0; F_W = 4; F_QX = 8; F_FULL = 0; F_FULLA = 48; F_FREE = 64; F_STG = 112; F_XRD = 116; F_C1 = 120; F_ISS = 128
F_GQ = 200; F_K1 = 184; F_K2 = 188; F_QRD = 192; F_ZD = 196; F_CONV = 176; F_P2D = 148; F_ST = 152; F_WOF = 156; F_NONCE = 160; F_HE = 168

def f32bits(x): return struct.unpack("<I", struct.pack("<f", x))[0]

class Asm:
    def __init__(self): self.l = []; self.nopad = 0
    def __call__(self, s):
        for line in s.strip("\n").split("\n"):
            if line.strip(): self.l.append(("    " + line.strip(), self.nopad))
    def label(self, n): self.l.append((n + ":", 1))
    def raw(self, s): self.l.append((s, 1))

class Cnt:
    def __init__(self, a, name, mx): self.a = a; self.ops = []; self.name = name; self.mx = mx
    def op(self, s, tag): self.a(s); self.ops.append(tag)
    def wait(self, tag):
        idx = max(i for i, t in enumerate(self.ops) if t == tag)
        n = len(self.ops) - 1 - idx
        assert n <= self.mx, n
        self.a(f"s_waitcnt {self.name}({n})")
        self.ops = self.ops[idx+1:]

def vr(b, n): return f"v[{b}:{b+n-1}]"
P_Q, P_K, P_V, P_SHK, P_SSMK, P_SSMD, P_X, P_WQKV, P_WO, P_OUT, P_DBG, P_WS = [4 + 2*i for i in range(12)]
def srd(a, d, ptr, size):
    a(f"s_mov_b32 s{d}, s{ptr}")
    a(f"s_and_b32 s{d+1}, s{ptr+1}, 0xffff")
    a(f"s_mov_b32 s{d+2}, {size}")
    a(f"s_mov_b32 s{d+3}, 0x00020000")
WS = "s[28:31]"
NST = 14
def stamp_begin(a):
    if STAMP:
        a("s_memrealtime s[72:73]")
        a("s_memtime s[76:77]")
def dstamp(a, k):
    if DIAG == 1: stamp(a, k, True)
def estamp(a, k):
    if DIAG == 2: stamp(a, k, True)
def fstamp(a, k):
    if DIAG == 3: stamp(a, k, True)
def stamp(a, k, d=False):
    if STAMP == 3:
        m = {2: 0, 4: 2, 8: 4, 9: 6, 10: 8, 12: 10, 13: 12}
        if not d and k in m:
            a("s_memrealtime s[94:95]")
            a("s_memtime s[78:79]")
            a("s_waitcnt lgkmcnt(0)")
            a(f"s_sub_u32 s{80+m[k]}, s94, s72")
            a(f"s_sub_u32 s{81+m[k]}, s78, s76")
    elif STAMP == 2:
        if not d:
            a("s_memrealtime s[94:95]")
            a("s_waitcnt lgkmcnt(0)")
            a(f"s_mov_b32 s{80+k}, s94")
    elif STAMP and (d or not DIAG or k == 0):
        a("s_memtime s[94:95]")
        a("s_waitcnt lgkmcnt(0)")
        a(f"s_sub_u32 s{80+k}, s94, s76")
def endpgm(a):
    if STAMP: a("s_branch STAMPOUT")
    else: a("s_endpgm")
def stampout(a):
    if STAMP:
        a.label("STAMPOUT")
        srd(a, 28, P_WS, WS_SIZE)
        a("s_waitcnt vmcnt(0)")
        a("s_memrealtime s[74:75]")
        a("s_memtime s[78:79]")
        a("s_waitcnt lgkmcnt(0)")
        a("s_sub_u32 s78, s78, s76")
        a("s_mov_b64 exec, 1")
        a("v_mov_b32 v4, s72")
        a("v_mov_b32 v5, s74")
        a("v_mov_b32 v6, s78")
        for k in range(NST): a(f"v_mov_b32 v{7+k}, s{80+k}")
        a("s_lshl_b32 s76, s2, 4")
        a("s_add_u32 s76, s76, s3")
        a("s_lshl_b32 s76, s76, 7")
        a(f"s_add_u32 s76, s76, {WS_ST}")
        a("v_mov_b32 v30, 0")
        for k in range(5):
            a(f"buffer_store_dwordx4 v[{4+4*k}:{7+4*k}], v30, {WS}, s76 offen offset:{16*k}")
        a("s_endpgm")

_uid = [0]
def uid(): _uid[0] += 1; return _uid[0]
def poll(a, stage, grp_sreg, mode=0, sleep=1):
    u = uid()
    if mode == 3: a(f"s_mov_b32 s62, {WS_FL + stage*16384}")
    else:
        a(f"s_lshl_b32 s62, s{grp_sreg}, 11")
        a(f"s_add_u32 s62, s62, {WS_FL + stage*16384}")
    a("s_mov_b32 s63, 0")
    if mode == 0: a("s_mov_b32 exec_hi, 0")
    a.nopad += 1
    a.label(f"POLL{u}")
    if mode == 3:
        a(f"buffer_load_dwordx4 v[60:63], v3, {WS}, s62 offen sc1")
        a(f"buffer_load_dwordx4 v[64:67], v3, {WS}, s62 offen offset:1024 sc1")
    else: a(f"buffer_load_dwordx2 v[60:61], v12, {WS}, s62 offen sc1")
    a("s_add_u32 s63, s63, 1")
    a("s_cmp_gt_u32 s63, 0x40000")
    a(f"s_cbranch_scc1 POLLX{u}")
    a("s_waitcnt vmcnt(0)")
    a("v_cmp_ne_u64 vcc, s[60:61], v[60:61]")
    if mode == 3:
        for r in (62, 64, 66):
            a(f"v_cmp_ne_u64 s[70:71], s[60:61], v[{r}:{r+1}]")
            a("s_or_b64 vcc, s[70:71], vcc")
        a(f"s_cbranch_scc0 POLLX{u}")
    else: a(f"s_cbranch_vccz POLLX{u}")
    a(f"s_sleep {sleep}")
    a(f"s_branch POLL{u}")
    a.label(f"POLLX{u}")
    a.nopad -= 1
    a("s_mov_b64 exec, -1")
def publish(a, stage, grp_sreg, slot_sreg):
    a(f"s_lshl_b32 s62, s{slot_sreg}, {3 if grp_sreg is None else 6}")
    if grp_sreg is not None:
        a(f"s_lshl_b32 s63, s{grp_sreg}, 11")
        a("s_add_u32 s62, s62, s63")
    a(f"s_add_u32 s62, s62, {WS_FL + stage*16384}")
    a("s_mov_b64 exec, 1")
    a(f"buffer_store_dwordx2 v[14:15], v13, {WS}, s62 offen sc1")
    a("s_mov_b64 exec, -1")
def nonce_lds(a, sgpr=True):
    u = uid()
    a.nopad += 1
    a.label(f"NL{u}")
    a(f"ds_read_b64 v[14:15], v1 offset:{F_NONCE}")
    a("s_waitcnt lgkmcnt(0)")
    a("v_cmp_eq_u32 vcc, 0, v14")
    a(f"s_cbranch_vccnz NL{u}")
    a.nopad -= 1
    if sgpr:
        a("v_readfirstlane_b32 s60, v14")
        a("v_readfirstlane_b32 s61, v15")
def lwait(a, vaddr, off, n, vt, pre=False, sleep=None):
    u = uid()
    a.nopad += 1
    if pre:
        a(f"v_cmp_gt_u32 vcc, {n}, v{vt}")
        a(f"s_cbranch_vccz LWX{u}")
    a.label(f"LW{u}")
    if sleep is None and pre and vt == 55: sleep = E("CSL", 0)
    if sleep: a(f"s_sleep {sleep*E('SLM',1)}")
    a(f"ds_read_b32 v{vt}, v{vaddr} offset:{off}")
    a("s_waitcnt lgkmcnt(0)")
    a(f"v_cmp_gt_u32 vcc, {n}, v{vt}")
    a(f"s_cbranch_vccnz LW{u}")
    a.label(f"LWX{u}")
    a.nopad -= 1
def lwait2(a, n):
    u = uid()
    a.nopad += 1
    a("v_min_u32 v55, v52, v53")
    a(f"v_cmp_gt_u32 vcc, {n}, v55")
    a(f"s_cbranch_vccz LWX{u}")
    a.label(f"LW{u}")
    a(f"ds_read_b64 v[52:53], v1 offset:{F_X}")
    a("s_waitcnt lgkmcnt(0)")
    a("v_min_u32 v55, v52, v53")
    a(f"v_cmp_gt_u32 vcc, {n}, v55")
    a(f"s_cbranch_vccnz LW{u}")
    a.label(f"LWX{u}")
    a.nopad -= 1
def ladd(a, vaddr, off, vone):
    a("s_mov_b64 exec, 1")
    a(f"ds_add_u32 v{vaddr}, v{vone} offset:{off}")
    a("s_mov_b64 exec, -1")
def barriers(a, n):
    for _ in range(n): a("s_barrier")

VX = 16; VW = 20; VQ = 24

def gen_entry(a):
    a.nopad += 1
    a.raw(f".globl {KN}")
    a.raw(".p2align 10")
    a.raw(f".type {KN},@function")
    a.label(KN)
    a("s_cmp_ge_u32 s2, 256")
    a("s_cbranch_scc1 END")
    stamp_begin(a)
    a("s_load_dwordx16 s[4:19], s[0:1], 0")
    a("s_load_dwordx8 s[20:27], s[0:1], 64")
    a("""
    v_lshrrev_b32 v1, 6, v0
    v_and_b32 v2, 63, v0
    v_readfirstlane_b32 s3, v1
    v_lshlrev_b32 v3, 4, v2
    s_and_b32 s48, s2, 7
    s_lshr_b32 s49, s2, 3
    s_and_b32 s50, s49, 3
    s_lshr_b32 s51, s49, 2
    s_and_b32 s52, s48, 4
    s_add_u32 s52, s52, s50
    s_and_b32 s53, s48, 3
    s_lshl_b32 s53, s53, 3
    s_add_u32 s53, s53, s51
    s_lshl_b32 s54, s48, 2
    s_add_u32 s54, s54, s50
    s_lshl_b32 s55, s50, 1
    s_add_u32 s55, s55, s51
    s_and_b32 s55, s55, 7
    s_lshl_b32 s66, s48, 5
    s_add_u32 s66, s66, s49
    """)
    a(f"v_mov_b32 v1, {L_MISC}")
    a("v_mov_b32 v54, 1")
    a("v_mov_b32 v13, 0")
    a("s_cmp_lt_u32 s3, 8")
    a("s_cbranch_scc1 CPATH")
    a("s_setprio 3")
    a("""
    v_lshrrev_b32 v4, 3, v2
    v_lshrrev_b32 v5, 4, v2
    v_and_b32 v6, 7, v2
    v_lshlrev_b32 v12, 6, v2
    s_cmp_eq_u32 s3, 8
    s_cbranch_scc1 XL0
    s_cmp_lg_u32 s3, 9
    s_cbranch_scc1 HPATH
    s_getpc_b64 s[56:57]
    s_lshl_b32 s58, s50, 13
    v_lshlrev_b32 v7, 7, v2
    v_add_u32 v7, s58, v7
    """)
    a(f"v_min_u32 v7, END - {KN} - 256, v7")
    a("global_load_dword v31, v7, s[56:57]")
    a("s_branch LQPAD")

def gen_loader1(a):
    a.label("XL0")
    a("""
    v_lshlrev_b32 v10, 4, v6
    v_lshl_add_u32 v10, v4, 10, v10
    s_lshl_b32 s63, s49, 16
    s_lshl_b32 s64, s48, 7
    s_add_u32 s63, s63, s64
    v_add_u32 v28, s63, v10
    v_subrev_u32 v10, 8192, v28
    """)
    for i in range(1, 4): a(f"v_add_u32 v{28+i}, {8192-1024}, v{28+i-1}")
    a("v_xor_b32 v7, v6, v5")
    a("v_lshlrev_b32 v7, 4, v7")
    a(f"v_lshl_add_u32 v{VX}, v4, 10, v7")
    a(f"v_xor_b32 v{VX+1}, 64, v{VX}")
    a(f"v_add_u32 v{VX+1}, {8192-1024}, v{VX+1}")
    a(f"v_add_u32 v{VX+2}, {2*(8192-1024)}, v{VX}")
    a(f"v_add_u32 v{VX+3}, {2*(8192-1024)}, v{VX+1}")
    a("""
    v_bfe_u32 v7, v2, 2, 2
    v_xor_b32 v7, v7, v5
    v_mul_u32_u24 v8, 3072, v5
    v_lshrrev_b32 v9, 1, v7
    v_lshl_add_u32 v8, v9, 10, v8
    v_and_b32 v9, 1, v7
    v_lshl_add_u32 v8, v9, 6, v8
    v_and_b32 v9, 3, v2
    """)
    a(f"v_lshl_add_u32 v{VW}, v9, 4, v8")
    for i in range(1, 4): a(f"v_add_u32 v{VW+i}, {4*3072 - 1024}, v{VW+i-1}")
    a("""
    s_lshl_b32 s62, s48, 9
    s_lshl_b32 s57, s53, 16
    s_lshl_b32 s58, s52, 7
    s_mov_b32 s59, s55
    s_mov_b32 s56, 0
    s_mov_b32 s63, 32768
    """)
    a(f"s_mov_b32 m0, {L_A1}")
    a("s_waitcnt lgkmcnt(0)")
    stamp(a, 0)
    srd(a, 40, P_K, 2048*512*2)
    a("buffer_load_dwordx4 v10, s[40:43], 0 offen lds")
    for n, base in enumerate((1024, 9216)):
        if n:
            a(f"s_mov_b32 s40, s{P_V}")
            a(f"s_and_b32 s41, s{P_V+1}, 0xffff")
        for g in range(2):
            a(f"s_mov_b32 m0, {L_A1 + base + 4096*g}")
            a("s_nop 0")
            for i in range(4): a(f"buffer_load_dwordx4 v{28+i}, s[40:43], {'s63' if g else '0'} offen offset:{1024*i} lds")
    a(f"s_mov_b32 s40, s{P_SHK}")
    a(f"s_and_b32 s41, s{P_SHK+1}, 0xffff")
    a("s_movk_i32 s42, 4096")
    a(f"s_mov_b32 m0, {L_A1 + 17408}")
    a("s_mov_b32 exec_hi, 0")
    a("buffer_load_dwordx4 v3, s[40:43], s62 offen lds")
    a("s_mov_b64 exec, -1")
    srd(a, 32, P_X, 2048*512*2)
    srd(a, 36, P_WQKV, 512*1536*2)
    a("s_branch XLB")
    a.label("XL")
    a("s_cmp_eq_u32 s56, 2")
    a("s_cbranch_scc1 XLB")
    a("s_cmp_eq_u32 s56, 1")
    a("s_cbranch_scc0 XLC")
    a("s_waitcnt vmcnt(24)")
    a.label("XLC")
    a("s_waitcnt vmcnt(48)")
    a("s_barrier")
    a.label("XLB")
    a("s_lshl_b32 s67, s56, 13")
    a("s_mov_b32 m0, s67")
    a("s_lshl_b32 s64, s59, 7")
    a("s_add_u32 s64, s64, s57")
    for i in range(4): a(f"buffer_load_dwordx4 v{VX+i}, s[32:35], s64 offen offset:{1024*i} lds")
    a("s_add_u32 m0, s67, 4096")
    a("s_add_u32 s64, s64, 32768")
    for i in range(4): a(f"buffer_load_dwordx4 v{VX+i}, s[32:35], s64 offen offset:{1024*i} lds")
    a("s_and_b32 s67, s56, 3")
    a("s_lshl_b32 s67, s67, 14")
    a(f"s_add_u32 m0, s67, {L_RING}")
    a(f"s_mul_i32 s65, s59, {64*3072}")
    a("s_add_u32 s65, s65, s58")
    a("s_add_u32 s65, s65, 1024")
    for G in range(4):
        if G:
            a("s_add_u32 m0, m0, 4096")
            a(f"s_add_u32 s65, s65, {16*3072}")
        for i in range(4): a(f"buffer_load_dwordx4 v{VW+i}, s[36:39], s65 offen offset:{1024*i} lds")
    a("s_cmp_eq_u32 s56, 3")
    a("s_addc_u32 s59, s59, 2")
    a("s_and_b32 s59, s59, 7")
    a("s_add_u32 s56, s56, 1")
    a("s_cmp_lt_u32 s56, 8")
    a("s_cbranch_scc1 XL")
    a("s_branch LQ2")
    a.nopad -= 1
    a.label("LQ")
    a.label("LQPAD")
    a("s_branch HPATH")
    a.label("LQ2")
    a("""
    v_bfe_u32 v10, v2, 4, 1
    v_lshlrev_b32 v10, 2, v10
    v_xor_b32 v10, v10, v6
    v_lshlrev_b32 v10, 4, v10
    v_mul_u32_u24 v8, 3072, v4
    """)
    a(f"v_add_u32 v{VQ}, v8, v10")
    for i in range(1, 4): a(f"v_add_u32 v{VQ+i}, {8*3072 - 1024}, v{VQ+i-1}")
    def sig(n, vm):
        a(f"v_mov_b32 v9, {n}")
        a(f"s_waitcnt vmcnt({vm})")
        a(f"ds_write_b32 v1, v9 offset:{F_W}")
    a("s_mov_b32 s56, 0")
    a("s_mov_b32 s59, s55")
    a(f"s_mov_b32 s67, {L_RING}")
    a.nopad += 1
    a.label("LQL")
    a("s_cmp_eq_u32 s56, 0")
    a("s_cbranch_scc1 LQW")
    a("s_cmp_eq_u32 s56, 1")
    a("s_cbranch_scc1 LQV")
    a("s_waitcnt vmcnt(32)")
    a.label("LQV")
    a("s_waitcnt vmcnt(40)")
    a.label("LQW")
    a("s_waitcnt vmcnt(48)")
    a("s_barrier")
    for hf in range(2):
        a("s_and_b32 s59, s59, 7")
        a(f"s_mul_i32 s65, s59, {64*3072}")
        a("s_add_u32 s65, s65, s58")
        for g in range(2):
            a(f"s_add_u32 m0, s67, {hf*8192 + g*4096}")
            a(f"s_add_u32 s65, s65, {32*3072*g}")
            for i in range(4):
                a(f"buffer_load_dwordx4 v{VQ+i}, s[36:39], s65 offen offset:{1024*i} lds")
        if hf == 0: a("s_add_u32 s59, s59, 2")
    a("s_cmp_eq_u32 s56, 1")
    a("s_addc_u32 s59, s59, 2")
    a("s_add_u32 s67, s67, 16384")
    a("s_add_u32 s56, s56, 1")
    a("s_cmp_lt_u32 s56, 4")
    a("s_cbranch_scc1 LQL")
    a.nopad -= 1
    a("s_mov_b64 exec, 1")
    a(f"ds_write_b32 v1, v54 offset:{F_QX}")
    sig(1, 32); sig(2, 16); sig(3, 0)
    a("s_mov_b64 exec, -1")
    stamp(a, 5)
    srd(a, 28, P_WS, WS_SIZE)
    nonce_lds(a)
    lwait(a, 1, F_ST, 8, 61, sleep=1)
    a.label("L0B")
    stamp(a, 7)
    a(f"s_sleep {E('P1S', 8)}")
    poll(a, 1, 48)
    stamp(a, 8)
    a("s_lshl_b32 s64, s54, 6")
    a("s_lshl_b32 s65, s51, 3")
    a("s_add_u32 s64, s64, s65")
    a("s_lshl_b32 s64, s64, 10")
    a(f"s_add_u32 s64, s64, {WS_QF}")
    a("s_lshl_b32 s65, s54, 17")
    a(f"s_add_u32 s65, s65, {WS_KV}")
    def linloop(ldsb, sreg, n4, lab):
        a(f"s_mov_b32 m0, {ldsb}")
        a("s_nop 0")
        a.nopad += 1
        a.label(lab)
        for i in range(4):
            a(f"buffer_load_dwordx4 v3, {WS}, s{sreg} offen offset:{1024*i} sc1 lds")
        a("s_add_u32 m0, m0, 4096")
        a(f"s_add_u32 s{sreg}, s{sreg}, 4096")
        a(f"s_cmp_lt_u32 m0, {ldsb + 4096*n4}")
        a(f"s_cbranch_scc1 {lab}")
        a.nopad -= 1
    linloop(L_Q, 64, 2, "KVL0")
    linloop(0, 65, 9, "KVL1")
    a("s_waitcnt vmcnt(16)")
    a("s_barrier")
    stamp(a, 9)
    linloop(36864, 65, 5, "KVL2")
    a("s_waitcnt vmcnt(20)")
    a(f"ds_write_b32 v1, v54 offset:{F_K1}")
    lwait(a, 1, F_QRD, 8, 61)
    linloop(57344, 65, 18, "KVL3")
    a("s_waitcnt vmcnt(0)")
    ladd(a, 1, F_K2, 54)
    stamp(a, 10)
    a("s_lshl_b32 s64, s48, 3")
    a("s_add_u32 s64, s64, s51")
    a("s_lshl_b32 s64, s64, 15")
    a(f"s_add_u32 s64, s64, {WS_OF}")
    a("s_lshl_b32 s62, s48, 3")
    a("s_add_u32 s62, s62, s51")
    a("s_lshl_b32 s62, s62, 11")
    a(f"s_add_u32 s62, s62, {WS_FL + 3*16384}")
    a("s_mov_b32 s56, 0x11111111")
    a("s_mov_b32 s57, 0")
    a("s_mov_b32 s63, 0")
    a(f"v_add_u32 v8, {F_GQ}, v1")
    a("s_barrier")
    stamp(a, 11)
    a.nopad += 1
    a.label("TP")
    a("s_mov_b32 exec_hi, 0")
    a(f"buffer_load_dwordx2 v[60:61], v12, {WS}, s62 offen sc1")
    a("s_waitcnt vmcnt(1)")
    a.label("TPA")
    a("s_cmp_eq_u32 s57, 0")
    a("s_cbranch_scc1 TPB")
    a("s_ff1_i32_b32 s58, s57")
    a("s_bitset0_b32 s57, s58")
    a("s_add_u32 s58, s58, 4")
    a("v_mov_b32 v9, s58")
    a("ds_write_b32 v8, v9")
    a("v_add_u32 v8, 4, v8")
    a("s_branch TPA")
    a.label("TPB")
    a("s_cmp_eq_u32 s56, 0")
    a("s_cbranch_scc1 TPX")
    a("s_waitcnt vmcnt(0)")
    a("v_cmp_eq_u64 vcc, s[60:61], v[60:61]")
    a("s_mov_b64 exec, -1")
    a("s_add_u32 s63, s63, 1")
    a("s_cmp_gt_u32 s63, 0x40000")
    a("s_cselect_b32 s58, -1, vcc_lo")
    a("s_lshr_b32 s59, s58, 1")
    a("s_and_b32 s58, s58, s59")
    a("s_lshr_b32 s59, s58, 2")
    a("s_and_b32 s58, s58, s59")
    a("s_and_b32 s57, s58, s56")
    a("s_andn2_b32 s56, s56, s57")
    a("s_mov_b32 s59, s57")
    a.label("TPC")
    a("s_cmp_eq_u32 s59, 0")
    a("s_cbranch_scc1 TP")
    a("s_ff1_i32_b32 s58, s59")
    a("s_bitset0_b32 s59, s58")
    a("s_lshl_b32 s58, s58, 10")
    a(f"s_add_u32 m0, s58, {L_O}")
    a("s_add_u32 s65, s64, s58")
    for i in range(4):
        a(f"buffer_load_dwordx4 v3, {WS}, s65 offen offset:{1024*i} sc1 lds")
    a("s_branch TPC")
    a.label("TPX")
    a.nopad -= 1
    a("s_mov_b64 exec, -1")
    stamp(a, 13)
    a("s_cmp_lg_u32 s2, 0")
    a("s_cbranch_scc1 HEND")
    srd(a, 44, P_DBG, 256)
    a("v_mov_b32 v14, 0")
    a("v_mov_b32 v15, 0")
    a("s_mov_b64 exec, 1")
    a("buffer_store_dwordx2 v[14:15], v13, s[44:47], 0 offen sc1")
    a("s_mov_b64 exec, -1")
    endpgm(a)

    a.label("HPATH")
    a("s_memrealtime s[60:61]")
    a.label("HP3")
    a("s_waitcnt lgkmcnt(0)")
    stamp(a, 0)
    srd(a, 28, P_WS, WS_SIZE)
    srd(a, 40, P_SSMK, 512*2048*2)
    a("s_xor_b32 s56, s3, 11")
    a("s_or_b32 s56, s56, s2")
    a("s_cmp_lg_u32 s56, 0")
    a("s_cbranch_scc1 HP4")
    srd(a, 44, P_DBG, 256)
    a("s_or_b32 s60, s60, 1")
    a("v_mov_b32 v14, s60")
    a("v_mov_b32 v15, s61")
    a("s_mov_b64 exec, 1")
    a("buffer_store_dwordx2 v[14:15], v13, s[44:47], 0 offen sc1")
    a("s_mov_b64 exec, -1")
    a.label("HP4")
    a("s_cmp_eq_u32 s3, 10")
    a("s_cbranch_scc1 H10")
    a("s_cmp_eq_u32 s3, 11")
    a("s_cbranch_scc1 H11")
    a("v_lshl_add_u32 v8, v2, 2, v1")
    a("ds_write_b32 v8, v13")
    srd(a, 44, P_DBG, 256)
    a("s_waitcnt lgkmcnt(0)")
    barriers(a, 1 + NON_AT)
    a("buffer_load_dwordx2 v[14:15], v13, s[44:47], 0 offen sc1")
    barriers(a, F0_AT + 1 - NON_AT)
    a("s_mov_b32 s63, 0")
    a.nopad += 1
    a.label("LD2P")
    a("s_waitcnt vmcnt(0)")
    a("v_cmp_ne_u32 vcc, 0, v14")
    a("s_cbranch_vccnz LD2Q")
    a("s_add_u32 s63, s63, 1")
    a("v_mov_b32 v14, 1")
    a("s_cmp_gt_u32 s63, 0x40000")
    a("s_cbranch_scc1 LD2Q")
    a("buffer_load_dwordx2 v[14:15], v13, s[44:47], 0 offen sc1")
    a("s_branch LD2P")
    a.label("LD2Q")
    a.nopad -= 1
    publish(a, 0, 48, 49)
    a(f"ds_write_b64 v1, v[14:15] offset:{F_NONCE}")
    a("s_waitcnt lgkmcnt(0)")
    stamp(a, 1)
    a("v_readfirstlane_b32 s60, v14")
    a("v_readfirstlane_b32 s61, v15")
    a("s_lshl_b32 s56, s50, 1")
    barriers(a, 8 - F0_AT)
    if WFM == 0:
        lwait(a, 1, F_QX, 1, 61)
        poll(a, 0, 56, mode=1, sleep=2)
        ladd(a, 1, F_CONV, 54)
    stamp(a, 2)
    lwait(a, 1, F_ST, 8, 61, sleep=1)
    publish(a, 1, 52, 53)
    a("s_barrier")
    lwait(a, 1, F_K1, 1, 61, sleep=4)
    poll(a, 0, 56, mode=1, sleep=2)
    ladd(a, 1, F_K2, 54)
    endpgm(a)
    a.label("H11")
    srd(a, 40, P_WO, 512*512*2)
    a("""
    v_lshlrev_b32 v16, 10, v4
    v_lshl_add_u32 v16, v6, 4, v16
    s_lshl_b32 s56, s49, 14
    s_lshl_b32 s57, s48, 7
    s_add_u32 s56, s56, s57
    s_add_u32 s57, s56, 7168
    v_lshrrev_b32 v17, 5, v2
    v_bfe_u32 v18, v2, 2, 2
    v_lshl_add_u32 v17, v17, 2, v18
    v_lshlrev_b32 v17, 7, v17
    v_bfe_u32 v18, v2, 4, 1
    v_lshl_add_u32 v17, v18, 5, v17
    v_and_b32 v18, 3, v2
    v_lshl_add_u32 v17, v18, 3, v17
    s_lshl_b32 s58, s48, 16
    s_lshr_b32 s59, s49, 1
    s_lshl_b32 s59, s59, 10
    s_add_u32 s58, s58, s59
    s_and_b32 s59, s49, 1
    s_lshl_b32 s59, s59, 9
    s_add_u32 s58, s58, s59
    v_and_b32 v19, 15, v2
    v_lshlrev_b32 v19, 4, v19
    v_lshrrev_b32 v18, 5, v2
    v_lshl_add_u32 v19, v18, 8, v19
    v_bfe_u32 v18, v2, 4, 1
    v_lshl_add_u32 v19, v18, 14, v19
    """)
    a(f"v_add_u32 v17, {L_WT}, v17")
    a(f"s_add_u32 s58, s58, {WS_WOF}")
    a("s_add_u32 s59, s58, 32768")
    a(f"s_mov_b32 m0, {L_WT}")
    a("s_nop 0")
    a("buffer_load_dwordx4 v16, s[40:43], s56 offen lds")
    a("buffer_load_dwordx4 v16, s[40:43], s57 offen offset:1024 lds")
    barriers(a, 2)
    a("s_waitcnt vmcnt(0)")
    a("ds_read_b64_tr_b16 v[20:21], v17")
    a("ds_read_b64_tr_b16 v[22:23], v17 offset:1024")
    a("ds_read_b64_tr_b16 v[24:25], v17 offset:64")
    a("ds_read_b64_tr_b16 v[26:27], v17 offset:1088")
    a("s_waitcnt lgkmcnt(0)")
    a(f"buffer_store_dwordx4 v[20:23], v19, {WS}, s58 offen sc1")
    a(f"buffer_store_dwordx4 v[24:27], v19, {WS}, s59 offen sc1")
    srd(a, 40, P_SSMK, 512*2048*2)
    a("s_lshl_b32 s64, s66, 13")
    a("v_and_b32 v8, 1, v2")
    a("v_mul_u32_u24 v8, 8324, v8")
    a(f"v_add_u32 v8, {L_HE[0]}, v8")
    for n in range(1, 9):
        if n == F0_AT: a("s_waitcnt vmcnt(0)")
        a("s_barrier")
        if n == HAT:
            for q in range(2):
                a(f"s_mov_b32 m0, {L_HE[q]}")
                a(f"s_add_u32 s65, s64, {4096*q}")
                for i in range(4):
                    a(f"buffer_load_dwordx4 v3, s[40:43], s65 offen offset:{1024*i} lds")
    lwait(a, 1, F_QX, 1, 62)
    for q in (1, 0):
        a(f"s_mov_b32 m0, {L_HO[q]}")
        a(f"s_add_u32 s65, s64, {4096*q + 2}")
        for i in range(4):
            a(f"buffer_load_dwordx4 v3, s[40:43], s65 offen offset:{1024*i} lds")
    a("s_waitcnt vmcnt(8)")
    a("ds_read_b32 v9, v8")
    a("s_waitcnt lgkmcnt(0)")
    a("v_lshlrev_b32 v9, 16, v9")
    a("s_mov_b64 exec, 3")
    a(f"ds_write_b32 v8, v9 offset:{L_HO[0] - L_HE[0] - 4}")
    a("s_mov_b64 exec, -1")
    a("s_waitcnt vmcnt(4) lgkmcnt(0)")
    ladd(a, 1, F_CONV + 4, 54)
    a("s_waitcnt vmcnt(0)")
    ladd(a, 1, F_CONV, 54)
    stamp(a, 1)
    endpgm(a)

    a.label("H10")
    VXR = 48
    for i in range(5):
        a(f"v_add_u32 v8, {64*i}, v2")
        a("v_mul_u32_u24 v9, 205, v8")
        a("v_lshrrev_b32 v9, 10, v9")
        a("v_mul_u32_u24 v11, 5, v9")
        a("v_sub_u32 v8, v8, v11")
        a("v_min_u32 v8, 3, v8")
        a("v_lshlrev_b32 v8, 4, v8")
        a(f"v_lshl_add_u32 v{VXR+i}, v9, 6, v8")
    for i in range(4): a(f"v_mov_b32 v{32+i}, 0")
    a("s_lshl_b32 s64, s66, 13")
    def hdma():
        for q in range(2):
            a(f"s_mov_b32 m0, {L_HE[q]}")
            a(f"s_add_u32 s65, s64, {4096*q}")
            for i in range(4):
                a(f"buffer_load_dwordx4 v3, s[40:43], s65 offen offset:{1024*i} lds")
    barriers(a, 3)
    for q in range(2):
        a(f"v_add_u32 v8, {L_XR[q]}, v3")
        a("ds_write_b128 v8, v[32:35] offset:5120")
        a("ds_write_b128 v8, v[32:35] offset:6144")
        a("s_mov_b32 exec_hi, 0")
        a("ds_write_b128 v8, v[32:35] offset:7168")
        a("s_mov_b64 exec, -1")
    a("v_lshlrev_b32 v8, 2, v2")
    a(f"v_add_u32 v8, {L_HE[0] - 64}, v8")
    a("s_mov_b64 exec, 0xffff")
    a("ds_write_b32 v8, v32")
    a(f"ds_write_b32 v8, v32 offset:{L_HO[0] - L_HE[0] - 4}")
    a(f"ds_write_b32 v8, v32 offset:{L_HE[1] - L_HE[0]}")
    a(f"ds_write_b32 v8, v32 offset:{L_HO[1] - L_HE[0] - 4}")
    a("s_mov_b64 exec, -1")
    a("s_lshl_b32 s62, s48, 11")
    a(f"s_add_u32 s62, s62, {WS_FL}")
    for n in range(2, 9):
        a("s_barrier")
        if n == F0_AT + 1: nonce_lds(a)
        if n == XRP:
            a("s_mov_b32 exec_hi, 0")
            a(f"buffer_load_dwordx2 v[60:61], v12, {WS}, s62 offen sc1")
            a("s_mov_b64 exec, -1")
    lwait(a, 1, F_QX, 1, 62)
    a("s_waitcnt vmcnt(0)")
    a("s_mov_b32 exec_hi, 0")
    a("v_cmp_ne_u64 vcc, s[60:61], v[60:61]")
    a("s_mov_b64 exec, -1")
    a("s_cbranch_vccz F0OK")
    stamp(a, 6)
    poll(a, 0, 48, sleep=E('F0_PS', 2))
    a.label("F0OK")
    stamp(a, 1)
    a(f"s_add_u32 s64, s64, {WS_XR}")
    for q in (1, 0):
        a(f"s_add_u32 s65, s64, {4096*q}")
        for i in range(5):
            a(f"s_mov_b32 m0, {L_XR[q] + 1024*i}")
            a("s_nop 0")
            a(f"buffer_load_dwordx4 v{VXR+i}, {WS}, s65 offen sc1 lds")
    a("s_waitcnt vmcnt(5)")
    ladd(a, 1, F_CONV + 4, 54)
    a("s_waitcnt vmcnt(0)")
    ladd(a, 1, F_CONV, 54)
    stamp(a, 2)
    a("s_barrier")
    lwait(a, 1, F_ZD, 8, 61, sleep=16)
    publish(a, 2, 48, 49)
    a("s_sleep 40")
    poll(a, 2, 48, sleep=8)
    a("s_lshl_b32 s64, s48, 18")
    a("s_lshl_b32 s65, s49, 7")
    a("s_add_u32 s64, s64, s65")
    a(f"s_add_u32 s64, s64, {WS_ZT}")
    for i in range(8):
        a(f"v_xor_b32 v8, {i}, v6")
        a("v_lshlrev_b32 v8, 4, v8")
        a("v_lshl_add_u32 v8, v4, 12, v8")
        a(f"s_mov_b32 m0, {L_Z + 1024*i}")
        a("s_nop 0")
        a(f"buffer_load_dwordx4 v8, {WS}, s64 offen sc1 lds")
        a("s_add_u32 s64, s64, 32768")
    a("s_waitcnt vmcnt(0)")
    stamp(a, 4)
    a.label("HEND")
    endpgm(a)

def gen_compute(a):
    a.label("CPATH")
    a.label("C_NN")
    a("""
    v_and_b32 v4, 31, v2
    v_lshrrev_b32 v5, 5, v2
    v_bfe_u32 v63, v2, 1, 3
    v_xor_b32 v63, v63, v5
    s_and_b32 s56, s3, 1
    s_lshl_b32 s56, s56, 12
    v_lshlrev_b32 v61, 7, v4
    v_add_u32 v61, s56, v61
    """)
    for st in range(4):
        a(f"v_xor_b32 v60, {2*st}, v63")
        a(f"v_lshl_add_u32 v{56+st}, v60, 4, v61")
    a("""
    v_bfe_u32 v61, v2, 2, 2
    v_lshl_add_u32 v62, v5, 3, v61
    v_lshlrev_b32 v60, 8, v62
    v_bfe_u32 v63, v2, 4, 1
    v_lshl_add_u32 v60, v63, 5, v60
    v_and_b32 v63, 3, v2
    v_lshl_add_u32 v60, v63, 3, v60
    s_lshr_b32 s56, s3, 1
    v_xor_b32 v63, s56, v61
    v_lshl_add_u32 v60, v63, 6, v60
    """)
    a(f"v_add_u32 v60, {L_RING}, v60")
    for i in range(32): a(f"v_mov_b32 v{64+i}, 0")
    a("""
    s_lshl_b32 s56, s52, 2
    s_and_b32 s57, s3, 2
    s_add_u32 s56, s56, s57
    s_lshl_b32 s56, s56, 6
    s_lshl_b32 s57, s53, 1
    s_add_u32 s56, s56, s57
    s_and_b32 s57, s3, 1
    s_add_u32 s64, s56, s57
    s_lshl_b32 s56, s64, 11
    s_mov_b32 s59, 0xffff0000
    """)
    a("s_waitcnt lgkmcnt(0)")
    stamp(a, 0)
    a("v_lshlrev_b32 v11, 4, v4")
    a(f"v_add_u32 v11, {L_A1 + 17408}, v11")
    srd(a, 28, P_WS, WS_SIZE)
    srd(a, 32, P_Q, 2048*512*2)
    srd(a, 36, P_OUT, 2048*1024*2)
    a(f"s_lshl_b32 s67, s66, 2")
    a(f"s_load_dword s68, s[{P_SSMD}:{P_SSMD+1}], s67")
    a("""
    s_lshl_b32 s57, s3, 10
    v_lshlrev_b32 v10, 9, v5
    v_lshl_add_u32 v10, v4, 2, v10
    v_add_u32 v10, s57, v10
    v_add_u32 v0, s57, v3
    s_sub_u32 s57, 7, s3
    v_and_b32 v12, 7, v4
    v_xor_b32 v12, s57, v12
    v_lshlrev_b32 v12, 4, v12
    v_lshl_add_u32 v12, v4, 8, v12
    v_lshlrev_b32 v9, 3, v5
    v_sub_u32 v12, v12, v9
    s_lshl_b32 s57, s3, 2
    v_lshrrev_b32 v8, 4, v2
    v_add_u32 v8, s57, v8
    v_xor_b32 v8, v8, v2
    v_and_b32 v8, 7, v8
    v_lshlrev_b32 v8, 4, v8
    v_lshrrev_b32 v9, 3, v2
    v_lshl_add_u32 v8, v9, 12, v8
    s_lshl_b32 s65, s48, 18
    s_lshl_b32 s57, s3, 15
    s_add_u32 s65, s65, s57
    s_sub_u32 s57, 31, s49
    s_lshl_b32 s57, s57, 7
    s_add_u32 s65, s65, s57
    v_mov_b32 v54, 1
    """)
    a(f"v_add_u32 v10, {L_A1}, v10")
    a(f"v_add_u32 v12, {L_A1S + 8}, v12")
    a(f"v_add_u32 v0, {L_A1S}, v0")
    a(f"s_add_u32 s65, s65, {WS_XR}")
    a("""
    v_and_b32 v7, 0x33, v2
    v_bfe_u32 v6, v2, 2, 1
    v_lshl_or_b32 v7, v6, 3, v7
    v_bfe_u32 v6, v2, 3, 1
    v_lshl_or_b32 v7, v6, 2, v7
    v_lshlrev_b32 v7, 4, v7
    v_lshlrev_b32 v61, 7, v62
    v_bfe_u32 v63, v2, 4, 1
    v_lshl_add_u32 v61, v63, 5, v61
    v_lshlrev_b32 v9, 17, v63
    v_and_b32 v63, 3, v2
    v_lshl_add_u32 v61, v63, 3, v61
    v_bfe_u32 v63, v2, 3, 1
    s_lshr_b32 s58, s3, 1
    v_xor_b32 v63, s58, v63
    v_lshl_add_u32 v61, v63, 6, v61
    v_lshl_add_u32 v9, v5, 8, v9
    v_and_b32 v6, 15, v2
    v_lshl_add_u32 v9, v6, 4, v9
    """)
    a(f"v_add_u32 v61, {L_RING}, v61")
    a(f"s_add_u32 s56, s56, {WS_KV}")
    a("s_add_u32 s57, s56, 131072")
    a("s_barrier")
    a("ds_read_b128 v[140:143], v11")
    stamp(a, 1)
    dstamp(a, 13)
    KR = 128; VR = 135; SK = 140; KF = 144; TAP = 152; KVv = 156; KS = 160; OUT = 164
    for r in range(7): a(f"ds_read_b32 v{KR+r}, v10 offset:{(5+r)*128}")
    for r in range(4): a(f"ds_read_b32 v{VR+r}, v10 offset:{9216 + r*128}")
    a("s_waitcnt lgkmcnt(0)")
    estamp(a, 5)
    for c in range(2):
        def unpack(dst, src, hi):
            if hi: a(f"v_and_b32 v{dst}, s59, v{src}")
            else:  a(f"v_lshlrev_b32 v{dst}, 16, v{src}")
        for r in range(7): unpack(KF + r, KR + r, c)
        for j in range(4): unpack(TAP + j, SK + 2*c + (j >> 1), j & 1)
        for r in range(4): unpack(KVv + r, VR + r, c)
        for r in range(4): a(f"v_mul_f32 v{KS+r}, v{KF+r}, v{TAP+3}")
        for r in range(4): a(f"v_fmac_f32 v{KS+r}, v{KF+r+1}, v{TAP+2}")
        for r in range(4): a(f"v_fmac_f32 v{KS+r}, v{KF+r+2}, v{TAP+1}")
        for r in range(4): a(f"v_fmac_f32 v{KS+r}, v{KF+r+3}, v{TAP+0}")
        for r in range(4): a(f"v_mul_f32 v{KVv+r}, v{KVv+r}, v{KS+r}")
        o = OUT + 2*c
        a(f"v_cvt_pk_bf16_f32 v{o}, v{KVv+3}, v{KVv+2}")
        a(f"v_cvt_pk_bf16_f32 v{o+1}, v{KVv+1}, v{KVv}")
        a(f"ds_write_b64 v12, {vr(o,2)} offset:{128*c}")
        estamp(a, 6 + c)
    a("s_waitcnt lgkmcnt(0)")
    a("s_cmp_ge_u32 s3, 4")
    a("s_cbranch_scc1 VPATH")
    FS = [16, 96]
    def p1_reads(c):
        xo = c*8192; wo = (c & 3)*16384
        for st in range(4):
            b = FS[c & 1] + 8*st
            a(f"ds_read_b128 {vr(b,4)}, v{56+st} offset:{xo}")
            a(f"ds_read_b64_tr_b16 {vr(b+4,2)}, v60 offset:{wo + 16*st*256}")
            a(f"ds_read_b64_tr_b16 {vr(b+6,2)}, v60 offset:{wo + (16*st+4)*256}")
    def p1_mfma(c, isv):
        for st in range(4):
            b = FS[c & 1] + 8*st
            x = vr(b,4); w = vr(b+4,4)
            if isv: a(f"v_mfma_f32_32x32x16_bf16 v[64:79], {x}, {w}, v[64:79]")
            else:   a(f"v_mfma_f32_32x32x16_bf16 v[64:79], {w}, {x}, v[64:79]")
    def pass1(isv):
        for c in range(8):
            if c == F0_AT: a("s_waitcnt vmcnt(0)")
            a("s_barrier")
            dstamp(a, 1 + c)
            if c in (0, 4): stamp(a, 2 + c//4)
            if c == 0: a("ds_read_b128 v[48:51], v0")
            p1_reads(c)
            if c: p1_mfma(c - 1, isv)
            else:
                a("s_waitcnt lgkmcnt(12)")
                a(f"buffer_store_dwordx4 v[48:51], v8, {WS}, s65 offen sc1")
            a("s_waitcnt lgkmcnt(0)")
        a("s_barrier")
    pass1(False)
    P2B = [16, 24, 32, 40, 128, 136]
    lg2 = Cnt(a, "lgkmcnt", 15)
    def p2_read1(n):
        j = n >> 3; st = n & 7
        b = P2B[n % 6]
        if st == 0 and j:
            u = uid()
            lg2.wait(f"f{j}")
            a.nopad += 1
            a(f"v_cmp_gt_u32 vcc, {j}, v55")
            a(f"s_cbranch_vccz P2X{u}")
            a.label(f"P2W{u}")
            a(f"ds_read_b32 v55, v1 offset:{F_W}")
            a("s_waitcnt lgkmcnt(0)")
            a(f"v_cmp_gt_u32 vcc, {j}, v55")
            a(f"s_cbranch_vccnz P2W{u}")
            a.label(f"P2X{u}")
            a.nopad -= 1
        lg2.op(f"ds_read_b128 {vr(b,4)}, v{56+(st&3)} offset:{(2*j + (st>>2))*8192}", f"s{n}")
        lg2.op(f"ds_read_b64_tr_b16 {vr(b+4,2)}, v61 offset:{j*16384 + (16*st)*128}", f"s{n}")
        lg2.op(f"ds_read_b64_tr_b16 {vr(b+6,2)}, v61 offset:{j*16384 + (16*st + 4)*128}", f"s{n}")
        if st == 4 and j < 3: lg2.op(f"ds_read_b32 v55, v1 offset:{F_W}", f"f{j+1}")
    a("s_setprio 2")
    dstamp(a, 9)
    for n in range(4): p2_read1(n)
    p1_mfma(7, False)
    for n in range(32):
        if f"s{n}" in lg2.ops: lg2.wait(f"s{n}")
        b = P2B[n % 6]
        a(f"v_mfma_f32_32x32x16_bf16 v[80:95], {vr(b+4,4)}, {vr(b,4)}, v[80:95]")
        if n + 4 < 32: p2_read1(n + 4)
        if n in (KST, KST + 1):
            hh = n - KST
            for p in range(4):
                a(f"v_cvt_pk_bf16_f32 v{[48,160][hh]+p}, v{64+8*hh+2*p}, v{64+8*hh+2*p+1}")
            a(f"buffer_store_dwordx4 {vr([48,160][hh],4)}, v7, {WS}, s{56+hh} offen sc1")
    ladd(a, 1, F_P2D, 54)
    qs = f32bits(0.25 * math.log2(math.e))
    a(f"s_mov_b32 s58, {qs:#x}")
    a("s_lshl_b32 s56, s64, 10")
    a(f"s_add_u32 s56, s56, {WS_QF}")
    a("s_add_u32 s57, s56, 65536")
    a("s_nop 6")
    for hh in range(2):
        for i in range(8): a(f"v_mul_f32 v{80+8*hh+i}, s58, v{80+8*hh+i}")
        for p in range(4):
            a(f"v_cvt_pk_bf16_f32 v{96+4*hh+p}, v{80+8*hh+2*p}, v{80+8*hh+2*p+1}")
        a(f"buffer_store_dwordx4 {vr(96+4*hh,4)}, v3, {WS}, s{56+hh} offen sc1")
    a("s_setprio 0")
    stamp(a, 4)
    a("s_branch WIN1")

    a.label("VPATH")
    pass1(True)
    p1_mfma(7, True)
    a("s_nop 7")
    lwait(a, 1, F_QX, 1, 55)
    for j in range(2):
        for p in range(4):
            a(f"v_cvt_pk_bf16_f32 v{16+4*j+p}, v{64+8*j+2*p}, v{64+8*j+2*p+1}")
        a(f"buffer_store_dwordx4 {vr(16+4*j,4)}, v9, {WS}, s56 offen offset:{1024 + 512*j} sc1")
    stamp(a, 4)

    a.label("WIN1")
    AL = 48; AH = 49; AB = 50
    WF = 104
    Q = 4; KF = 8; V = 12; IDX = 28; AK = 29; AV = 30; S = 32; O = 64; NM = 80
    C0 = 136; C1 = 152; CB = [104, 120]
    a("""
    s_mov_b32 s59, 0xffff0000
    s_lshr_b32 s64, s3, 2
    s_and_b32 s65, s3, 3
    v_and_b32 v6, 1, v2
    """)
    a(f"v_mul_u32_u24 v6, {L_HO[0] - 64 - (L_HE[0] - 62)}, v6")
    a(f"v_sub_u32 v6, {L_HO[0] - 64}, v6")
    a("v_lshl_add_u32 v6, v4, 1, v6")
    a("v_lshl_add_u32 v6, v5, 4, v6")
    a("s_mul_i32 s56, s64, 8324")
    a("s_lshl_b32 s57, s65, 9")
    a("s_add_u32 s56, s56, s57")
    a(f"v_add_u32 v{AL}, s56, v6")
    a(f"v_add_u32 v{AH}, 2048, v{AL}")
    a("v_sub_u32 v6, 31, v4")
    a("v_mul_u32_u24 v6, 80, v6")
    a("v_lshl_add_u32 v6, v5, 4, v6")
    a("s_mul_i32 s56, s64, 7680")
    a("s_mul_i32 s57, s65, 640")
    a("s_add_u32 s57, s56, s57")
    a(f"s_add_u32 s57, s57, {L_XR[0]}")
    a(f"v_add_u32 v{AB}, s57, v6")
    for i in range(32): a(f"v_mov_b32 v{C0+i}, 0")
    a("v_mov_b32 v0, 1")
    a("s_lshl_b32 s57, s64, 2")
    a("v_add_u32 v51, s57, v1")
    stamp(a, 5)
    fstamp(a, 1)
    lwait(a, 51, F_CONV, 2, 55)
    fstamp(a, 2)
    stamp(a, 6)
    def cr1(i):
        b = CB[i & 1]
        a(f"ds_read2_b32 {vr(b,2)}, v{AL} offset0:{8*i} offset1:{8*i+1}")
        a(f"ds_read2_b32 {vr(b+2,2)}, v{AL} offset0:{8*i+2} offset1:{8*i+3}")
        a(f"ds_read_b128 {vr(b+8,4)}, v{AB} offset:{(i>>1)*80 + (i&1)*32 + 2560}")
    def cr2(i):
        b = CB[i & 1]
        a(f"ds_read_b128 {vr(b+12,4)}, v{AB} offset:{(i>>1)*80 + (i&1)*32}")
        a(f"ds_read2_b32 {vr(b+4,2)}, v{AH} offset0:{8*i} offset1:{8*i+1}")
        a(f"ds_read2_b32 {vr(b+6,2)}, v{AH} offset0:{8*i+2} offset1:{8*i+3}")
    fil = Asm()
    f = fil
    f("s_lshl_b32 s57, s3, 13")
    f(f"s_add_u32 s57, s57, {L_RED}")
    f("""
    v_add_u32 v40, s57, v3
    v_xor_b32 v41, 64, v40
    v_xor_b32 v42, 128, v40
    v_xor_b32 v43, 192, v40
    v_and_b32 v6, 3, v2
    v_lshrrev_b32 v44, 2, v2
    s_and_b32 s57, s65, 1
    s_lshl_b32 s57, s57, 4
    v_add_u32 v44, s57, v44
    v_lshlrev_b32 v7, 2, v6
    v_xor_b32 v44, v44, v7
    v_lshlrev_b32 v44, 4, v44
    v_lshl_add_u32 v44, v6, 10, v44
    s_lshr_b32 s57, s65, 1
    s_lshl_b32 s57, s57, 12
    s_lshl_b32 s58, s64, 15
    s_add_u32 s57, s57, s58
    """)
    f(f"s_add_u32 s57, s57, {L_RED}")
    f("""
    v_add_u32 v44, s57, v44
    s_lshl_b32 s57, s65, 6
    s_sub_u32 s57, 255, s57
    v_sub_u32 v7, s57, v2
    v_lshrrev_b32 v45, 2, v7
    v_mul_u32_u24 v45, 80, v45
    v_and_b32 v7, 3, v7
    v_lshl_add_u32 v45, v7, 4, v45
    """)
    f(f"s_add_u32 s56, s56, {L_XR[0]}")
    f("""
    v_add_u32 v45, s56, v45
    s_lshl_b32 s57, s64, 4
    s_lshr_b32 s58, s68, s57
    s_lshl_b32 s58, s58, 16
    s_lshl_b32 s56, s66, 1
    s_add_u32 s56, s56, s64
    s_lshl_b32 s56, s56, 12
    s_lshl_b32 s57, s65, 10
    s_add_u32 s56, s56, s57
    """)
    f(f"s_add_u32 s56, s56, {WS_ZT}")
    f("""
    s_lshl_b32 s55, s50, 3
    s_add_u32 s55, s55, s3
    s_lshl_b32 s55, s55, 14
    """)
    f(f"s_add_u32 s55, s55, {WS_WOF}")
    f("""
    v_lshrrev_b32 v46, 3, v2
    v_and_b32 v7, 7, v2
    v_lshlrev_b32 v46, 10, v46
    v_lshl_add_u32 v46, v7, 4, v46
    s_lshl_b32 s64, s49, 16
    s_lshl_b32 s57, s3, 13
    s_add_u32 s64, s64, s57
    s_lshl_b32 s57, s48, 7
    s_add_u32 s64, s64, s57
    """)
    f("v_and_b32 v31, 27, v2")
    f("v_cmp_eq_u32 vcc, 16, v31")
    f("v_mov_b32 v31, 0x3f803f80")
    f(f"v_mov_b32 v{IDX}, 0xdddd")
    f(f"v_cndmask_b32 v{V}, 0, v31, vcc")
    for i in range(1, 16): f(f"v_mov_b32 v{V+i}, v{V}")
    f("s_mov_b32 s66, 0xffff")
    f("s_mov_b32 s67, 0xffff")
    f("s_mov_b32 s68, 0")
    f(f"s_mov_b32 s69, {(1<<1)|(1<<2)|(1<<8)}")
    f("s_lshl_b32 s57, s3, 10")
    f(f"s_add_u32 s57, s57, {L_Q}")
    f(f"v_add_u32 v{S}, s57, v3")
    f(f"v_mov_b32 v{AK}, v3")
    f("v_and_b32 v31, 15, v2")
    f("v_lshlrev_b32 v31, 4, v31")
    f(f"v_lshrrev_b32 v{AV}, 5, v2")
    f(f"v_lshl_add_u32 v{AV}, v{AV}, 8, v31")
    f(f"v_add_u32 v{AV}, 1024, v{AV}")
    for i in range(16): f(f"v_mov_b32 v{O+i}, 0")
    for i in range(8): f(f"v_mov_b32 v{S+16+8+i}, 0")
    f("s_mov_b32 s65, 0")
    fl = [l for l, _ in fil.l]
    per = -(-len(fl) // 42)
    def fill():
        for _ in range(per):
            if fl: a(fl.pop(0))
    cr1(0); cr2(0)
    for i in range(16):
        b = CB[i & 1]
        if i < 15: cr1(i + 1)
        a(f"s_waitcnt lgkmcnt({6 if i < 15 else 5})")
        a(f"v_mfma_f32_32x32x16_bf16 {vr(C0,16)}, {vr(b,4)}, {vr(b+8,4)}, {vr(C0,16)}")
        fill()
        a(f"s_waitcnt lgkmcnt({3 if i < 15 else 2})")
        a(f"v_mfma_f32_32x32x16_bf16 {vr(C1,16)}, {vr(b,4)}, {vr(b+12,4)}, {vr(C1,16)}")
        if i < 15: cr2(i + 1)
        if i == 14:
            a(f"ds_read_b32 v55, v1 offset:{F_P2D}")
            a("ds_read_b128 v[36:39], v45")
        fill()
        a(f"v_mfma_f32_32x32x16_bf16 {vr(C1,16)}, {vr(b+4,4)}, {vr(b+8,4)}, {vr(C1,16)}")
        fill()
        if i in (ST_AT, ST_AV):
            u = uid()
            if ST_AT != ST_AV:
                a("s_cmp_lt_u32 s3, 4")
                a(f"s_cbranch_scc{0 if i == ST_AT else 1} STS{u}")
            a("s_waitcnt vmcnt(0) lgkmcnt(0)")
            ladd(a, 1, F_ST, 0)
            a("s_waitcnt lgkmcnt(0)")
            a.label(f"STS{u}")
    assert not fl
    fstamp(a, 5)
    a("s_waitcnt lgkmcnt(0)")
    lwait(a, 1, F_P2D, 4, 55, pre=True)
    for d in range(4):
        a(f"v_lshlrev_b32 v{Q+7-2*d}, 16, v{36+d}")
        a(f"v_and_b32 v{Q+6-2*d}, s59, v{36+d}")
    for j in range(4): a(f"ds_write_b128 v{40+j}, {vr(C0+4*j,4)} offset:{j*1024}")
    for j in range(4): a(f"ds_write_b128 v{40+j}, {vr(C1+4*j,4)} offset:{4096 + j*1024}")
    a("v_mov_b32 v96, v46")
    a("s_waitcnt lgkmcnt(0)")
    fstamp(a, 8)
    ladd(a, 51, F_C1, 0)
    lwait(a, 51, F_C1, 4, 55)
    fstamp(a, 9)
    stamp(a, 7)
    R = 104
    for src in range(4):
        a(f"ds_read_b128 {vr(R+8*src,4)}, v44 offset:{src*8192}")
        a(f"ds_read_b128 {vr(R+4+8*src,4)}, v44 offset:{src*8192 + 512}")
    a("s_waitcnt lgkmcnt(6)")
    for i in range(8): a(f"v_fmac_f32 v{R+i}, s58, v{Q+i}")
    for src in range(1, 4):
        a(f"s_waitcnt lgkmcnt({6 - 2*src})")
        for i in range(8): a(f"v_add_f32 v{R+i}, v{R+i}, v{R+8*src+i}")
    for i in range(4): a(f"v_cvt_pk_bf16_f32 v{100+i}, v{R+2*i}, v{R+1+2*i}")
    a(f"buffer_store_dwordx4 v[100:103], v3, {WS}, s56 offen sc1")
    a.label("RUN1")
    stamp(a, 8)
    fstamp(a, 12)
    a("s_barrier")
    fstamp(a, 13)
    stamp(a, 9)
    a(f"ds_read_b128 {vr(Q,4)}, v{S}")
    a("s_mov_b64 exec, 1")
    a(f"ds_add_u32 v1, v0 offset:{F_QRD}")
    a("s_mov_b64 exec, -1")
    def prolog(cin):
        a(f"ds_read_b128 {vr(KF,4)}, v3")
        a("s_mov_b64 exec, s[66:67]")
        a(f"ds_read_b128 {vr(V,4)}, v{AV}")
        a(f"ds_read_b128 {vr(V+4,4)}, v{AV} offset:512")
        a(f"ds_read_b128 {vr(V+12,4)}, v{AV} offset:512")
        a("s_mov_b64 exec, -1")
        a("s_waitcnt lgkmcnt(3)")
        a(f"v_mfma_f32_32x32x16_bf16 {vr(S,16)}, {vr(KF,4)}, {vr(Q,4)}, {cin}")
        a(f"ds_read_b128 {vr(KF,4)}, v{AK} offset:2048")
        a("s_waitcnt lgkmcnt(1)")
        a("s_nop 9")
    prolog("0")
    a.nopad += 1
    a.raw(".p2align 6")
    a.label("LOOP")
    U = 8
    def tile(u, wf=None, cin="0", last=None):
        c = u & 1; p = c ^ 1
        Sc = S + 16*c; Sp = S + 16*p
        def ex(i): a(f"v_exp_f32 v{Sc+i}, v{Sc+i}")
        def wl(st):
            a(f"buffer_load_dwordx4 {vr(WF+4*st,4)}, v3, {WS}, s55 offen offset:{1024*(st&3)} sc1")
            if st % 4 == 3: a("s_add_u32 s55, s55, 4096")
        a(f"s_setprio {3-(u&3)}")
        ex(0); ex(1)
        a(f"v_smfmac_f32_32x32x32_bf16 {vr(O,16)}, {vr(V+8*p+4,4)}, {vr(Sp+8,8)}, v{IDX}")
        a("s_mov_b64 exec, s[66:67]")
        a(f"ds_read_b128 {vr(V+8*p,4)}, v{AV} offset:{(u+1)*2048}")
        a(f"ds_read_b128 {vr(V+8*p+4,4)}, v{AV} offset:{(u+1)*2048+512}")
        a("s_mov_b64 exec, -1")
        ex(2); ex(3); ex(4)
        a("s_waitcnt lgkmcnt(2)")
        a(f"v_mfma_f32_32x32x16_bf16 {vr(Sp,16)}, {vr(KF,4)}, {vr(Q,4)}, {cin}")
        a(f"ds_read_b128 {vr(KF,4)}, v{AK} offset:{(u+2)*2048}")
        if wf is not None: wl(2*wf)
        for i in range(5, 10): ex(i)
        a(f"v_smfmac_f32_32x32x32_bf16 {vr(O,16)}, {vr(V+8*c,4)}, {vr(Sc,8)}, v{IDX}")
        if wf is not None: wl(2*wf + 1)
        if last: last()
        for i in range(10, 16): ex(i)
    def lend():
        a("s_add_u32 s65, s65, 1")
        a("s_bitcmp0_b32 s69, s65")
    for u in range(U): tile(u, last=lend if u == U-1 else None)
    a(f"v_add_u32 v{AK}, {U*2048}, v{AK}")
    a(f"v_add_u32 v{AV}, {U*2048}, v{AV}")
    a("s_cbranch_scc1 LOOP")
    a(f"s_cmp_lt_u32 s65, {64//U}")
    a("s_cbranch_scc1 LOOPB")
    a.nopad -= 1
    a.label("LEXIT")
    a(f"v_smfmac_f32_32x32x32_bf16 {vr(O,16)}, {vr(V+8+4,4)}, {vr(S+16+8,8)}, v{IDX}")
    a("s_setprio 0")
    a(f"ds_read_b64 v[98:99], v1 offset:{F_NONCE}")
    a("""
    s_lshl_b32 s56, s51, 3
    s_add_u32 s56, s56, s3
    s_lshl_b32 s56, s56, 5
    s_add_u32 s56, s56, s54
    s_lshl_b32 s55, s56, 6
    s_lshl_b32 s56, s56, 10
    """)
    a(f"s_add_u32 s55, s55, {WS_FL + 3*16384}")
    a(f"s_add_u32 s64, s56, {WS_OF}")
    a(f"s_mov_b32 s56, {f32bits(2.0**100):#x}")
    a(f"s_mov_b32 s57, {f32bits(2.0**40):#x}")
    a(f"s_mov_b32 s58, {f32bits(2.0**-40):#x}")
    a("s_waitcnt lgkmcnt(0)")
    a(f"v_rcp_f32 v{AK}, v{O+8}")
    a("s_cmp_lg_u32 s68, 0")
    a("s_cbranch_scc1 FIN")
    a(f"v_add_f32 v31, abs(v{O}), abs(v{O+1})")
    for i in range(2, 8): a(f"v_add_f32 v31, v31, abs(v{O+i})")
    a("v_cmp_ngt_f32 vcc, s56, v31")
    a(f"v_cmp_ngt_f32 s[62:63], s57, v{O+8}")
    a(f"v_cmp_nlt_f32 s[70:71], s58, v{O+8}")
    a("s_or_b64 s[62:63], s[62:63], s[70:71]")
    a("s_or_b64 s[62:63], vcc, s[62:63]")
    a("s_cbranch_scc1 FALLBACK")
    a.label("FIN")
    for i in range(8): a(f"v_mul_f32 v{O+i}, v{O+i}, v{AK}")
    for i in range(4): a(f"v_cvt_pk_bf16_f32 v{KF+i}, v{O+2*i}, v{O+2*i+1}")
    a(f"buffer_store_dwordx4 {vr(KF,4)}, v3, {WS}, s64 offen sc1")
    stamp(a, 10)
    a("s_waitcnt vmcnt(1)")
    a("s_barrier")
    stamp(a, 11)
    a("""
    v_lshrrev_b32 v4, 3, v2
    v_and_b32 v5, 7, v2
    v_xor_b32 v6, s3, v5
    v_lshlrev_b32 v6, 4, v6
    v_lshl_add_u32 v6, v5, 10, v6
    v_lshl_add_u32 v6, v4, 1, v6
    """)
    a(f"v_add_u32 v6, {L_Z}, v6")
    for jj in range(8): a(f"ds_read_u16_d16_hi v{32+jj}, v6 offset:{128*jj}")
    a("""
    v_lshlrev_b32 v7, 11, v4
    v_lshl_add_u32 v7, v5, 4, v7
    s_lshl_b32 s64, s49, 17
    s_lshl_b32 s57, s3, 14
    s_add_u32 s64, s64, s57
    s_lshl_b32 s57, s48, 7
    s_add_u32 s64, s64, s57
    v_and_b32 v14, 15, v2
    v_lshrrev_b32 v15, 4, v2
    v_lshlrev_b32 v13, 4, v14
    v_lshl_add_u32 v13, v15, 9, v13
    v_and_b32 v12, 1, v15
    v_lshl_add_u32 v14, v12, 4, v14
    v_lshlrev_b32 v14, 11, v14
    v_lshrrev_b32 v15, 1, v15
    v_lshl_add_u32 v14, v15, 4, v14
    s_lshl_b32 s56, s48, 3
    s_add_u32 s56, s56, s51
    s_lshl_b32 s56, s56, 16
    s_lshl_b32 s57, s3, 5
    s_add_u32 s56, s56, s57
    s_lshl_b32 s57, s50, 8
    s_add_u32 s56, s56, s57
    s_add_u32 s56, s56, 1024
    v_mov_b32 v12, 0
    """)
    for i in range(8): a(f"v_mov_b32 v{64+i}, 0")
    for p in range(4):
        a(f"v_lshlrev_b32 v{40+2*p}, 16, v{100+p}")
        a(f"v_and_b32 v{41+2*p}, s59, v{100+p}")
    a("s_waitcnt lgkmcnt(0)")
    for i in range(8):
        a(f"v_and_b32 v{32+i}, s59, v{32+i}")
        a(f"v_mul_f32 v{32+i}, v{32+i}, v{40+i}")
    for i in range(4): a(f"v_cvt_pk_bf16_f32 v{48+i}, v{32+2*i}, v{33+2*i}")
    a("s_waitcnt vmcnt(0)")
    a("s_mov_b64 exec, 1")
    a(f"buffer_store_dwordx2 v[98:99], v12, {WS}, s55 offen sc1")
    a("s_mov_b64 exec, -1")
    a(f"buffer_store_dwordx4 v[48:51], v7, s[36:39], s64 offen {os.environ.get('A3F','')}")
    a(f"v_add_u32 v5, {F_GQ}, v1")
    a("s_mov_b32 s65, 0")
    a.nopad += 1
    a.label("GQ")
    a("ds_read_b32 v4, v5")
    a("s_waitcnt lgkmcnt(0)")
    a.label("GQ2")
    a("v_readfirstlane_b32 s57, v4")
    a("s_cmp_eq_u32 s57, 0")
    a("s_cbranch_scc1 GQ")
    a("s_lshl_b32 s58, s57, 10")
    a("v_add_u32 v6, s58, v13")
    a("ds_read_b32 v4, v5 offset:4")
    for st in range(2):
        for m in range(2):
            a(f"ds_read_b128 {vr(16+8*st+4*m,4)}, v6 offset:{2048*st + 256*m}")
    a("v_add_u32 v5, 4, v5")
    a("s_add_u32 s65, s65, 1")
    a("s_cmp_gt_u32 s57, 16")
    a("s_cbranch_scc1 GH")
    for g in (0, 1, 2):
        a(f"s_cmp_eq_u32 s57, {4*g+4}")
        a(f"s_cbranch_scc1 GC{g}")
    def gcase(g, last=False):
        a.label(f"GC{g}")
        for st in range(2):
            for m in range(2):
                a(f"s_waitcnt lgkmcnt({3 - 2*st - m})")
                a(f"v_mfma_f32_16x16x32_bf16 {vr(64+4*m,4)}, {vr(WF+4*(2*g+st),4)}, {vr(16+8*st+4*m,4)}, {vr(64+4*m,4)}")
        a("s_cmp_lt_u32 s65, 8")
        a("s_cbranch_scc1 GQ2")
        if not last: a("s_branch GE")
    gcase(3)
    a.label("GH")
    for g in (4, 5, 6):
        a(f"s_cmp_eq_u32 s57, {4*g+4}")
        a(f"s_cbranch_scc1 GC{g}")
    for g in (7, 0, 1, 2, 4, 5): gcase(g)
    gcase(6, True)
    a.label("GE")
    a.nopad -= 1
    stamp(a, 12)
    a("s_nop 7")
    for m in range(2):
        a(f"v_cvt_pk_bf16_f32 v{32+2*m}, v{64+4*m}, v{65+4*m}")
        a(f"v_cvt_pk_bf16_f32 v{33+2*m}, v{66+4*m}, v{67+4*m}")
    a("s_nop 1")
    a("v_permlane16_swap_b32 v32, v34")
    a("v_permlane16_swap_b32 v33, v35")
    a(f"buffer_store_dwordx4 v[32:35], v14, s[36:39], s56 offen {os.environ.get('OUTF','')}")
    stamp(a, 13)
    endpgm(a)
    a.label("LOOPB")
    a("s_cmp_eq_u32 s65, 2")
    a("s_cbranch_scc1 LOOPC")
    lwait(a, 1, F_K1, 1, 97)
    a("s_branch LOOP")
    a.label("LOOPC")
    a("s_waitcnt vmcnt(0)")
    ladd(a, 1, F_ZD, 0)
    lwait(a, 1, F_K2, 2, 97)
    a("buffer_load_dwordx4 v[100:103], v96, s[32:35], s64 offen")
    for u in range(8): tile(u, u)
    a(f"v_add_u32 v{AK}, {8*2048}, v{AK}")
    a(f"v_add_u32 v{AV}, {8*2048}, v{AV}")
    a("s_add_u32 s65, s65, 1")
    a("s_branch LOOP")

    a.nopad += 1
    a.label("FALLBACK")
    a("s_mov_b32 s68, 1")
    a(f"v_mov_b32 v{AK}, v3")
    a(f"v_mov_b32 v31, {f32bits(float('-inf')):#x}")
    a("s_mov_b32 s65, 0")
    a.label("MAXL")
    a(f"ds_read_b128 {vr(KF,4)}, v{AK}")
    a(f"v_add_u32 v{AK}, 2048, v{AK}")
    a("s_waitcnt lgkmcnt(0)")
    a(f"v_mfma_f32_32x32x16_bf16 {vr(S,16)}, {vr(KF,4)}, {vr(Q,4)}, 0")
    a("s_nop 15")
    for i in range(0, 16, 2): a(f"v_max3_f32 v31, v31, v{S+i}, v{S+i+1}")
    a("s_add_u32 s65, s65, 1")
    a("s_cmp_lt_u32 s65, 64")
    a("s_cbranch_scc1 MAXL")
    a(f"v_mov_b32 v{S}, v31")
    a("s_nop 1")
    a(f"v_permlane32_swap_b32 v31, v{S}")
    a("s_nop 1")
    a(f"v_max_f32 v31, v31, v{S}")
    for i in range(16): a(f"v_sub_f32 v{NM+i}, 0, v31")
    a(f"v_mov_b32 v{AK}, v3")
    a(f"v_subrev_u32 v{AV}, {64*2048}, v{AV}")
    for i in range(16): a(f"v_mov_b32 v{O+i}, 0")
    for i in range(8): a(f"v_mov_b32 v{S+16+8+i}, 0")
    a("s_mov_b32 s65, 0")
    prolog(vr(NM,16))
    a.label("FBL")
    for u in range(2): tile(u, cin=vr(NM,16))
    a(f"v_add_u32 v{AK}, {2*2048}, v{AK}")
    a(f"v_add_u32 v{AV}, {2*2048}, v{AV}")
    a("s_add_u32 s65, s65, 1")
    a("s_cmp_lt_u32 s65, 32")
    a("s_cbranch_scc1 FBL")
    a("s_branch LEXIT")

HEAD = '.amdgcn_target "amdgcn-amd-amdhsa--gfx950"\n.text\n'
def sizes(lines):
    txt = HEAD
    for i, (l, _) in enumerate(lines):
        if l.startswith("@@") or l.startswith(".p2align"): continue
        txt += f"ZZ{i}:\n{l}\n"
    txt += "ZZEND:\n"
    open("_sz.s", "w").write(txt)
    subprocess.run(["clang", "-x", "assembler", "-target", "amdgcn-amd-amdhsa", "-mcpu=gfx950", "-c", "_sz.s", "-o", "_sz.o"], check=True)
    out = subprocess.run(["llvm-objdump", "-t", "_sz.o"], capture_output=True, text=True).stdout
    ad = {}
    for m in re.finditer(r"^([0-9a-f]+) .* ZZ(\w+)$", out, re.M): ad[m.group(2)] = int(m.group(1), 16)
    keys = sorted((int(k) for k in ad if k != "END"))
    sz = {}
    for x, y in zip(keys, keys[1:] + ["END"]): sz[x] = ad[str(y)] - ad[str(x)]
    return sz

def layout(lines):
    NW = 8
    if not PADS:
        return "\n".join(l for l, _ in lines if not l.startswith("@@")) + "\n"
    sz = sizes(lines)
    CALL = 8*NW
    out = []; pos = 0; npad = 0; i = 0; n = len(lines)
    def emit_pad():
        nonlocal pos, npad
        prev = out[-1].strip() if out else ""
        if not (prev.startswith("s_branch") or prev.startswith("s_endpgm")):
            out.append(f"    s_branch PSK{npad}"); pos += 4
        out.append(".p2align 10"); pos = (pos + 1023)//1024*1024
        out.append(f"PAD{npad}:"); out.append(f"@@PADNEXT{npad}@@"); pos += 4
        out.append(f"PSK{npad}:")
        npad += 1
    def lsize(k, p):
        l = lines[k][0]
        if l == "@@PADCALL@@": return CALL
        if l.startswith("@@"): return 0
        if l.startswith(".p2align"):
            al = 1 << int(l.split()[1]); return (-p) % al
        return sz.get(k, 0)
    while i < n:
        l, np_ = lines[i]
        if l == "@@FORCEPAD@@":
            emit_pad(); i += 1; continue
        if not np_ and pos >= 1024:
            p = pos; k = i
            p += lsize(k, p); k += 1
            while k < n and lines[k][1] and lines[k][0] != "@@FORCEPAD@@":
                p += lsize(k, p); k += 1
            lim = (pos // 1024 + 1)*1024 if pos % 1024 else pos + 1024
            if p + 4 > lim and k < n and lines[k][0] != "@@FORCEPAD@@" and (pos % 1024) > 8:
                emit_pad()
        out.append(l); pos += lsize(i, pos); i += 1
    txt = "\n".join(out) + "\n"
    call = ""
    for w in range(NW):
        call += f"    s_cmp_eq_u32 s3, {w}\n    s_cbranch_scc1 {'PAD%d' % w if w < npad else 'PADRET'}\n"
    txt = txt.replace("@@PADCALL@@\n", call)
    for k in range(npad):
        nxt = f"PAD{k+NW}" if k + NW < npad else "PADRET"
        txt = txt.replace(f"@@PADNEXT{k}@@", f"    s_branch {nxt}")
    return txt

def main():
    ref = open(f"cdna_kernels/{NAME}.s.ref").read().split("\n")
    hdr = []
    for line in ref:
        if line.startswith(";") and "@launch" not in line: hdr.append(line)
        elif not line.startswith(";"): break
    a = Asm(); gen_entry(a); gen_loader1(a)
    cut = next(i for i, (l, _) in enumerate(a.l) if "L0: " in l or l.strip().startswith("@@CUT")) if False else None
    b = Asm(); gen_compute(b)
    c = Asm(); c.nopad = 1; stampout(c); c.label("END"); c("s_endpgm")
    k = max(i for i, (l, _) in enumerate(a.l) if l == "LQ:")
    first = a.l[:k]; second = a.l[k:]
    kf = next(i for i, (l, _) in enumerate(b.l) if l == "FALLBACK:")
    lines = first + b.l[:kf] + second + b.l[kf:] + c.l
    out = "\n".join(hdr) + "\n"
    out += f"; @launch grid=(256,1,1) block=(768,1,1) lds={L_TOTAL}\n"
    out += HEAD + layout(lines)
    out += f""".section .rodata,"a"
.p2align 6
.amdhsa_kernel {KN}
  .amdhsa_next_free_vgpr 168
  .amdhsa_next_free_sgpr 96
  .amdhsa_accum_offset 168
  .amdhsa_group_segment_fixed_size 0
  .amdhsa_kernarg_size 96
  .amdhsa_user_sgpr_count 2
  .amdhsa_user_sgpr_kernarg_segment_ptr 1
  .amdhsa_system_sgpr_workgroup_id_x 1
  .amdhsa_float_denorm_mode_32 3
.end_amdhsa_kernel
"""
    dst = sys.argv[1] if len(sys.argv) > 1 else f"cdna_kernels/{NAME}.s"
    open(dst, "w").write(out)

if __name__ == "__main__":
    main()
```

```python
import sys, math, struct, os, subprocess, re

NAME = "concat_heads__ssm_conv_h3__softmax_full_mha__prompt"
KN = NAME + "_kernel"
E = lambda n, d: int(os.environ.get(n, str(d)))
STAMP = E("STAMP", 0); DIAG = E("DIAG", 0)
F0_AT = E("F0_AT", 4); ST_AT = E("ST_AT", 5); ST_AV = E("ST_AV", 2); WF_AT = E("WF_AT", 7); PADS = E("PADS", 0); GATH = E("GATH", 2); XRP = E("XRP", 7); QST = E("QST", 8); GB = E("GB", 0); WOE = E("WOE", 0); KST = E("KST", 30); WFM = E("WFM", 1); HAT = E("HAT", 6); NON_AT = E("NON_AT", 0)

WS_QF  = 0; WS_KV = 2 << 20; WS_OF = 6 << 20; WS_XR = 8 << 20; WS_ZT = 10 << 20
WS_FL  = 12 << 20; WS_WOF = 13 << 20; WS_ST = 16 << 20; WS_SIZE = 18 << 20

L_X = 0; L_RING = 65536; L_CONV = 131072
L_XR = [L_CONV, L_CONV + 7680]
L_HE = [L_CONV + 15360 + 64, L_CONV + 15360 + 8324 + 64]
L_HO = [L_HE[0] + 4096 + 68, L_HE[1] + 4096 + 68]
L_MISC = L_CONV + 15360 + 2*8324
L_TOTAL = 163840
L_Q = 57344; L_Z = L_CONV; L_O = 4096; L_RED = 65536
L_A1 = L_CONV
L_A1S = L_CONV + 18432
L_WT = L_CONV + 26624
F_X = 0; F_W = 4; F_QX = 8; F_FULL = 0; F_FULLA = 48; F_FREE = 64; F_STG = 112; F_XRD = 116; F_C1 = 120; F_ISS = 128
F_GQ = 200; F_K1 = 184; F_K2 = 188; F_QRD = 192; F_ZD = 196; F_CONV = 176; F_P2D = 148; F_ST = 152; F_WOF = 156; F_NONCE = 160; F_HE = 168

def f32bits(x): return struct.unpack("<I", struct.pack("<f", x))[0]

class Asm:
    def __init__(self): self.l = []; self.nopad = 0
    def __call__(self, s):
        for line in s.strip("\n").split("\n"):
            if line.strip(): self.l.append(("    " + line.strip(), self.nopad))
    def label(self, n): self.l.append((n + ":", 1))
    def raw(self, s): self.l.append((s, 1))

class Cnt:
    def __init__(self, a, name, mx): self.a = a; self.ops = []; self.name = name; self.mx = mx
    def op(self, s, tag): self.a(s); self.ops.append(tag)
    def wait(self, tag):
        idx = max(i for i, t in enumerate(self.ops) if t == tag)
        n = len(self.ops) - 1 - idx
        assert n <= self.mx, n
        self.a(f"s_waitcnt {self.name}({n})")
        self.ops = self.ops[idx+1:]

def vr(b, n): return f"v[{b}:{b+n-1}]"
P_Q, P_K, P_V, P_SHK, P_SSMK, P_SSMD, P_X, P_WQKV, P_WO, P_OUT, P_DBG, P_WS = [4 + 2*i for i in range(12)]
def srd(a, d, ptr, size):
    a(f"s_mov_b32 s{d}, s{ptr}")
    a(f"s_and_b32 s{d+1}, s{ptr+1}, 0xffff")
    a(f"s_mov_b32 s{d+2}, {size}")
    a(f"s_mov_b32 s{d+3}, 0x00020000")
WS = "s[28:31]"
NST = 14
def stamp_begin(a):
    if STAMP:
        a("s_memrealtime s[72:73]")
        a("s_memtime s[76:77]")
def dstamp(a, k):
    if DIAG == 1: stamp(a, k, True)
def estamp(a, k):
    if DIAG == 2: stamp(a, k, True)
def fstamp(a, k):
    if DIAG == 3: stamp(a, k, True)
def stamp(a, k, d=False):
    if STAMP == 3:
        m = {2: 0, 4: 2, 8: 4, 9: 6, 10: 8, 12: 10, 13: 12}
        if not d and k in m:
            a("s_memrealtime s[94:95]")
            a("s_memtime s[78:79]")
            a("s_waitcnt lgkmcnt(0)")
            a(f"s_sub_u32 s{80+m[k]}, s94, s72")
            a(f"s_sub_u32 s{81+m[k]}, s78, s76")
    elif STAMP == 2:
        if not d:
            a("s_memrealtime s[94:95]")
            a("s_waitcnt lgkmcnt(0)")
            a(f"s_mov_b32 s{80+k}, s94")
    elif STAMP and (d or not DIAG or k == 0):
        a("s_memtime s[94:95]")
        a("s_waitcnt lgkmcnt(0)")
        a(f"s_sub_u32 s{80+k}, s94, s76")
def endpgm(a):
    if STAMP: a("s_branch STAMPOUT")
    else: a("s_endpgm")
def stampout(a):
    if STAMP:
        a.label("STAMPOUT")
        srd(a, 28, P_WS, WS_SIZE)
        a("s_waitcnt vmcnt(0)")
        a("s_memrealtime s[74:75]")
        a("s_memtime s[78:79]")
        a("s_waitcnt lgkmcnt(0)")
        a("s_sub_u32 s78, s78, s76")
        a("s_mov_b64 exec, 1")
        a("v_mov_b32 v4, s72")
        a("v_mov_b32 v5, s74")
        a("v_mov_b32 v6, s78")
        for k in range(NST): a(f"v_mov_b32 v{7+k}, s{80+k}")
        a("s_lshl_b32 s76, s2, 4")
        a("s_add_u32 s76, s76, s3")
        a("s_lshl_b32 s76, s76, 7")
        a(f"s_add_u32 s76, s76, {WS_ST}")
        a("v_mov_b32 v30, 0")
        for k in range(5):
            a(f"buffer_store_dwordx4 v[{4+4*k}:{7+4*k}], v30, {WS}, s76 offen offset:{16*k}")
        a("s_endpgm")

_uid = [0]
def uid(): _uid[0] += 1; return _uid[0]
def poll(a, stage, grp_sreg, mode=0, sleep=1):
    u = uid()
    if mode == 3: a(f"s_mov_b32 s62, {WS_FL + stage*16384}")
    else:
        a(f"s_lshl_b32 s62, s{grp_sreg}, 11")
        a(f"s_add_u32 s62, s62, {WS_FL + stage*16384}")
    a("s_mov_b32 s63, 0")
    if mode == 0: a("s_mov_b32 exec_hi, 0")
    a.nopad += 1
    a.label(f"POLL{u}")
    if mode == 3:
        a(f"buffer_load_dwordx4 v[60:63], v3, {WS}, s62 offen sc1")
        a(f"buffer_load_dwordx4 v[64:67], v3, {WS}, s62 offen offset:1024 sc1")
    else: a(f"buffer_load_dwordx2 v[60:61], v12, {WS}, s62 offen sc1")
    a("s_add_u32 s63, s63, 1")
    a("s_cmp_gt_u32 s63, 0x40000")
    a(f"s_cbranch_scc1 POLLX{u}")
    a("s_waitcnt vmcnt(0)")
    a("v_cmp_ne_u64 vcc, s[60:61], v[60:61]")
    if mode == 3:
        for r in (62, 64, 66):
            a(f"v_cmp_ne_u64 s[70:71], s[60:61], v[{r}:{r+1}]")
            a("s_or_b64 vcc, s[70:71], vcc")
        a(f"s_cbranch_scc0 POLLX{u}")
    else: a(f"s_cbranch_vccz POLLX{u}")
    a(f"s_sleep {sleep}")
    a(f"s_branch POLL{u}")
    a.label(f"POLLX{u}")
    a.nopad -= 1
    a("s_mov_b64 exec, -1")
def publish(a, stage, grp_sreg, slot_sreg):
    a(f"s_lshl_b32 s62, s{slot_sreg}, {3 if grp_sreg is None else 6}")
    if grp_sreg is not None:
        a(f"s_lshl_b32 s63, s{grp_sreg}, 11")
        a("s_add_u32 s62, s62, s63")
    a(f"s_add_u32 s62, s62, {WS_FL + stage*16384}")
    a("s_mov_b64 exec, 1")
    a(f"buffer_store_dwordx2 v[14:15], v13, {WS}, s62 offen sc1")
    a("s_mov_b64 exec, -1")
def nonce_lds(a, sgpr=True):
    u = uid()
    a.nopad += 1
    a.label(f"NL{u}")
    a(f"ds_read_b64 v[14:15], v1 offset:{F_NONCE}")
    a("s_waitcnt lgkmcnt(0)")
    a("v_cmp_eq_u32 vcc, 0, v14")
    a(f"s_cbranch_vccnz NL{u}")
    a.nopad -= 1
    if sgpr:
        a("v_readfirstlane_b32 s60, v14")
        a("v_readfirstlane_b32 s61, v15")
def lwait(a, vaddr, off, n, vt, pre=False, sleep=None):
    u = uid()
    a.nopad += 1
    if pre:
        a(f"v_cmp_gt_u32 vcc, {n}, v{vt}")
        a(f"s_cbranch_vccz LWX{u}")
    a.label(f"LW{u}")
    if sleep is None and pre and vt == 55: sleep = E("CSL", 0)
    if sleep: a(f"s_sleep {sleep*E('SLM',1)}")
    a(f"ds_read_b32 v{vt}, v{vaddr} offset:{off}")
    a("s_waitcnt lgkmcnt(0)")
    a(f"v_cmp_gt_u32 vcc, {n}, v{vt}")
    a(f"s_cbranch_vccnz LW{u}")
    a.label(f"LWX{u}")
    a.nopad -= 1
def lwait2(a, n):
    u = uid()
    a.nopad += 1
    a("v_min_u32 v55, v52, v53")
    a(f"v_cmp_gt_u32 vcc, {n}, v55")
    a(f"s_cbranch_vccz LWX{u}")
    a.label(f"LW{u}")
    a(f"ds_read_b64 v[52:53], v1 offset:{F_X}")
    a("s_waitcnt lgkmcnt(0)")
    a("v_min_u32 v55, v52, v53")
    a(f"v_cmp_gt_u32 vcc, {n}, v55")
    a(f"s_cbranch_vccnz LW{u}")
    a.label(f"LWX{u}")
    a.nopad -= 1
def ladd(a, vaddr, off, vone):
    a("s_mov_b64 exec, 1")
    a(f"ds_add_u32 v{vaddr}, v{vone} offset:{off}")
    a("s_mov_b64 exec, -1")
def barriers(a, n):
    for _ in range(n): a("s_barrier")

VX = 16; VW = 20; VQ = 24

def gen_entry(a):
    a.nopad += 1
    a.raw(f".globl {KN}")
    a.raw(".p2align 10")
    a.raw(f".type {KN},@function")
    a.label(KN)
    a("s_cmp_ge_u32 s2, 256")
    a("s_cbranch_scc1 END")
    stamp_begin(a)
    a("s_load_dwordx16 s[4:19], s[0:1], 0")
    a("s_load_dwordx8 s[20:27], s[0:1], 64")
    a("""
    v_lshrrev_b32 v1, 6, v0
    v_and_b32 v2, 63, v0
    v_readfirstlane_b32 s3, v1
    v_lshlrev_b32 v3, 4, v2
    s_and_b32 s48, s2, 7
    s_lshr_b32 s49, s2, 3
    s_and_b32 s50, s49, 3
    s_lshr_b32 s51, s49, 2
    s_and_b32 s52, s48, 4
    s_add_u32 s52, s52, s50
    s_and_b32 s53, s48, 3
    s_lshl_b32 s53, s53, 3
    s_add_u32 s53, s53, s51
    s_lshl_b32 s54, s48, 2
    s_add_u32 s54, s54, s50
    s_lshl_b32 s55, s50, 1
    s_add_u32 s55, s55, s51
    s_and_b32 s55, s55, 7
    s_lshl_b32 s66, s48, 5
    s_add_u32 s66, s66, s49
    """)
    a(f"v_mov_b32 v1, {L_MISC}")
    a("v_mov_b32 v54, 1")
    a("v_mov_b32 v13, 0")
    a("s_cmp_lt_u32 s3, 8")
    a("s_cbranch_scc1 CPATH")
    a("s_setprio 3")
    a("""
    v_lshrrev_b32 v4, 3, v2
    v_lshrrev_b32 v5, 4, v2
    v_and_b32 v6, 7, v2
    v_lshlrev_b32 v12, 6, v2
    s_cmp_eq_u32 s3, 8
    s_cbranch_scc1 XL0
    s_cmp_lg_u32 s3, 9
    s_cbranch_scc1 HPATH
    s_getpc_b64 s[56:57]
    s_lshl_b32 s58, s50, 13
    v_lshlrev_b32 v7, 7, v2
    v_add_u32 v7, s58, v7
    """)
    a(f"v_min_u32 v7, END - {KN} - 256, v7")
    a("global_load_dword v31, v7, s[56:57]")
    a("s_branch LQPAD")

def gen_loader1(a):
    a.label("XL0")
    a(f"s_setprio {E('LPRIO', 2)}")
    a("""
    v_lshlrev_b32 v10, 4, v6
    v_lshl_add_u32 v10, v4, 10, v10
    s_lshl_b32 s63, s49, 16
    s_lshl_b32 s64, s48, 7
    s_add_u32 s63, s63, s64
    v_add_u32 v28, s63, v10
    v_subrev_u32 v10, 8192, v28
    """)
    for i in range(1, 4): a(f"v_add_u32 v{28+i}, {8192-1024}, v{28+i-1}")
    a("v_xor_b32 v7, v6, v5")
    a("v_lshlrev_b32 v7, 4, v7")
    a(f"v_lshl_add_u32 v{VX}, v4, 10, v7")
    a(f"v_xor_b32 v{VX+1}, 64, v{VX}")
    a(f"v_add_u32 v{VX+1}, {8192-1024}, v{VX+1}")
    a(f"v_add_u32 v{VX+2}, {2*(8192-1024)}, v{VX}")
    a(f"v_add_u32 v{VX+3}, {2*(8192-1024)}, v{VX+1}")
    a("""
    v_bfe_u32 v7, v2, 2, 2
    v_xor_b32 v7, v7, v5
    v_mul_u32_u24 v8, 3072, v5
    v_lshrrev_b32 v9, 1, v7
    v_lshl_add_u32 v8, v9, 10, v8
    v_and_b32 v9, 1, v7
    v_lshl_add_u32 v8, v9, 6, v8
    v_and_b32 v9, 3, v2
    """)
    a(f"v_lshl_add_u32 v{VW}, v9, 4, v8")
    for i in range(1, 4): a(f"v_add_u32 v{VW+i}, {4*3072 - 1024}, v{VW+i-1}")
    a("""
    s_lshl_b32 s62, s48, 9
    s_lshl_b32 s57, s53, 16
    s_lshl_b32 s58, s52, 7
    s_mov_b32 s59, s55
    s_mov_b32 s56, 0
    s_mov_b32 s63, 32768
    """)
    a(f"s_mov_b32 m0, {L_A1}")
    a("s_waitcnt lgkmcnt(0)")
    stamp(a, 0)
    srd(a, 40, P_K, 2048*512*2)
    a("buffer_load_dwordx4 v10, s[40:43], 0 offen lds")
    for n, base in enumerate((1024, 9216)):
        if n:
            a(f"s_mov_b32 s40, s{P_V}")
            a(f"s_and_b32 s41, s{P_V+1}, 0xffff")
        for g in range(2):
            a(f"s_mov_b32 m0, {L_A1 + base + 4096*g}")
            a("s_nop 0")
            for i in range(4): a(f"buffer_load_dwordx4 v{28+i}, s[40:43], {'s63' if g else '0'} offen offset:{1024*i} lds")
    a(f"s_mov_b32 s40, s{P_SHK}")
    a(f"s_and_b32 s41, s{P_SHK+1}, 0xffff")
    a("s_movk_i32 s42, 4096")
    a(f"s_mov_b32 m0, {L_A1 + 17408}")
    a("s_mov_b32 exec_hi, 0")
    a("buffer_load_dwordx4 v3, s[40:43], s62 offen lds")
    a("s_mov_b64 exec, -1")
    srd(a, 32, P_X, 2048*512*2)
    srd(a, 36, P_WQKV, 512*1536*2)
    a("s_branch XLB")
    a.label("XL")
    a("s_cmp_eq_u32 s56, 2")
    a("s_cbranch_scc1 XLB")
    a("s_cmp_eq_u32 s56, 1")
    a("s_cbranch_scc0 XLC")
    a("s_waitcnt vmcnt(24)")
    if GB:
        a("s_barrier")
        a("s_barrier")
        a(f"s_sleep {E('GBS', 2)}")
        a("s_branch XLB")
    a.label("XLC")
    a("s_waitcnt vmcnt(48)")
    a("s_barrier")
    a.label("XLB")
    a("s_lshl_b32 s67, s56, 13")
    a("s_mov_b32 m0, s67")
    a("s_lshl_b32 s64, s59, 7")
    a("s_add_u32 s64, s64, s57")
    for i in range(4): a(f"buffer_load_dwordx4 v{VX+i}, s[32:35], s64 offen offset:{1024*i} lds")
    a("s_add_u32 m0, s67, 4096")
    a("s_add_u32 s64, s64, 32768")
    for i in range(4): a(f"buffer_load_dwordx4 v{VX+i}, s[32:35], s64 offen offset:{1024*i} lds")
    a("s_and_b32 s67, s56, 3")
    a("s_lshl_b32 s67, s67, 14")
    a(f"s_add_u32 m0, s67, {L_RING}")
    a(f"s_mul_i32 s65, s59, {64*3072}")
    a("s_add_u32 s65, s65, s58")
    a("s_add_u32 s65, s65, 1024")
    for G in range(4):
        if G:
            a("s_add_u32 m0, m0, 4096")
            a(f"s_add_u32 s65, s65, {16*3072}")
        for i in range(4): a(f"buffer_load_dwordx4 v{VW+i}, s[36:39], s65 offen offset:{1024*i} lds")
    a("s_cmp_eq_u32 s56, 3")
    a("s_addc_u32 s59, s59, 2")
    a("s_and_b32 s59, s59, 7")
    a("s_add_u32 s56, s56, 1")
    a("s_cmp_lt_u32 s56, 8")
    a("s_cbranch_scc1 XL")
    a("s_branch LQ2")
    a.nopad -= 1
    a.label("LQ")
    a.label("LQPAD")
    a("s_branch HPATH")
    a.label("LQ2")
    a("""
    v_bfe_u32 v10, v2, 4, 1
    v_lshlrev_b32 v10, 2, v10
    v_xor_b32 v10, v10, v6
    v_lshlrev_b32 v10, 4, v10
    v_mul_u32_u24 v8, 3072, v4
    """)
    a(f"v_add_u32 v{VQ}, v8, v10")
    for i in range(1, 4): a(f"v_add_u32 v{VQ+i}, {8*3072 - 1024}, v{VQ+i-1}")
    def sig(n, vm):
        a(f"v_mov_b32 v9, {n}")
        a(f"s_waitcnt vmcnt({vm})")
        a(f"ds_write_b32 v1, v9 offset:{F_W}")
    a("s_mov_b32 s56, 0")
    a("s_mov_b32 s59, s55")
    a(f"s_mov_b32 s67, {L_RING}")
    a.nopad += 1
    a.label("LQL")
    a("s_cmp_eq_u32 s56, 0")
    a("s_cbranch_scc1 LQW")
    a("s_cmp_eq_u32 s56, 1")
    a("s_cbranch_scc1 LQV")
    a("s_waitcnt vmcnt(32)")
    a.label("LQV")
    a("s_waitcnt vmcnt(40)")
    a.label("LQW")
    a("s_waitcnt vmcnt(48)")
    a("s_barrier")
    for hf in range(2):
        a("s_and_b32 s59, s59, 7")
        a(f"s_mul_i32 s65, s59, {64*3072}")
        a("s_add_u32 s65, s65, s58")
        for g in range(2):
            a(f"s_add_u32 m0, s67, {hf*8192 + g*4096}")
            a(f"s_add_u32 s65, s65, {32*3072*g}")
            for i in range(4):
                a(f"buffer_load_dwordx4 v{VQ+i}, s[36:39], s65 offen offset:{1024*i} lds")
        if hf == 0: a("s_add_u32 s59, s59, 2")
    a("s_cmp_eq_u32 s56, 1")
    a("s_addc_u32 s59, s59, 2")
    a("s_add_u32 s67, s67, 16384")
    a("s_add_u32 s56, s56, 1")
    a("s_cmp_lt_u32 s56, 4")
    a("s_cbranch_scc1 LQL")
    a.nopad -= 1
    a("s_mov_b64 exec, 1")
    a(f"ds_write_b32 v1, v54 offset:{F_QX}")
    sig(1, 32); sig(2, 16); sig(3, 0)
    a("s_mov_b64 exec, -1")
    stamp(a, 5)
    a("s_setprio 3")
    srd(a, 28, P_WS, WS_SIZE)
    nonce_lds(a)
    lwait(a, 1, F_ST, 8, 61, sleep=1)
    a.label("L0B")
    stamp(a, 7)
    a(f"s_sleep {E('P1S', 8)}")
    poll(a, 1, 48)
    stamp(a, 8)
    a("s_lshl_b32 s64, s54, 6")
    a("s_lshl_b32 s65, s51, 3")
    a("s_add_u32 s64, s64, s65")
    a("s_lshl_b32 s64, s64, 10")
    a(f"s_add_u32 s64, s64, {WS_QF}")
    a("s_lshl_b32 s65, s54, 17")
    a(f"s_add_u32 s65, s65, {WS_KV}")
    def linloop(ldsb, sreg, n4, lab):
        a(f"s_mov_b32 m0, {ldsb}")
        a("s_nop 0")
        a.nopad += 1
        a.label(lab)
        for i in range(4):
            a(f"buffer_load_dwordx4 v3, {WS}, s{sreg} offen offset:{1024*i} sc1 lds")
        a("s_add_u32 m0, m0, 4096")
        a(f"s_add_u32 s{sreg}, s{sreg}, 4096")
        a(f"s_cmp_lt_u32 m0, {ldsb + 4096*n4}")
        a(f"s_cbranch_scc1 {lab}")
        a.nopad -= 1
    linloop(L_Q, 64, 2, "KVL0")
    linloop(0, 65, 9, "KVL1")
    a("s_waitcnt vmcnt(16)")
    a("s_barrier")
    stamp(a, 9)
    linloop(36864, 65, 5, "KVL2")
    a("s_waitcnt vmcnt(20)")
    a(f"ds_write_b32 v1, v54 offset:{F_K1}")
    lwait(a, 1, F_QRD, 8, 61)
    linloop(57344, 65, 18, "KVL3")
    a("s_waitcnt vmcnt(0)")
    ladd(a, 1, F_K2, 54)
    stamp(a, 10)
    a("s_lshl_b32 s64, s48, 3")
    a("s_add_u32 s64, s64, s51")
    a("s_lshl_b32 s64, s64, 15")
    a(f"s_add_u32 s64, s64, {WS_OF}")
    a("s_lshl_b32 s62, s48, 3")
    a("s_add_u32 s62, s62, s51")
    a("s_lshl_b32 s62, s62, 11")
    a(f"s_add_u32 s62, s62, {WS_FL + 3*16384}")
    a("s_mov_b32 s56, 0x11111111")
    a("s_mov_b32 s57, 0")
    a("s_mov_b32 s63, 0")
    a(f"v_add_u32 v8, {F_GQ}, v1")
    a("s_barrier")
    stamp(a, 11)
    a.nopad += 1
    a.label("TP")
    a("s_mov_b32 exec_hi, 0")
    a(f"buffer_load_dwordx2 v[60:61], v12, {WS}, s62 offen sc1")
    a("s_waitcnt vmcnt(1)")
    a.label("TPA")
    a("s_cmp_eq_u32 s57, 0")
    a("s_cbranch_scc1 TPB")
    a("s_ff1_i32_b32 s58, s57")
    a("s_bitset0_b32 s57, s58")
    a("s_add_u32 s58, s58, 4")
    a("v_mov_b32 v9, s58")
    a("ds_write_b32 v8, v9")
    a("v_add_u32 v8, 4, v8")
    a("s_branch TPA")
    a.label("TPB")
    a("s_cmp_eq_u32 s56, 0")
    a("s_cbranch_scc1 TPX")
    a("s_waitcnt vmcnt(0)")
    a("v_cmp_eq_u64 vcc, s[60:61], v[60:61]")
    a("s_mov_b64 exec, -1")
    a("s_add_u32 s63, s63, 1")
    a("s_cmp_gt_u32 s63, 0x40000")
    a("s_cselect_b32 s58, -1, vcc_lo")
    a("s_lshr_b32 s59, s58, 1")
    a("s_and_b32 s58, s58, s59")
    a("s_lshr_b32 s59, s58, 2")
    a("s_and_b32 s58, s58, s59")
    a("s_and_b32 s57, s58, s56")
    a("s_andn2_b32 s56, s56, s57")
    a("s_mov_b32 s59, s57")
    a.label("TPC")
    a("s_cmp_eq_u32 s59, 0")
    a("s_cbranch_scc1 TP")
    a("s_ff1_i32_b32 s58, s59")
    a("s_bitset0_b32 s59, s58")
    a("s_lshl_b32 s58, s58, 10")
    a(f"s_add_u32 m0, s58, {L_O}")
    a("s_add_u32 s65, s64, s58")
    for i in range(4):
        a(f"buffer_load_dwordx4 v3, {WS}, s65 offen offset:{1024*i} sc1 lds")
    a("s_branch TPC")
    a.label("TPX")
    a.nopad -= 1
    a("s_mov_b64 exec, -1")
    stamp(a, 13)
    a("s_cmp_lg_u32 s2, 0")
    a("s_cbranch_scc1 HEND")
    srd(a, 44, P_DBG, 256)
    a("v_mov_b32 v14, 0")
    a("v_mov_b32 v15, 0")
    a("s_mov_b64 exec, 1")
    a("buffer_store_dwordx2 v[14:15], v13, s[44:47], 0 offen sc1")
    a("s_mov_b64 exec, -1")
    endpgm(a)

    a.label("HPATH")
    a("s_memrealtime s[60:61]")
    a.label("HP3")
    a("s_waitcnt lgkmcnt(0)")
    stamp(a, 0)
    srd(a, 28, P_WS, WS_SIZE)
    srd(a, 40, P_SSMK, 512*2048*2)
    a("s_xor_b32 s56, s3, 11")
    a("s_or_b32 s56, s56, s2")
    a("s_cmp_lg_u32 s56, 0")
    a("s_cbranch_scc1 HP4")
    srd(a, 44, P_DBG, 256)
    a("s_or_b32 s60, s60, 1")
    a("v_mov_b32 v14, s60")
    a("v_mov_b32 v15, s61")
    a("s_mov_b64 exec, 1")
    a("buffer_store_dwordx2 v[14:15], v13, s[44:47], 0 offen sc1")
    a("s_mov_b64 exec, -1")
    a.label("HP4")
    a("s_cmp_eq_u32 s3, 10")
    a("s_cbranch_scc1 H10")
    a("s_cmp_eq_u32 s3, 11")
    a("s_cbranch_scc1 H11")
    a("v_lshl_add_u32 v8, v2, 2, v1")
    a("ds_write_b32 v8, v13")
    srd(a, 44, P_DBG, 256)
    a("s_waitcnt lgkmcnt(0)")
    barriers(a, 1 + NON_AT)
    NB = GB
    a("buffer_load_dwordx2 v[14:15], v13, s[44:47], 0 offen sc1")
    barriers(a, 2)
    a("s_waitcnt vmcnt(0)")
    a("v_cmp_ne_u32 vcc, 0, v14")
    a("s_cbranch_vccnz NOK1")
    a("buffer_load_dwordx2 v[14:15], v13, s[44:47], 0 offen sc1")
    a.label("NOK1")
    barriers(a, F0_AT - 1)
    a("s_mov_b32 s63, 0")
    a.nopad += 1
    a.label("LD2P")
    a("s_waitcnt vmcnt(0)")
    a("v_cmp_ne_u32 vcc, 0, v14")
    a("s_cbranch_vccnz LD2Q")
    a("s_add_u32 s63, s63, 1")
    a("v_mov_b32 v14, 1")
    a("s_cmp_gt_u32 s63, 0x40000")
    a("s_cbranch_scc1 LD2Q")
    a("buffer_load_dwordx2 v[14:15], v13, s[44:47], 0 offen sc1")
    a("s_branch LD2P")
    a.label("LD2Q")
    a.nopad -= 1
    publish(a, 0, 48, 49)
    a(f"ds_write_b64 v1, v[14:15] offset:{F_NONCE}")
    a("s_waitcnt lgkmcnt(0)")
    stamp(a, 1)
    a("v_readfirstlane_b32 s60, v14")
    a("v_readfirstlane_b32 s61, v15")
    a("s_lshl_b32 s56, s50, 1")
    barriers(a, 8 - F0_AT)
    if WFM == 0:
        lwait(a, 1, F_QX, 1, 61)
        poll(a, 0, 56, mode=1, sleep=2)
        ladd(a, 1, F_CONV, 54)
    stamp(a, 2)
    lwait(a, 1, F_ST, 8, 61, sleep=1)
    publish(a, 1, 52, 53)
    a("s_barrier")
    lwait(a, 1, F_K1, 1, 61, sleep=4)
    poll(a, 0, 56, mode=1, sleep=2)
    ladd(a, 1, F_K2, 54)
    endpgm(a)
    a.label("H11")
    srd(a, 40, P_WO, 512*512*2)
    a("""
    v_lshlrev_b32 v16, 10, v4
    v_lshl_add_u32 v16, v6, 4, v16
    s_lshl_b32 s56, s49, 14
    s_lshl_b32 s57, s48, 7
    s_add_u32 s56, s56, s57
    s_add_u32 s57, s56, 7168
    v_lshrrev_b32 v17, 5, v2
    v_bfe_u32 v18, v2, 2, 2
    v_lshl_add_u32 v17, v17, 2, v18
    v_lshlrev_b32 v17, 7, v17
    v_bfe_u32 v18, v2, 4, 1
    v_lshl_add_u32 v17, v18, 5, v17
    v_and_b32 v18, 3, v2
    v_lshl_add_u32 v17, v18, 3, v17
    s_lshl_b32 s58, s48, 16
    s_lshr_b32 s59, s49, 1
    s_lshl_b32 s59, s59, 10
    s_add_u32 s58, s58, s59
    s_and_b32 s59, s49, 1
    s_lshl_b32 s59, s59, 9
    s_add_u32 s58, s58, s59
    v_and_b32 v19, 15, v2
    v_lshlrev_b32 v19, 4, v19
    v_lshrrev_b32 v18, 5, v2
    v_lshl_add_u32 v19, v18, 8, v19
    v_bfe_u32 v18, v2, 4, 1
    v_lshl_add_u32 v19, v18, 14, v19
    """)
    a(f"v_add_u32 v17, {L_WT}, v17")
    a(f"s_add_u32 s58, s58, {WS_WOF}")
    a("s_add_u32 s59, s58, 32768")
    a(f"s_mov_b32 m0, {L_WT}")
    a("s_nop 0")
    a("buffer_load_dwordx4 v16, s[40:43], s56 offen lds")
    a("buffer_load_dwordx4 v16, s[40:43], s57 offen offset:1024 lds")
    barriers(a, 2 if WOE else 2 + GB)
    a("s_waitcnt vmcnt(0)")
    a("ds_read_b64_tr_b16 v[20:21], v17")
    a("ds_read_b64_tr_b16 v[22:23], v17 offset:1024")
    a("ds_read_b64_tr_b16 v[24:25], v17 offset:64")
    a("ds_read_b64_tr_b16 v[26:27], v17 offset:1088")
    a("s_waitcnt lgkmcnt(0)")
    a(f"buffer_store_dwordx4 v[20:23], v19, {WS}, s58 offen sc1")
    a(f"buffer_store_dwordx4 v[24:27], v19, {WS}, s59 offen sc1")
    if WOE and GB: a("s_barrier")
    srd(a, 40, P_SSMK, 512*2048*2)
    a("s_lshl_b32 s64, s66, 13")
    a("v_and_b32 v8, 1, v2")
    a("v_mul_u32_u24 v8, 8324, v8")
    a(f"v_add_u32 v8, {L_HE[0]}, v8")
    for n in range(1, 9):
        if n == F0_AT: a("s_waitcnt vmcnt(0)")
        a("s_barrier")
        if n == HAT:
            for q in range(2):
                a(f"s_mov_b32 m0, {L_HE[q]}")
                a(f"s_add_u32 s65, s64, {4096*q}")
                for i in range(4):
                    a(f"buffer_load_dwordx4 v3, s[40:43], s65 offen offset:{1024*i} lds")
    lwait(a, 1, F_QX, 1, 62)
    for q in (1, 0):
        a(f"s_mov_b32 m0, {L_HO[q]}")
        a(f"s_add_u32 s65, s64, {4096*q + 2}")
        for i in range(4):
            a(f"buffer_load_dwordx4 v3, s[40:43], s65 offen offset:{1024*i} lds")
    a("s_waitcnt vmcnt(8)")
    a("ds_read_b32 v9, v8")
    a("s_waitcnt lgkmcnt(0)")
    a("v_lshlrev_b32 v9, 16, v9")
    a("s_mov_b64 exec, 3")
    a(f"ds_write_b32 v8, v9 offset:{L_HO[0] - L_HE[0] - 4}")
    a("s_mov_b64 exec, -1")
    a("s_waitcnt vmcnt(4) lgkmcnt(0)")
    ladd(a, 1, F_CONV + 4, 54)
    a("s_waitcnt vmcnt(0)")
    ladd(a, 1, F_CONV, 54)
    stamp(a, 1)
    endpgm(a)

    a.label("H10")
    VXR = 48
    for i in range(5):
        a(f"v_add_u32 v8, {64*i}, v2")
        a("v_mul_u32_u24 v9, 205, v8")
        a("v_lshrrev_b32 v9, 10, v9")
        a("v_mul_u32_u24 v11, 5, v9")
        a("v_sub_u32 v8, v8, v11")
        a("v_min_u32 v8, 3, v8")
        a("v_lshlrev_b32 v8, 4, v8")
        a(f"v_lshl_add_u32 v{VXR+i}, v9, 6, v8")
    for i in range(4): a(f"v_mov_b32 v{32+i}, 0")
    a("s_lshl_b32 s64, s66, 13")
    def hdma():
        for q in range(2):
            a(f"s_mov_b32 m0, {L_HE[q]}")
            a(f"s_add_u32 s65, s64, {4096*q}")
            for i in range(4):
                a(f"buffer_load_dwordx4 v3, s[40:43], s65 offen offset:{1024*i} lds")
    barriers(a, 3 + GB)
    for q in range(2):
        a(f"v_add_u32 v8, {L_XR[q]}, v3")
        a("ds_write_b128 v8, v[32:35] offset:5120")
        a("ds_write_b128 v8, v[32:35] offset:6144")
        a("s_mov_b32 exec_hi, 0")
        a("ds_write_b128 v8, v[32:35] offset:7168")
        a("s_mov_b64 exec, -1")
    a("v_lshlrev_b32 v8, 2, v2")
    a(f"v_add_u32 v8, {L_HE[0] - 64}, v8")
    a("s_mov_b64 exec, 0xffff")
    a("ds_write_b32 v8, v32")
    a(f"ds_write_b32 v8, v32 offset:{L_HO[0] - L_HE[0] - 4}")
    a(f"ds_write_b32 v8, v32 offset:{L_HE[1] - L_HE[0]}")
    a(f"ds_write_b32 v8, v32 offset:{L_HO[1] - L_HE[0] - 4}")
    a("s_mov_b64 exec, -1")
    a("s_lshl_b32 s62, s48, 11")
    a(f"s_add_u32 s62, s62, {WS_FL}")
    for n in range(2, 9):
        a("s_barrier")
        if n == F0_AT + 1: nonce_lds(a)
        if n == XRP:
            a("s_mov_b32 exec_hi, 0")
            a(f"buffer_load_dwordx2 v[60:61], v12, {WS}, s62 offen sc1")
            a("s_mov_b64 exec, -1")
    lwait(a, 1, F_QX, 1, 62)
    a("s_waitcnt vmcnt(0)")
    a("s_mov_b32 exec_hi, 0")
    a("v_cmp_ne_u64 vcc, s[60:61], v[60:61]")
    a("s_mov_b64 exec, -1")
    a("s_cbranch_vccz F0OK")
    stamp(a, 6)
    poll(a, 0, 48, sleep=E('F0_PS', 2))
    a.label("F0OK")
    stamp(a, 1)
    a(f"s_add_u32 s64, s64, {WS_XR}")
    for q in (1, 0):
        a(f"s_add_u32 s65, s64, {4096*q}")
        for i in range(5):
            a(f"s_mov_b32 m0, {L_XR[q] + 1024*i}")
            a("s_nop 0")
            a(f"buffer_load_dwordx4 v{VXR+i}, {WS}, s65 offen sc1 lds")
    a("s_waitcnt vmcnt(5)")
    ladd(a, 1, F_CONV + 4, 54)
    a("s_waitcnt vmcnt(0)")
    ladd(a, 1, F_CONV, 54)
    stamp(a, 2)
    a("s_barrier")
    lwait(a, 1, F_ZD, 8, 61, sleep=16)
    publish(a, 2, 48, 49)
    a("s_sleep 40")
    poll(a, 2, 48, sleep=8)
    a("s_lshl_b32 s64, s48, 18")
    a("s_lshl_b32 s65, s49, 7")
    a("s_add_u32 s64, s64, s65")
    a(f"s_add_u32 s64, s64, {WS_ZT}")
    for i in range(8):
        a(f"v_xor_b32 v8, {i}, v6")
        a("v_lshlrev_b32 v8, 4, v8")
        a("v_lshl_add_u32 v8, v4, 12, v8")
        a(f"s_mov_b32 m0, {L_Z + 1024*i}")
        a("s_nop 0")
        a(f"buffer_load_dwordx4 v8, {WS}, s64 offen sc1 lds")
        a("s_add_u32 s64, s64, 32768")
    a("s_waitcnt vmcnt(0)")
    stamp(a, 4)
    a.label("HEND")
    endpgm(a)

def gen_compute(a):
    a.label("CPATH")
    a.label("C_NN")
    a("""
    v_and_b32 v4, 31, v2
    v_lshrrev_b32 v5, 5, v2
    v_bfe_u32 v63, v2, 1, 3
    v_xor_b32 v63, v63, v5
    s_and_b32 s56, s3, 1
    s_lshl_b32 s56, s56, 12
    v_lshlrev_b32 v61, 7, v4
    v_add_u32 v61, s56, v61
    """)
    for st in range(4):
        a(f"v_xor_b32 v60, {2*st}, v63")
        a(f"v_lshl_add_u32 v{56+st}, v60, 4, v61")
    a("""
    v_bfe_u32 v61, v2, 2, 2
    v_lshl_add_u32 v62, v5, 3, v61
    v_lshlrev_b32 v60, 8, v62
    v_bfe_u32 v63, v2, 4, 1
    v_lshl_add_u32 v60, v63, 5, v60
    v_and_b32 v63, 3, v2
    v_lshl_add_u32 v60, v63, 3, v60
    s_lshr_b32 s56, s3, 1
    v_xor_b32 v63, s56, v61
    v_lshl_add_u32 v60, v63, 6, v60
    """)
    a(f"v_add_u32 v60, {L_RING}, v60")
    for i in range(32): a(f"v_mov_b32 v{64+i}, 0")
    a("""
    s_lshl_b32 s56, s52, 2
    s_and_b32 s57, s3, 2
    s_add_u32 s56, s56, s57
    s_lshl_b32 s56, s56, 6
    s_lshl_b32 s57, s53, 1
    s_add_u32 s56, s56, s57
    s_and_b32 s57, s3, 1
    s_add_u32 s64, s56, s57
    s_lshl_b32 s56, s64, 11
    s_mov_b32 s59, 0xffff0000
    """)
    a("s_waitcnt lgkmcnt(0)")
    stamp(a, 0)
    a("v_lshlrev_b32 v11, 4, v4")
    a(f"v_add_u32 v11, {L_A1 + 17408}, v11")
    srd(a, 28, P_WS, WS_SIZE)
    srd(a, 32, P_Q, 2048*512*2)
    srd(a, 36, P_OUT, 2048*1024*2)
    a(f"s_lshl_b32 s67, s66, 2")
    a(f"s_load_dword s68, s[{P_SSMD}:{P_SSMD+1}], s67")
    a("""
    s_lshl_b32 s57, s3, 10
    v_lshlrev_b32 v10, 9, v5
    v_lshl_add_u32 v10, v4, 2, v10
    v_add_u32 v10, s57, v10
    v_add_u32 v0, s57, v3
    s_sub_u32 s57, 7, s3
    v_and_b32 v12, 7, v4
    v_xor_b32 v12, s57, v12
    v_lshlrev_b32 v12, 4, v12
    v_lshl_add_u32 v12, v4, 8, v12
    v_lshlrev_b32 v9, 3, v5
    v_sub_u32 v12, v12, v9
    s_lshl_b32 s57, s3, 2
    v_lshrrev_b32 v8, 4, v2
    v_add_u32 v8, s57, v8
    v_xor_b32 v8, v8, v2
    v_and_b32 v8, 7, v8
    v_lshlrev_b32 v8, 4, v8
    v_lshrrev_b32 v9, 3, v2
    v_lshl_add_u32 v8, v9, 12, v8
    s_lshl_b32 s65, s48, 18
    s_lshl_b32 s57, s3, 15
    s_add_u32 s65, s65, s57
    s_sub_u32 s57, 31, s49
    s_lshl_b32 s57, s57, 7
    s_add_u32 s65, s65, s57
    v_mov_b32 v54, 1
    """)
    a(f"v_add_u32 v10, {L_A1}, v10")
    a(f"v_add_u32 v12, {L_A1S + 8}, v12")
    a(f"v_add_u32 v0, {L_A1S}, v0")
    a(f"s_add_u32 s65, s65, {WS_XR}")
    a("""
    v_and_b32 v7, 0x33, v2
    v_bfe_u32 v6, v2, 2, 1
    v_lshl_or_b32 v7, v6, 3, v7
    v_bfe_u32 v6, v2, 3, 1
    v_lshl_or_b32 v7, v6, 2, v7
    v_lshlrev_b32 v7, 4, v7
    v_lshlrev_b32 v61, 7, v62
    v_bfe_u32 v63, v2, 4, 1
    v_lshl_add_u32 v61, v63, 5, v61
    v_lshlrev_b32 v9, 17, v63
    v_and_b32 v63, 3, v2
    v_lshl_add_u32 v61, v63, 3, v61
    v_bfe_u32 v63, v2, 3, 1
    s_lshr_b32 s58, s3, 1
    v_xor_b32 v63, s58, v63
    v_lshl_add_u32 v61, v63, 6, v61
    v_lshl_add_u32 v9, v5, 8, v9
    v_and_b32 v6, 15, v2
    v_lshl_add_u32 v9, v6, 4, v9
    """)
    a(f"v_add_u32 v61, {L_RING}, v61")
    a(f"s_add_u32 s56, s56, {WS_KV}")
    a("s_add_u32 s57, s56, 131072")
    a("s_barrier")
    a("ds_read_b128 v[140:143], v11")
    stamp(a, 1)
    dstamp(a, 13)
    KR = 128; VR = 135; SK = 140; KF = 144; TAP = 152; KVv = 156; KS = 160; OUT = 164
    for r in range(7): a(f"ds_read_b32 v{KR+r}, v10 offset:{(5+r)*128}")
    for r in range(4): a(f"ds_read_b32 v{VR+r}, v10 offset:{9216 + r*128}")
    a("s_waitcnt lgkmcnt(0)")
    estamp(a, 5)
    for c in range(2):
        def unpack(dst, src, hi):
            if hi: a(f"v_and_b32 v{dst}, s59, v{src}")
            else:  a(f"v_lshlrev_b32 v{dst}, 16, v{src}")
        for r in range(7): unpack(KF + r, KR + r, c)
        for j in range(4): unpack(TAP + j, SK + 2*c + (j >> 1), j & 1)
        for r in range(4): unpack(KVv + r, VR + r, c)
        for r in range(4): a(f"v_mul_f32 v{KS+r}, v{KF+r}, v{TAP+3}")
        for r in range(4): a(f"v_fmac_f32 v{KS+r}, v{KF+r+1}, v{TAP+2}")
        for r in range(4): a(f"v_fmac_f32 v{KS+r}, v{KF+r+2}, v{TAP+1}")
        for r in range(4): a(f"v_fmac_f32 v{KS+r}, v{KF+r+3}, v{TAP+0}")
        for r in range(4): a(f"v_mul_f32 v{KVv+r}, v{KVv+r}, v{KS+r}")
        o = OUT + 2*c
        a(f"v_cvt_pk_bf16_f32 v{o}, v{KVv+3}, v{KVv+2}")
        a(f"v_cvt_pk_bf16_f32 v{o+1}, v{KVv+1}, v{KVv}")
        a(f"ds_write_b64 v12, {vr(o,2)} offset:{128*c}")
        estamp(a, 6 + c)
    a("s_waitcnt lgkmcnt(0)")
    if GB:
        a("s_barrier")
        a("ds_read_b128 v[48:51], v0")
        a("s_waitcnt lgkmcnt(0)")
        a(f"buffer_store_dwordx4 v[48:51], v8, {WS}, s65 offen sc1")
    a("s_cmp_ge_u32 s3, 4")
    a("s_cbranch_scc1 VPATH")
    FS = [16, 96]
    def p1_reads(c):
        xo = c*8192; wo = (c & 3)*16384
        for st in range(4):
            b = FS[c & 1] + 8*st
            a(f"ds_read_b128 {vr(b,4)}, v{56+st} offset:{xo}")
            a(f"ds_read_b64_tr_b16 {vr(b+4,2)}, v60 offset:{wo + 16*st*256}")
            a(f"ds_read_b64_tr_b16 {vr(b+6,2)}, v60 offset:{wo + (16*st+4)*256}")
    def p1_mfma(c, isv):
        for st in range(4):
            b = FS[c & 1] + 8*st
            x = vr(b,4); w = vr(b+4,4)
            if isv: a(f"v_mfma_f32_32x32x16_bf16 v[64:79], {x}, {w}, v[64:79]")
            else:   a(f"v_mfma_f32_32x32x16_bf16 v[64:79], {w}, {x}, v[64:79]")
    def pass1(isv):
        for c in range(8):
            if c == F0_AT: a("s_waitcnt vmcnt(0)")
            a("s_barrier")
            dstamp(a, 1 + c)
            if c in (0, 4): stamp(a, 2 + c//4)
            if c == 0 and not GB: a("ds_read_b128 v[48:51], v0")
            p1_reads(c)
            if c: p1_mfma(c - 1, isv)
            elif not GB:
                a("s_waitcnt lgkmcnt(12)")
                a(f"buffer_store_dwordx4 v[48:51], v8, {WS}, s65 offen sc1")
            a("s_waitcnt lgkmcnt(0)")
        a("s_barrier")
    pass1(False)
    P2B = [16, 24, 32, 40, 128, 136]
    lg2 = Cnt(a, "lgkmcnt", 15)
    def p2_read1(n):
        j = n >> 3; st = n & 7
        b = P2B[n % 6]
        if st == 0 and j:
            u = uid()
            lg2.wait(f"f{j}")
            a.nopad += 1
            a(f"v_cmp_gt_u32 vcc, {j}, v55")
            a(f"s_cbranch_vccz P2X{u}")
            a.label(f"P2W{u}")
            a(f"ds_read_b32 v55, v1 offset:{F_W}")
            a("s_waitcnt lgkmcnt(0)")
            a(f"v_cmp_gt_u32 vcc, {j}, v55")
            a(f"s_cbranch_vccnz P2W{u}")
            a.label(f"P2X{u}")
            a.nopad -= 1
        lg2.op(f"ds_read_b128 {vr(b,4)}, v{56+(st&3)} offset:{(2*j + (st>>2))*8192}", f"s{n}")
        lg2.op(f"ds_read_b64_tr_b16 {vr(b+4,2)}, v61 offset:{j*16384 + (16*st)*128}", f"s{n}")
        lg2.op(f"ds_read_b64_tr_b16 {vr(b+6,2)}, v61 offset:{j*16384 + (16*st + 4)*128}", f"s{n}")
        if st == 4 and j < 3: lg2.op(f"ds_read_b32 v55, v1 offset:{F_W}", f"f{j+1}")
    a("s_setprio 2")
    dstamp(a, 9)
    for n in range(4): p2_read1(n)
    p1_mfma(7, False)
    for n in range(32):
        if f"s{n}" in lg2.ops: lg2.wait(f"s{n}")
        b = P2B[n % 6]
        a(f"v_mfma_f32_32x32x16_bf16 v[80:95], {vr(b+4,4)}, {vr(b,4)}, v[80:95]")
        if n + 4 < 32: p2_read1(n + 4)
        if n in (KST, KST + 1):
            hh = n - KST
            for p in range(4):
                a(f"v_cvt_pk_bf16_f32 v{[48,160][hh]+p}, v{64+8*hh+2*p}, v{64+8*hh+2*p+1}")
            a(f"buffer_store_dwordx4 {vr([48,160][hh],4)}, v7, {WS}, s{56+hh} offen sc1")
    ladd(a, 1, F_P2D, 54)
    qs = f32bits(0.25 * math.log2(math.e))
    a(f"s_mov_b32 s58, {qs:#x}")
    a("s_lshl_b32 s56, s64, 10")
    a(f"s_add_u32 s56, s56, {WS_QF}")
    a("s_add_u32 s57, s56, 65536")
    a("s_nop 6")
    for hh in range(2):
        for i in range(8): a(f"v_mul_f32 v{80+8*hh+i}, s58, v{80+8*hh+i}")
        for p in range(4):
            a(f"v_cvt_pk_bf16_f32 v{96+4*hh+p}, v{80+8*hh+2*p}, v{80+8*hh+2*p+1}")
        a(f"buffer_store_dwordx4 {vr(96+4*hh,4)}, v3, {WS}, s{56+hh} offen sc1")
    a("s_setprio 0")
    stamp(a, 4)
    a("s_branch WIN1")

    a.label("VPATH")
    pass1(True)
    p1_mfma(7, True)
    a("s_nop 7")
    lwait(a, 1, F_QX, 1, 55)
    for j in range(2):
        for p in range(4):
            a(f"v_cvt_pk_bf16_f32 v{16+4*j+p}, v{64+8*j+2*p}, v{64+8*j+2*p+1}")
        a(f"buffer_store_dwordx4 {vr(16+4*j,4)}, v9, {WS}, s56 offen offset:{1024 + 512*j} sc1")
    stamp(a, 4)

    a.label("WIN1")
    AL = 48; AH = 49; AB = 50
    WF = 104
    Q = 4; KF = 8; V = 12; IDX = 28; AK = 29; AV = 30; S = 32; O = 64; NM = 80
    C0 = 136; C1 = 152; CB = [104, 120]
    a("""
    s_mov_b32 s59, 0xffff0000
    s_lshr_b32 s64, s3, 2
    s_and_b32 s65, s3, 3
    v_and_b32 v6, 1, v2
    """)
    a(f"v_mul_u32_u24 v6, {L_HO[0] - 64 - (L_HE[0] - 62)}, v6")
    a(f"v_sub_u32 v6, {L_HO[0] - 64}, v6")
    a("v_lshl_add_u32 v6, v4, 1, v6")
    a("v_lshl_add_u32 v6, v5, 4, v6")
    a("s_mul_i32 s56, s64, 8324")
    a("s_lshl_b32 s57, s65, 9")
    a("s_add_u32 s56, s56, s57")
    a(f"v_add_u32 v{AL}, s56, v6")
    a(f"v_add_u32 v{AH}, 2048, v{AL}")
    a("v_sub_u32 v6, 31, v4")
    a("v_mul_u32_u24 v6, 80, v6")
    a("v_lshl_add_u32 v6, v5, 4, v6")
    a("s_mul_i32 s56, s64, 7680")
    a("s_mul_i32 s57, s65, 640")
    a("s_add_u32 s57, s56, s57")
    a(f"s_add_u32 s57, s57, {L_XR[0]}")
    a(f"v_add_u32 v{AB}, s57, v6")
    for i in range(32): a(f"v_mov_b32 v{C0+i}, 0")
    a("v_mov_b32 v0, 1")
    a("s_lshl_b32 s57, s64, 2")
    a("v_add_u32 v51, s57, v1")
    stamp(a, 5)
    fstamp(a, 1)
    lwait(a, 51, F_CONV, 2, 55)
    fstamp(a, 2)
    stamp(a, 6)
    def cr1(i):
        b = CB[i & 1]
        a(f"ds_read2_b32 {vr(b,2)}, v{AL} offset0:{8*i} offset1:{8*i+1}")
        a(f"ds_read2_b32 {vr(b+2,2)}, v{AL} offset0:{8*i+2} offset1:{8*i+3}")
        a(f"ds_read_b128 {vr(b+8,4)}, v{AB} offset:{(i>>1)*80 + (i&1)*32 + 2560}")
    def cr2(i):
        b = CB[i & 1]
        a(f"ds_read_b128 {vr(b+12,4)}, v{AB} offset:{(i>>1)*80 + (i&1)*32}")
        a(f"ds_read2_b32 {vr(b+4,2)}, v{AH} offset0:{8*i} offset1:{8*i+1}")
        a(f"ds_read2_b32 {vr(b+6,2)}, v{AH} offset0:{8*i+2} offset1:{8*i+3}")
    fil = Asm()
    f = fil
    f("s_lshl_b32 s57, s3, 13")
    f(f"s_add_u32 s57, s57, {L_RED}")
    f("""
    v_add_u32 v40, s57, v3
    v_xor_b32 v41, 64, v40
    v_xor_b32 v42, 128, v40
    v_xor_b32 v43, 192, v40
    v_and_b32 v6, 3, v2
    v_lshrrev_b32 v44, 2, v2
    s_and_b32 s57, s65, 1
    s_lshl_b32 s57, s57, 4
    v_add_u32 v44, s57, v44
    v_lshlrev_b32 v7, 2, v6
    v_xor_b32 v44, v44, v7
    v_lshlrev_b32 v44, 4, v44
    v_lshl_add_u32 v44, v6, 10, v44
    s_lshr_b32 s57, s65, 1
    s_lshl_b32 s57, s57, 12
    s_lshl_b32 s58, s64, 15
    s_add_u32 s57, s57, s58
    """)
    f(f"s_add_u32 s57, s57, {L_RED}")
    f("""
    v_add_u32 v44, s57, v44
    s_lshl_b32 s57, s65, 6
    s_sub_u32 s57, 255, s57
    v_sub_u32 v7, s57, v2
    v_lshrrev_b32 v45, 2, v7
    v_mul_u32_u24 v45, 80, v45
    v_and_b32 v7, 3, v7
    v_lshl_add_u32 v45, v7, 4, v45
    """)
    f(f"s_add_u32 s56, s56, {L_XR[0]}")
    f("""
    v_add_u32 v45, s56, v45
    s_lshl_b32 s57, s64, 4
    s_lshr_b32 s58, s68, s57
    s_lshl_b32 s58, s58, 16
    s_lshl_b32 s56, s66, 1
    s_add_u32 s56, s56, s64
    s_lshl_b32 s56, s56, 12
    s_lshl_b32 s57, s65, 10
    s_add_u32 s56, s56, s57
    """)
    f(f"s_add_u32 s56, s56, {WS_ZT}")
    f("""
    s_lshl_b32 s55, s50, 3
    s_add_u32 s55, s55, s3
    s_lshl_b32 s55, s55, 14
    """)
    f(f"s_add_u32 s55, s55, {WS_WOF}")
    f("""
    v_lshrrev_b32 v46, 3, v2
    v_and_b32 v7, 7, v2
    v_lshlrev_b32 v46, 10, v46
    v_lshl_add_u32 v46, v7, 4, v46
    s_lshl_b32 s64, s49, 16
    s_lshl_b32 s57, s3, 13
    s_add_u32 s64, s64, s57
    s_lshl_b32 s57, s48, 7
    s_add_u32 s64, s64, s57
    """)
    f("v_and_b32 v31, 27, v2")
    f("v_cmp_eq_u32 vcc, 16, v31")
    f("v_mov_b32 v31, 0x3f803f80")
    f(f"v_mov_b32 v{IDX}, 0xdddd")
    f(f"v_cndmask_b32 v{V}, 0, v31, vcc")
    for i in range(1, 16): f(f"v_mov_b32 v{V+i}, v{V}")
    f("s_mov_b32 s66, 0xffff")
    f("s_mov_b32 s67, 0xffff")
    f("s_mov_b32 s68, 0")
    f(f"s_mov_b32 s69, {(1<<1)|(1<<2)|(1<<8)}")
    f("s_lshl_b32 s57, s3, 10")
    f(f"s_add_u32 s57, s57, {L_Q}")
    f(f"v_add_u32 v{S}, s57, v3")
    f(f"v_mov_b32 v{AK}, v3")
    f("v_and_b32 v31, 15, v2")
    f("v_lshlrev_b32 v31, 4, v31")
    f(f"v_lshrrev_b32 v{AV}, 5, v2")
    f(f"v_lshl_add_u32 v{AV}, v{AV}, 8, v31")
    f(f"v_add_u32 v{AV}, 1024, v{AV}")
    for i in range(16): f(f"v_mov_b32 v{O+i}, 0")
    for i in range(8): f(f"v_mov_b32 v{S+16+8+i}, 0")
    f("s_mov_b32 s65, 0")
    fl = [l for l, _ in fil.l]
    per = -(-len(fl) // 42)
    def fill():
        for _ in range(per):
            if fl: a(fl.pop(0))
    cr1(0); cr2(0)
    for i in range(16):
        b = CB[i & 1]
        if i < 15: cr1(i + 1)
        a(f"s_waitcnt lgkmcnt({6 if i < 15 else 5})")
        a(f"v_mfma_f32_32x32x16_bf16 {vr(C0,16)}, {vr(b,4)}, {vr(b+8,4)}, {vr(C0,16)}")
        fill()
        a(f"s_waitcnt lgkmcnt({3 if i < 15 else 2})")
        a(f"v_mfma_f32_32x32x16_bf16 {vr(C1,16)}, {vr(b,4)}, {vr(b+12,4)}, {vr(C1,16)}")
        if i < 15: cr2(i + 1)
        if i == 14:
            a(f"ds_read_b32 v55, v1 offset:{F_P2D}")
            a("ds_read_b128 v[36:39], v45")
        fill()
        a(f"v_mfma_f32_32x32x16_bf16 {vr(C1,16)}, {vr(b+4,4)}, {vr(b+8,4)}, {vr(C1,16)}")
        fill()
        if i in (ST_AT, ST_AV):
            u = uid()
            if ST_AT != ST_AV:
                a("s_cmp_lt_u32 s3, 4")
                a(f"s_cbranch_scc{0 if i == ST_AT else 1} STS{u}")
            a("s_waitcnt vmcnt(0) lgkmcnt(0)")
            ladd(a, 1, F_ST, 0)
            a("s_waitcnt lgkmcnt(0)")
            a.label(f"STS{u}")
    assert not fl
    fstamp(a, 5)
    a("s_waitcnt lgkmcnt(0)")
    lwait(a, 1, F_P2D, 4, 55, pre=True)
    for d in range(4):
        a(f"v_lshlrev_b32 v{Q+7-2*d}, 16, v{36+d}")
        a(f"v_and_b32 v{Q+6-2*d}, s59, v{36+d}")
    for j in range(4): a(f"ds_write_b128 v{40+j}, {vr(C0+4*j,4)} offset:{j*1024}")
    for j in range(4): a(f"ds_write_b128 v{40+j}, {vr(C1+4*j,4)} offset:{4096 + j*1024}")
    a("v_mov_b32 v96, v46")
    a("s_waitcnt lgkmcnt(0)")
    fstamp(a, 8)
    ladd(a, 51, F_C1, 0)
    lwait(a, 51, F_C1, 4, 55)
    fstamp(a, 9)
    stamp(a, 7)
    R = 104
    for src in range(4):
        a(f"ds_read_b128 {vr(R+8*src,4)}, v44 offset:{src*8192}")
        a(f"ds_read_b128 {vr(R+4+8*src,4)}, v44 offset:{src*8192 + 512}")
    a("s_waitcnt lgkmcnt(6)")
    for i in range(8): a(f"v_fmac_f32 v{R+i}, s58, v{Q+i}")
    for src in range(1, 4):
        a(f"s_waitcnt lgkmcnt({6 - 2*src})")
        for i in range(8): a(f"v_add_f32 v{R+i}, v{R+i}, v{R+8*src+i}")
    for i in range(4): a(f"v_cvt_pk_bf16_f32 v{100+i}, v{R+2*i}, v{R+1+2*i}")
    a(f"buffer_store_dwordx4 v[100:103], v3, {WS}, s56 offen sc1")
    a.label("RUN1")
    stamp(a, 8)
    fstamp(a, 12)
    a("s_barrier")
    fstamp(a, 13)
    stamp(a, 9)
    a(f"ds_read_b128 {vr(Q,4)}, v{S}")
    a("s_mov_b64 exec, 1")
    a(f"ds_add_u32 v1, v0 offset:{F_QRD}")
    a("s_mov_b64 exec, -1")
    def prolog(cin):
        a(f"ds_read_b128 {vr(KF,4)}, v3")
        a("s_mov_b64 exec, s[66:67]")
        a(f"ds_read_b128 {vr(V,4)}, v{AV}")
        a(f"ds_read_b128 {vr(V+4,4)}, v{AV} offset:512")
        a(f"ds_read_b128 {vr(V+12,4)}, v{AV} offset:512")
        a("s_mov_b64 exec, -1")
        a("s_waitcnt lgkmcnt(3)")
        a(f"v_mfma_f32_32x32x16_bf16 {vr(S,16)}, {vr(KF,4)}, {vr(Q,4)}, {cin}")
        a(f"ds_read_b128 {vr(KF,4)}, v{AK} offset:2048")
        a("s_waitcnt lgkmcnt(1)")
        a("s_nop 9")
    prolog("0")
    a.nopad += 1
    a.raw(".p2align 6")
    a.label("LOOP")
    U = 8
    def tile(u, wf=None, cin="0", last=None):
        c = u & 1; p = c ^ 1
        Sc = S + 16*c; Sp = S + 16*p
        def ex(i): a(f"v_exp_f32 v{Sc+i}, v{Sc+i}")
        def wl(st):
            a(f"buffer_load_dwordx4 {vr(WF+4*st,4)}, v3, {WS}, s55 offen offset:{1024*(st&3)} sc1")
            if st % 4 == 3: a("s_add_u32 s55, s55, 4096")
        a(f"s_setprio {3-(u&3)}")
        ex(0); ex(1)
        a(f"v_smfmac_f32_32x32x32_bf16 {vr(O,16)}, {vr(V+8*p+4,4)}, {vr(Sp+8,8)}, v{IDX}")
        a("s_mov_b64 exec, s[66:67]")
        a(f"ds_read_b128 {vr(V+8*p,4)}, v{AV} offset:{(u+1)*2048}")
        a(f"ds_read_b128 {vr(V+8*p+4,4)}, v{AV} offset:{(u+1)*2048+512}")
        a("s_mov_b64 exec, -1")
        ex(2); ex(3); ex(4)
        a("s_waitcnt lgkmcnt(2)")
        a(f"v_mfma_f32_32x32x16_bf16 {vr(Sp,16)}, {vr(KF,4)}, {vr(Q,4)}, {cin}")
        a(f"ds_read_b128 {vr(KF,4)}, v{AK} offset:{(u+2)*2048}")
        if wf is not None: wl(2*wf)
        for i in range(5, 10): ex(i)
        a(f"v_smfmac_f32_32x32x32_bf16 {vr(O,16)}, {vr(V+8*c,4)}, {vr(Sc,8)}, v{IDX}")
        if wf is not None: wl(2*wf + 1)
        if last: last()
        for i in range(10, 16): ex(i)
    def lend():
        a("s_add_u32 s65, s65, 1")
        a("s_bitcmp0_b32 s69, s65")
    for u in range(U): tile(u, last=lend if u == U-1 else None)
    a(f"v_add_u32 v{AK}, {U*2048}, v{AK}")
    a(f"v_add_u32 v{AV}, {U*2048}, v{AV}")
    a("s_cbranch_scc1 LOOP")
    a(f"s_cmp_lt_u32 s65, {64//U}")
    a("s_cbranch_scc1 LOOPB")
    a.nopad -= 1
    a.label("LEXIT")
    a(f"v_smfmac_f32_32x32x32_bf16 {vr(O,16)}, {vr(V+8+4,4)}, {vr(S+16+8,8)}, v{IDX}")
    a("s_setprio 0")
    a(f"ds_read_b64 v[98:99], v1 offset:{F_NONCE}")
    a("""
    s_lshl_b32 s56, s51, 3
    s_add_u32 s56, s56, s3
    s_lshl_b32 s56, s56, 5
    s_add_u32 s56, s56, s54
    s_lshl_b32 s55, s56, 6
    s_lshl_b32 s56, s56, 10
    """)
    a(f"s_add_u32 s55, s55, {WS_FL + 3*16384}")
    a(f"s_add_u32 s64, s56, {WS_OF}")
    a(f"s_mov_b32 s56, {f32bits(2.0**100):#x}")
    a(f"s_mov_b32 s57, {f32bits(2.0**40):#x}")
    a(f"s_mov_b32 s58, {f32bits(2.0**-40):#x}")
    a("s_waitcnt lgkmcnt(0)")
    a(f"v_rcp_f32 v{AK}, v{O+8}")
    a("s_cmp_lg_u32 s68, 0")
    a("s_cbranch_scc1 FIN")
    a(f"v_add_f32 v31, abs(v{O}), abs(v{O+1})")
    for i in range(2, 8): a(f"v_add_f32 v31, v31, abs(v{O+i})")
    a("v_cmp_ngt_f32 vcc, s56, v31")
    a(f"v_cmp_ngt_f32 s[62:63], s57, v{O+8}")
    a(f"v_cmp_nlt_f32 s[70:71], s58, v{O+8}")
    a("s_or_b64 s[62:63], s[62:63], s[70:71]")
    a("s_or_b64 s[62:63], vcc, s[62:63]")
    a("s_cbranch_scc1 FALLBACK")
    a.label("FIN")
    for i in range(8): a(f"v_mul_f32 v{O+i}, v{O+i}, v{AK}")
    for i in range(4): a(f"v_cvt_pk_bf16_f32 v{KF+i}, v{O+2*i}, v{O+2*i+1}")
    a(f"buffer_store_dwordx4 {vr(KF,4)}, v3, {WS}, s64 offen sc1")
    stamp(a, 10)
    a("s_waitcnt vmcnt(1)")
    a("s_barrier")
    stamp(a, 11)
    a("""
    v_lshrrev_b32 v4, 3, v2
    v_and_b32 v5, 7, v2
    v_xor_b32 v6, s3, v5
    v_lshlrev_b32 v6, 4, v6
    v_lshl_add_u32 v6, v5, 10, v6
    v_lshl_add_u32 v6, v4, 1, v6
    """)
    a(f"v_add_u32 v6, {L_Z}, v6")
    for jj in range(8): a(f"ds_read_u16_d16_hi v{32+jj}, v6 offset:{128*jj}")
    a("""
    v_lshlrev_b32 v7, 11, v4
    v_lshl_add_u32 v7, v5, 4, v7
    s_lshl_b32 s64, s49, 17
    s_lshl_b32 s57, s3, 14
    s_add_u32 s64, s64, s57
    s_lshl_b32 s57, s48, 7
    s_add_u32 s64, s64, s57
    v_and_b32 v14, 15, v2
    v_lshrrev_b32 v15, 4, v2
    v_lshlrev_b32 v13, 4, v14
    v_lshl_add_u32 v13, v15, 9, v13
    v_and_b32 v12, 1, v15
    v_lshl_add_u32 v14, v12, 4, v14
    v_lshlrev_b32 v14, 11, v14
    v_lshrrev_b32 v15, 1, v15
    v_lshl_add_u32 v14, v15, 4, v14
    s_lshl_b32 s56, s48, 3
    s_add_u32 s56, s56, s51
    s_lshl_b32 s56, s56, 16
    s_lshl_b32 s57, s3, 5
    s_add_u32 s56, s56, s57
    s_lshl_b32 s57, s50, 8
    s_add_u32 s56, s56, s57
    s_add_u32 s56, s56, 1024
    v_mov_b32 v12, 0
    """)
    for p in range(4):
        a(f"v_lshlrev_b32 v{40+2*p}, 16, v{100+p}")
        a(f"v_and_b32 v{41+2*p}, s59, v{100+p}")
    a("s_waitcnt lgkmcnt(0)")
    for i in range(8):
        a(f"v_and_b32 v{32+i}, s59, v{32+i}")
        a(f"v_mul_f32 v{32+i}, v{32+i}, v{40+i}")
    for i in range(4): a(f"v_cvt_pk_bf16_f32 v{100+i}, v{32+2*i}, v{33+2*i}")
    a("s_waitcnt vmcnt(0)")
    a("s_mov_b64 exec, 1")
    a(f"buffer_store_dwordx2 v[98:99], v12, {WS}, s55 offen sc1")
    a("s_mov_b64 exec, -1")
    a(f"buffer_store_dwordx4 v[100:103], v7, s[36:39], s64 offen {os.environ.get('A3F','')}")
    a(f"v_add_u32 v5, {F_GQ}, v1")
    a("s_mov_b32 s65, 0")
    a.nopad += 1
    a.label("GQ")
    a("ds_read_b32 v4, v5")
    a("s_waitcnt lgkmcnt(0)")
    a.label("GQ2")
    a("v_readfirstlane_b32 s57, v4")
    a("s_cmp_eq_u32 s57, 0")
    a("s_cbranch_scc1 GQ")
    a("s_lshl_b32 s58, s57, 10")
    a("v_add_u32 v6, s58, v13")
    a("ds_read_b32 v4, v5 offset:4")
    for st in range(2):
        for m in range(2):
            a(f"ds_read_b128 {vr(16+8*st+4*m,4)}, v6 offset:{2048*st + 256*m}")
    a("v_add_u32 v5, 4, v5")
    a("s_add_u32 s65, s65, 1")
    a("s_cmp_gt_u32 s57, 16")
    a("s_cbranch_scc1 GH")
    for g in (0, 1, 2):
        a(f"s_cmp_eq_u32 s57, {4*g+4}")
        a(f"s_cbranch_scc1 GC{g}")
    def gcase(g, last=False):
        a.label(f"GC{g}")
        for st in range(2):
            for m in range(2):
                a(f"s_waitcnt lgkmcnt({3 - 2*st - m})")
                d = vr(32+8*g+4*m,4)
                a(f"v_mfma_f32_16x16x32_bf16 {d}, {vr(WF+4*(2*g+st),4)}, {vr(16+8*st+4*m,4)}, {d if st else 0}")
        a("s_cmp_lt_u32 s65, 8")
        a("s_cbranch_scc1 GQ2")
        if not last: a("s_branch GE")
    gcase(3)
    a.label("GH")
    for g in (4, 5, 6):
        a(f"s_cmp_eq_u32 s57, {4*g+4}")
        a(f"s_cbranch_scc1 GC{g}")
    for g in (7, 0, 1, 2, 4, 5): gcase(g)
    gcase(6, True)
    a.label("GE")
    a.nopad -= 1
    stamp(a, 12)
    a("s_nop 7")
    for step in (1, 2, 4):
        for g in range(0, 8, 2*step):
            for i in range(0, 8, 2):
                a(f"v_pk_add_f32 {vr(32+8*g+i,2)}, {vr(32+8*g+i,2)}, {vr(32+8*(g+step)+i,2)}")
    for m in range(2):
        a(f"v_cvt_pk_bf16_f32 v{16+2*m}, v{32+4*m}, v{33+4*m}")
        a(f"v_cvt_pk_bf16_f32 v{17+2*m}, v{34+4*m}, v{35+4*m}")
    a("s_nop 1")
    a("v_permlane16_swap_b32 v16, v18")
    a("v_permlane16_swap_b32 v17, v19")
    a(f"buffer_store_dwordx4 v[16:19], v14, s[36:39], s56 offen {os.environ.get('OUTF','')}")
    stamp(a, 13)
    endpgm(a)
    a.label("LOOPB")
    a("s_cmp_eq_u32 s65, 2")
    a("s_cbranch_scc1 LOOPC")
    lwait(a, 1, F_K1, 1, 97)
    a("s_branch LOOP")
    a.label("LOOPC")
    a("s_waitcnt vmcnt(0)")
    ladd(a, 1, F_ZD, 0)
    lwait(a, 1, F_K2, 2, 97)
    a("buffer_load_dwordx4 v[100:103], v96, s[32:35], s64 offen")
    for u in range(8): tile(u, u)
    a(f"v_add_u32 v{AK}, {8*2048}, v{AK}")
    a(f"v_add_u32 v{AV}, {8*2048}, v{AV}")
    a("s_add_u32 s65, s65, 1")
    a("s_branch LOOP")

    a.nopad += 1
    a.label("FALLBACK")
    a("s_mov_b32 s68, 1")
    a(f"v_mov_b32 v{AK}, v3")
    a(f"v_mov_b32 v31, {f32bits(float('-inf')):#x}")
    a("s_mov_b32 s65, 0")
    a.label("MAXL")
    a(f"ds_read_b128 {vr(KF,4)}, v{AK}")
    a(f"v_add_u32 v{AK}, 2048, v{AK}")
    a("s_waitcnt lgkmcnt(0)")
    a(f"v_mfma_f32_32x32x16_bf16 {vr(S,16)}, {vr(KF,4)}, {vr(Q,4)}, 0")
    a("s_nop 15")
    for i in range(0, 16, 2): a(f"v_max3_f32 v31, v31, v{S+i}, v{S+i+1}")
    a("s_add_u32 s65, s65, 1")
    a("s_cmp_lt_u32 s65, 64")
    a("s_cbranch_scc1 MAXL")
    a(f"v_mov_b32 v{S}, v31")
    a("s_nop 1")
    a(f"v_permlane32_swap_b32 v31, v{S}")
    a("s_nop 1")
    a(f"v_max_f32 v31, v31, v{S}")
    for i in range(16): a(f"v_sub_f32 v{NM+i}, 0, v31")
    a(f"v_mov_b32 v{AK}, v3")
    a(f"v_subrev_u32 v{AV}, {64*2048}, v{AV}")
    for i in range(16): a(f"v_mov_b32 v{O+i}, 0")
    for i in range(8): a(f"v_mov_b32 v{S+16+8+i}, 0")
    a("s_mov_b32 s65, 0")
    prolog(vr(NM,16))
    a.label("FBL")
    for u in range(2): tile(u, cin=vr(NM,16))
    a(f"v_add_u32 v{AK}, {2*2048}, v{AK}")
    a(f"v_add_u32 v{AV}, {2*2048}, v{AV}")
    a("s_add_u32 s65, s65, 1")
    a("s_cmp_lt_u32 s65, 32")
    a("s_cbranch_scc1 FBL")
    a("s_branch LEXIT")

HEAD = '.amdgcn_target "amdgcn-amd-amdhsa--gfx950"\n.text\n'
def sizes(lines):
    txt = HEAD
    for i, (l, _) in enumerate(lines):
        if l.startswith("@@") or l.startswith(".p2align"): continue
        txt += f"ZZ{i}:\n{l}\n"
    txt += "ZZEND:\n"
    open("_sz.s", "w").write(txt)
    subprocess.run(["clang", "-x", "assembler", "-target", "amdgcn-amd-amdhsa", "-mcpu=gfx950", "-c", "_sz.s", "-o", "_sz.o"], check=True)
    out = subprocess.run(["llvm-objdump", "-t", "_sz.o"], capture_output=True, text=True).stdout
    ad = {}
    for m in re.finditer(r"^([0-9a-f]+) .* ZZ(\w+)$", out, re.M): ad[m.group(2)] = int(m.group(1), 16)
    keys = sorted((int(k) for k in ad if k != "END"))
    sz = {}
    for x, y in zip(keys, keys[1:] + ["END"]): sz[x] = ad[str(y)] - ad[str(x)]
    return sz

def layout(lines):
    NW = 8
    if not PADS:
        return "\n".join(l for l, _ in lines if not l.startswith("@@")) + "\n"
    sz = sizes(lines)
    CALL = 8*NW
    out = []; pos = 0; npad = 0; i = 0; n = len(lines)
    def emit_pad():
        nonlocal pos, npad
        prev = out[-1].strip() if out else ""
        if not (prev.startswith("s_branch") or prev.startswith("s_endpgm")):
            out.append(f"    s_branch PSK{npad}"); pos += 4
        out.append(".p2align 10"); pos = (pos + 1023)//1024*1024
        out.append(f"PAD{npad}:"); out.append(f"@@PADNEXT{npad}@@"); pos += 4
        out.append(f"PSK{npad}:")
        npad += 1
    def lsize(k, p):
        l = lines[k][0]
        if l == "@@PADCALL@@": return CALL
        if l.startswith("@@"): return 0
        if l.startswith(".p2align"):
            al = 1 << int(l.split()[1]); return (-p) % al
        return sz.get(k, 0)
    while i < n:
        l, np_ = lines[i]
        if l == "@@FORCEPAD@@":
            emit_pad(); i += 1; continue
        if not np_ and pos >= 1024:
            p = pos; k = i
            p += lsize(k, p); k += 1
            while k < n and lines[k][1] and lines[k][0] != "@@FORCEPAD@@":
                p += lsize(k, p); k += 1
            lim = (pos // 1024 + 1)*1024 if pos % 1024 else pos + 1024
            if p + 4 > lim and k < n and lines[k][0] != "@@FORCEPAD@@" and (pos % 1024) > 8:
                emit_pad()
        out.append(l); pos += lsize(i, pos); i += 1
    txt = "\n".join(out) + "\n"
    call = ""
    for w in range(NW):
        call += f"    s_cmp_eq_u32 s3, {w}\n    s_cbranch_scc1 {'PAD%d' % w if w < npad else 'PADRET'}\n"
    txt = txt.replace("@@PADCALL@@\n", call)
    for k in range(npad):
        nxt = f"PAD{k+NW}" if k + NW < npad else "PADRET"
        txt = txt.replace(f"@@PADNEXT{k}@@", f"    s_branch {nxt}")
    return txt

def main():
    ref = open(f"cdna_kernels/{NAME}.s.ref").read().split("\n")
    hdr = []
    for line in ref:
        if line.startswith(";") and "@launch" not in line: hdr.append(line)
        elif not line.startswith(";"): break
    a = Asm(); gen_entry(a); gen_loader1(a)
    cut = next(i for i, (l, _) in enumerate(a.l) if "L0: " in l or l.strip().startswith("@@CUT")) if False else None
    b = Asm(); gen_compute(b)
    c = Asm(); c.nopad = 1; stampout(c); c.label("END"); c("s_endpgm")
    k = max(i for i, (l, _) in enumerate(a.l) if l == "LQ:")
    first = a.l[:k]; second = a.l[k:]
    kf = next(i for i, (l, _) in enumerate(b.l) if l == "FALLBACK:")
    lines = first + b.l[:kf] + second + b.l[kf:] + c.l
    out = "\n".join(hdr) + "\n"
    out += f"; @launch grid=(256,1,1) block=(768,1,1) lds={L_TOTAL}\n"
    out += HEAD + layout(lines)
    out += f""".section .rodata,"a"
.p2align 6
.amdhsa_kernel {KN}
  .amdhsa_next_free_vgpr 168
  .amdhsa_next_free_sgpr 96
  .amdhsa_accum_offset 168
  .amdhsa_group_segment_fixed_size 0
  .amdhsa_kernarg_size 96
  .amdhsa_user_sgpr_count 2
  .amdhsa_user_sgpr_kernarg_segment_ptr 1
  .amdhsa_system_sgpr_workgroup_id_x 1
  .amdhsa_float_denorm_mode_32 3
.end_amdhsa_kernel
"""
    dst = sys.argv[1] if len(sys.argv) > 1 else f"cdna_kernels/{NAME}.s"
    open(dst, "w").write(out)

if __name__ == "__main__":
    main()
```

```python
import sys, math, struct, os, subprocess, re

NAME = "concat_heads__ssm_conv_h3__softmax_full_mha__prompt"
KN = NAME + "_kernel"
E = lambda n, d: int(os.environ.get(n, str(d)))
STAMP = E("STAMP", 0); DIAG = E("DIAG", 0)
F0_AT = E("F0_AT", 4); ST_AT = E("ST_AT", 5); ST_AV = E("ST_AV", 2); WF_AT = E("WF_AT", 7); PADS = E("PADS", 0); GATH = E("GATH", 2); XRP = E("XRP", 7); QST = E("QST", 8); GB = E("GB", 0); WOE = E("WOE", 0); KST = E("KST", 30); WFM = E("WFM", 1); HAT = E("HAT", 6); NON_AT = E("NON_AT", 0)

WS_QF  = 0; WS_KV = 2 << 20; WS_OF = 6 << 20; WS_XR = 8 << 20; WS_ZT = 10 << 20
WS_FL  = 12 << 20; WS_WOF = 13 << 20; WS_ST = 16 << 20; WS_SIZE = 18 << 20

L_X = 0; L_RING = 65536; L_CONV = 131072
L_XR = [L_CONV, L_CONV + 7680]
L_HE = [L_CONV + 15360 + 64, L_CONV + 15360 + 8324 + 64]
L_HO = [L_HE[0] + 4096 + 68, L_HE[1] + 4096 + 68]
L_MISC = L_CONV + 15360 + 2*8324
L_TOTAL = 163840
L_Q = 57344; L_Z = L_CONV; L_O = 4096; L_RED = 65536
L_A1 = L_CONV
L_A1S = L_CONV + 18432
L_WT = L_CONV + 26624
F_X = 0; F_W = 4; F_QX = 8; F_FULL = 0; F_FULLA = 48; F_FREE = 64; F_STG = 112; F_XRD = 116; F_C1 = 120; F_ISS = 128
F_GQ = 200; F_K1 = 184; F_K2 = 188; F_QRD = 192; F_ZD = 196; F_CONV = 176; F_P2D = 148; F_ST = 152; F_WOF = 156; F_NONCE = 160; F_HE = 168

def f32bits(x): return struct.unpack("<I", struct.pack("<f", x))[0]

class Asm:
    def __init__(self): self.l = []; self.nopad = 0
    def __call__(self, s):
        for line in s.strip("\n").split("\n"):
            if line.strip(): self.l.append(("    " + line.strip(), self.nopad))
    def label(self, n): self.l.append((n + ":", 1))
    def raw(self, s): self.l.append((s, 1))

class Cnt:
    def __init__(self, a, name, mx): self.a = a; self.ops = []; self.name = name; self.mx = mx
    def op(self, s, tag): self.a(s); self.ops.append(tag)
    def wait(self, tag):
        idx = max(i for i, t in enumerate(self.ops) if t == tag)
        n = len(self.ops) - 1 - idx
        assert n <= self.mx, n
        self.a(f"s_waitcnt {self.name}({n})")
        self.ops = self.ops[idx+1:]

def vr(b, n): return f"v[{b}:{b+n-1}]"
P_Q, P_K, P_V, P_SHK, P_SSMK, P_SSMD, P_X, P_WQKV, P_WO, P_OUT, P_DBG, P_WS = [4 + 2*i for i in range(12)]
def srd(a, d, ptr, size):
    a(f"s_mov_b32 s{d}, s{ptr}")
    a(f"s_and_b32 s{d+1}, s{ptr+1}, 0xffff")
    a(f"s_mov_b32 s{d+2}, {size}")
    a(f"s_mov_b32 s{d+3}, 0x00020000")
WS = "s[28:31]"
NST = 14
def stamp_begin(a):
    if STAMP:
        a("s_memrealtime s[72:73]")
        a("s_memtime s[76:77]")
def dstamp(a, k):
    if DIAG == 1: stamp(a, k, True)
def estamp(a, k):
    if DIAG == 2: stamp(a, k, True)
def fstamp(a, k):
    if DIAG == 3: stamp(a, k, True)
def stamp(a, k, d=False):
    if STAMP == 3:
        m = {2: 0, 4: 2, 8: 4, 9: 6, 10: 8, 12: 10, 13: 12}
        if not d and k in m:
            a("s_memrealtime s[94:95]")
            a("s_memtime s[78:79]")
            a("s_waitcnt lgkmcnt(0)")
            a(f"s_sub_u32 s{80+m[k]}, s94, s72")
            a(f"s_sub_u32 s{81+m[k]}, s78, s76")
    elif STAMP == 2:
        if not d:
            a("s_memrealtime s[94:95]")
            a("s_waitcnt lgkmcnt(0)")
            a(f"s_mov_b32 s{80+k}, s94")
    elif STAMP and (d or not DIAG or k == 0):
        a("s_memtime s[94:95]")
        a("s_waitcnt lgkmcnt(0)")
        a(f"s_sub_u32 s{80+k}, s94, s76")
def endpgm(a):
    if STAMP: a("s_branch STAMPOUT")
    else: a("s_endpgm")
def stampout(a):
    if STAMP:
        a.label("STAMPOUT")
        srd(a, 28, P_WS, WS_SIZE)
        a("s_waitcnt vmcnt(0)")
        a("s_memrealtime s[74:75]")
        a("s_memtime s[78:79]")
        a("s_waitcnt lgkmcnt(0)")
        a("s_sub_u32 s78, s78, s76")
        a("s_mov_b64 exec, 1")
        a("v_mov_b32 v4, s72")
        a("v_mov_b32 v5, s74")
        a("v_mov_b32 v6, s78")
        for k in range(NST): a(f"v_mov_b32 v{7+k}, s{80+k}")
        a("s_lshl_b32 s76, s2, 4")
        a("s_add_u32 s76, s76, s3")
        a("s_lshl_b32 s76, s76, 7")
        a(f"s_add_u32 s76, s76, {WS_ST}")
        a("v_mov_b32 v30, 0")
        for k in range(5):
            a(f"buffer_store_dwordx4 v[{4+4*k}:{7+4*k}], v30, {WS}, s76 offen offset:{16*k}")
        a("s_endpgm")

_uid = [0]
def uid(): _uid[0] += 1; return _uid[0]
def poll(a, stage, grp_sreg, mode=0, sleep=1):
    u = uid()
    if mode == 3: a(f"s_mov_b32 s62, {WS_FL + stage*16384}")
    else:
        a(f"s_lshl_b32 s62, s{grp_sreg}, 11")
        a(f"s_add_u32 s62, s62, {WS_FL + stage*16384}")
    a("s_mov_b32 s63, 0")
    if mode == 0: a("s_mov_b32 exec_hi, 0")
    a.nopad += 1
    a.label(f"POLL{u}")
    if mode == 3:
        a(f"buffer_load_dwordx4 v[60:63], v3, {WS}, s62 offen sc1")
        a(f"buffer_load_dwordx4 v[64:67], v3, {WS}, s62 offen offset:1024 sc1")
    else: a(f"buffer_load_dwordx2 v[60:61], v12, {WS}, s62 offen sc1")
    a("s_add_u32 s63, s63, 1")
    a("s_cmp_gt_u32 s63, 0x40000")
    a(f"s_cbranch_scc1 POLLX{u}")
    a("s_waitcnt vmcnt(0)")
    a("v_cmp_ne_u64 vcc, s[60:61], v[60:61]")
    if mode == 3:
        for r in (62, 64, 66):
            a(f"v_cmp_ne_u64 s[70:71], s[60:61], v[{r}:{r+1}]")
            a("s_or_b64 vcc, s[70:71], vcc")
        a(f"s_cbranch_scc0 POLLX{u}")
    else: a(f"s_cbranch_vccz POLLX{u}")
    a(f"s_sleep {sleep}")
    a(f"s_branch POLL{u}")
    a.label(f"POLLX{u}")
    a.nopad -= 1
    a("s_mov_b64 exec, -1")
def publish(a, stage, grp_sreg, slot_sreg):
    a(f"s_lshl_b32 s62, s{slot_sreg}, {3 if grp_sreg is None else 6}")
    if grp_sreg is not None:
        a(f"s_lshl_b32 s63, s{grp_sreg}, 11")
        a("s_add_u32 s62, s62, s63")
    a(f"s_add_u32 s62, s62, {WS_FL + stage*16384}")
    a("s_mov_b64 exec, 1")
    a(f"buffer_store_dwordx2 v[14:15], v13, {WS}, s62 offen sc1")
    a("s_mov_b64 exec, -1")
def nonce_lds(a, sgpr=True):
    u = uid()
    a.nopad += 1
    a.label(f"NL{u}")
    a(f"ds_read_b64 v[14:15], v1 offset:{F_NONCE}")
    a("s_waitcnt lgkmcnt(0)")
    a("v_cmp_eq_u32 vcc, 0, v14")
    a(f"s_cbranch_vccnz NL{u}")
    a.nopad -= 1
    if sgpr:
        a("v_readfirstlane_b32 s60, v14")
        a("v_readfirstlane_b32 s61, v15")
def lwait(a, vaddr, off, n, vt, pre=False, sleep=None):
    u = uid()
    a.nopad += 1
    if pre:
        a(f"v_cmp_gt_u32 vcc, {n}, v{vt}")
        a(f"s_cbranch_vccz LWX{u}")
    a.label(f"LW{u}")
    if sleep is None and pre and vt == 55: sleep = E("CSL", 0)
    if sleep: a(f"s_sleep {sleep*E('SLM',1)}")
    a(f"ds_read_b32 v{vt}, v{vaddr} offset:{off}")
    a("s_waitcnt lgkmcnt(0)")
    a(f"v_cmp_gt_u32 vcc, {n}, v{vt}")
    a(f"s_cbranch_vccnz LW{u}")
    a.label(f"LWX{u}")
    a.nopad -= 1
def lwait2(a, n):
    u = uid()
    a.nopad += 1
    a("v_min_u32 v55, v52, v53")
    a(f"v_cmp_gt_u32 vcc, {n}, v55")
    a(f"s_cbranch_vccz LWX{u}")
    a.label(f"LW{u}")
    a(f"ds_read_b64 v[52:53], v1 offset:{F_X}")
    a("s_waitcnt lgkmcnt(0)")
    a("v_min_u32 v55, v52, v53")
    a(f"v_cmp_gt_u32 vcc, {n}, v55")
    a(f"s_cbranch_vccnz LW{u}")
    a.label(f"LWX{u}")
    a.nopad -= 1
def ladd(a, vaddr, off, vone):
    a("s_mov_b64 exec, 1")
    a(f"ds_add_u32 v{vaddr}, v{vone} offset:{off}")
    a("s_mov_b64 exec, -1")
def barriers(a, n):
    for _ in range(n): a("s_barrier")

VX = 16; VW = 20; VQ = 24

def gen_entry(a):
    a.nopad += 1
    a.raw(f".globl {KN}")
    a.raw(".p2align 10")
    a.raw(f".type {KN},@function")
    a.label(KN)
    a("s_cmp_ge_u32 s2, 256")
    a("s_cbranch_scc1 END")
    stamp_begin(a)
    a("s_load_dwordx16 s[4:19], s[0:1], 0")
    a("s_load_dwordx8 s[20:27], s[0:1], 64")
    a("""
    v_lshrrev_b32 v1, 6, v0
    v_and_b32 v2, 63, v0
    v_readfirstlane_b32 s3, v1
    v_lshlrev_b32 v3, 4, v2
    s_and_b32 s48, s2, 7
    s_lshr_b32 s49, s2, 3
    s_and_b32 s50, s49, 3
    s_lshr_b32 s51, s49, 2
    s_and_b32 s52, s48, 4
    s_add_u32 s52, s52, s50
    s_and_b32 s53, s48, 3
    s_lshl_b32 s53, s53, 3
    s_add_u32 s53, s53, s51
    s_lshl_b32 s54, s48, 2
    s_add_u32 s54, s54, s50
    s_lshl_b32 s55, s50, 1
    s_add_u32 s55, s55, s51
    s_and_b32 s55, s55, 7
    s_lshl_b32 s66, s48, 5
    s_add_u32 s66, s66, s49
    """)
    a(f"v_mov_b32 v1, {L_MISC}")
    a("v_mov_b32 v54, 1")
    a("v_mov_b32 v13, 0")
    a("s_cmp_lt_u32 s3, 8")
    a("s_cbranch_scc1 CPATH")
    a("s_setprio 3")
    a("""
    v_lshrrev_b32 v4, 3, v2
    v_lshrrev_b32 v5, 4, v2
    v_and_b32 v6, 7, v2
    v_lshlrev_b32 v12, 6, v2
    s_cmp_eq_u32 s3, 8
    s_cbranch_scc1 XL0
    s_cmp_lg_u32 s3, 9
    s_cbranch_scc1 HPATH
    s_getpc_b64 s[56:57]
    s_lshl_b32 s58, s50, 13
    v_lshlrev_b32 v7, 7, v2
    v_add_u32 v7, s58, v7
    """)
    a(f"v_min_u32 v7, END - {KN} - 256, v7")
    a("global_load_dword v31, v7, s[56:57]")
    a("s_branch LQPAD")

def gen_loader1(a):
    a.label("XL0")
    a(f"s_setprio {E('LPRIO', 2)}")
    a("""
    v_lshlrev_b32 v10, 4, v6
    v_lshl_add_u32 v10, v4, 10, v10
    s_lshl_b32 s63, s49, 16
    s_lshl_b32 s64, s48, 7
    s_add_u32 s63, s63, s64
    v_add_u32 v28, s63, v10
    v_subrev_u32 v10, 8192, v28
    """)
    for i in range(1, 4): a(f"v_add_u32 v{28+i}, {8192-1024}, v{28+i-1}")
    a("v_xor_b32 v7, v6, v5")
    a("v_lshlrev_b32 v7, 4, v7")
    a(f"v_lshl_add_u32 v{VX}, v4, 10, v7")
    a(f"v_xor_b32 v{VX+1}, 64, v{VX}")
    a(f"v_add_u32 v{VX+1}, {8192-1024}, v{VX+1}")
    a(f"v_add_u32 v{VX+2}, {2*(8192-1024)}, v{VX}")
    a(f"v_add_u32 v{VX+3}, {2*(8192-1024)}, v{VX+1}")
    a("""
    v_bfe_u32 v7, v2, 2, 2
    v_xor_b32 v7, v7, v5
    v_mul_u32_u24 v8, 3072, v5
    v_lshrrev_b32 v9, 1, v7
    v_lshl_add_u32 v8, v9, 10, v8
    v_and_b32 v9, 1, v7
    v_lshl_add_u32 v8, v9, 6, v8
    v_and_b32 v9, 3, v2
    """)
    a(f"v_lshl_add_u32 v{VW}, v9, 4, v8")
    for i in range(1, 4): a(f"v_add_u32 v{VW+i}, {4*3072 - 1024}, v{VW+i-1}")
    a("""
    s_lshl_b32 s62, s48, 9
    s_lshl_b32 s57, s53, 16
    s_lshl_b32 s58, s52, 7
    s_mov_b32 s59, s55
    s_mov_b32 s56, 0
    s_mov_b32 s63, 32768
    """)
    a(f"s_mov_b32 m0, {L_A1}")
    a("s_waitcnt lgkmcnt(0)")
    stamp(a, 0)
    srd(a, 40, P_K, 2048*512*2)
    a("buffer_load_dwordx4 v10, s[40:43], 0 offen lds")
    for n, base in enumerate((1024, 9216)):
        if n:
            a(f"s_mov_b32 s40, s{P_V}")
            a(f"s_and_b32 s41, s{P_V+1}, 0xffff")
        for g in range(2):
            a(f"s_mov_b32 m0, {L_A1 + base + 4096*g}")
            a("s_nop 0")
            for i in range(4): a(f"buffer_load_dwordx4 v{28+i}, s[40:43], {'s63' if g else '0'} offen offset:{1024*i} lds")
    a(f"s_mov_b32 s40, s{P_SHK}")
    a(f"s_and_b32 s41, s{P_SHK+1}, 0xffff")
    a("s_movk_i32 s42, 4096")
    a(f"s_mov_b32 m0, {L_A1 + 17408}")
    a("s_mov_b32 exec_hi, 0")
    a("buffer_load_dwordx4 v3, s[40:43], s62 offen lds")
    a("s_mov_b64 exec, -1")
    srd(a, 32, P_X, 2048*512*2)
    srd(a, 36, P_WQKV, 512*1536*2)
    a("s_branch XLB")
    a.label("XL")
    a("s_cmp_eq_u32 s56, 2")
    a("s_cbranch_scc1 XLB")
    a("s_cmp_eq_u32 s56, 1")
    a("s_cbranch_scc0 XLC")
    a("s_waitcnt vmcnt(24)")
    if GB:
        a("s_barrier")
        a("s_barrier")
        a(f"s_sleep {E('GBS', 2)}")
        a("s_branch XLB")
    a.label("XLC")
    a("s_waitcnt vmcnt(48)")
    a("s_barrier")
    a.label("XLB")
    a("s_lshl_b32 s67, s56, 13")
    a("s_mov_b32 m0, s67")
    a("s_lshl_b32 s64, s59, 7")
    a("s_add_u32 s64, s64, s57")
    for i in range(4): a(f"buffer_load_dwordx4 v{VX+i}, s[32:35], s64 offen offset:{1024*i} lds")
    a("s_add_u32 m0, s67, 4096")
    a("s_add_u32 s64, s64, 32768")
    for i in range(4): a(f"buffer_load_dwordx4 v{VX+i}, s[32:35], s64 offen offset:{1024*i} lds")
    a("s_and_b32 s67, s56, 3")
    a("s_lshl_b32 s67, s67, 14")
    a(f"s_add_u32 m0, s67, {L_RING}")
    a(f"s_mul_i32 s65, s59, {64*3072}")
    a("s_add_u32 s65, s65, s58")
    a("s_add_u32 s65, s65, 1024")
    for G in range(4):
        if G:
            a("s_add_u32 m0, m0, 4096")
            a(f"s_add_u32 s65, s65, {16*3072}")
        for i in range(4): a(f"buffer_load_dwordx4 v{VW+i}, s[36:39], s65 offen offset:{1024*i} lds")
    a("s_cmp_eq_u32 s56, 3")
    a("s_addc_u32 s59, s59, 2")
    a("s_and_b32 s59, s59, 7")
    a("s_add_u32 s56, s56, 1")
    a("s_cmp_lt_u32 s56, 8")
    a("s_cbranch_scc1 XL")
    a("s_branch LQ2")
    a.nopad -= 1
    a.label("LQ")
    a.label("LQPAD")
    a("s_branch HPATH")
    a.label("LQ2")
    a("""
    v_bfe_u32 v10, v2, 4, 1
    v_lshlrev_b32 v10, 2, v10
    v_xor_b32 v10, v10, v6
    v_lshlrev_b32 v10, 4, v10
    v_mul_u32_u24 v8, 3072, v4
    """)
    a(f"v_add_u32 v{VQ}, v8, v10")
    for i in range(1, 4): a(f"v_add_u32 v{VQ+i}, {8*3072 - 1024}, v{VQ+i-1}")
    def sig(n, vm):
        a(f"v_mov_b32 v9, {n}")
        a(f"s_waitcnt vmcnt({vm})")
        a(f"ds_write_b32 v1, v9 offset:{F_W}")
    a("s_mov_b32 s56, 0")
    a("s_mov_b32 s59, s55")
    a(f"s_mov_b32 s67, {L_RING}")
    a.nopad += 1
    a.label("LQL")
    a("s_cmp_eq_u32 s56, 0")
    a("s_cbranch_scc1 LQW")
    a("s_cmp_eq_u32 s56, 1")
    a("s_cbranch_scc1 LQV")
    a("s_waitcnt vmcnt(32)")
    a.label("LQV")
    a("s_waitcnt vmcnt(40)")
    a.label("LQW")
    a("s_waitcnt vmcnt(48)")
    a("s_barrier")
    for hf in range(2):
        a("s_and_b32 s59, s59, 7")
        a(f"s_mul_i32 s65, s59, {64*3072}")
        a("s_add_u32 s65, s65, s58")
        for g in range(2):
            a(f"s_add_u32 m0, s67, {hf*8192 + g*4096}")
            a(f"s_add_u32 s65, s65, {32*3072*g}")
            for i in range(4):
                a(f"buffer_load_dwordx4 v{VQ+i}, s[36:39], s65 offen offset:{1024*i} lds")
        if hf == 0: a("s_add_u32 s59, s59, 2")
    a("s_cmp_eq_u32 s56, 1")
    a("s_addc_u32 s59, s59, 2")
    a("s_add_u32 s67, s67, 16384")
    a("s_add_u32 s56, s56, 1")
    a("s_cmp_lt_u32 s56, 4")
    a("s_cbranch_scc1 LQL")
    a.nopad -= 1
    a("s_mov_b64 exec, 1")
    a(f"ds_write_b32 v1, v54 offset:{F_QX}")
    sig(1, 32); sig(2, 16); sig(3, 0)
    a("s_mov_b64 exec, -1")
    stamp(a, 5)
    a("s_setprio 3")
    srd(a, 28, P_WS, WS_SIZE)
    nonce_lds(a)
    lwait(a, 1, F_ST, 8, 61, sleep=1)
    a.label("L0B")
    stamp(a, 7)
    a(f"s_sleep {E('P1S', 8)}")
    poll(a, 1, 48)
    stamp(a, 8)
    a("s_lshl_b32 s64, s54, 6")
    a("s_lshl_b32 s65, s51, 3")
    a("s_add_u32 s64, s64, s65")
    a("s_lshl_b32 s64, s64, 10")
    a(f"s_add_u32 s64, s64, {WS_QF}")
    a("s_lshl_b32 s65, s54, 17")
    a(f"s_add_u32 s65, s65, {WS_KV}")
    def linloop(ldsb, sreg, n4, lab):
        a(f"s_mov_b32 m0, {ldsb}")
        a("s_nop 0")
        a.nopad += 1
        a.label(lab)
        for i in range(4):
            a(f"buffer_load_dwordx4 v3, {WS}, s{sreg} offen offset:{1024*i} sc1 lds")
        a("s_add_u32 m0, m0, 4096")
        a(f"s_add_u32 s{sreg}, s{sreg}, 4096")
        a(f"s_cmp_lt_u32 m0, {ldsb + 4096*n4}")
        a(f"s_cbranch_scc1 {lab}")
        a.nopad -= 1
    linloop(L_Q, 64, 2, "KVL0")
    linloop(0, 65, 9, "KVL1")
    a("s_waitcnt vmcnt(24)")
    a("s_barrier")
    stamp(a, 9)
    linloop(36864, 65, 5, "KVL2")
    a("s_waitcnt vmcnt(20)")
    a(f"ds_write_b32 v1, v54 offset:{F_K1}")
    lwait(a, 1, F_QRD, 8, 61)
    linloop(57344, 65, 18, "KVL3")
    a("s_waitcnt vmcnt(0)")
    ladd(a, 1, F_K2, 54)
    stamp(a, 10)
    a("s_lshl_b32 s64, s48, 3")
    a("s_add_u32 s64, s64, s51")
    a("s_lshl_b32 s64, s64, 15")
    a(f"s_add_u32 s64, s64, {WS_OF}")
    a("s_lshl_b32 s62, s48, 3")
    a("s_add_u32 s62, s62, s51")
    a("s_lshl_b32 s62, s62, 11")
    a(f"s_add_u32 s62, s62, {WS_FL + 3*16384}")
    a("s_mov_b32 s56, 0x11111111")
    a("s_mov_b32 s57, 0")
    a("s_mov_b32 s63, 0")
    a(f"v_add_u32 v8, {F_GQ}, v1")
    a("s_barrier")
    stamp(a, 11)
    a.nopad += 1
    a.label("TP")
    a("s_mov_b32 exec_hi, 0")
    a(f"buffer_load_dwordx2 v[60:61], v12, {WS}, s62 offen sc1")
    a("s_waitcnt vmcnt(1)")
    a.label("TPA")
    a("s_cmp_eq_u32 s57, 0")
    a("s_cbranch_scc1 TPB")
    a("s_ff1_i32_b32 s58, s57")
    a("s_bitset0_b32 s57, s58")
    a("s_add_u32 s58, s58, 4")
    a("v_mov_b32 v9, s58")
    a("ds_write_b32 v8, v9")
    a("v_add_u32 v8, 4, v8")
    a("s_branch TPA")
    a.label("TPB")
    a("s_cmp_eq_u32 s56, 0")
    a("s_cbranch_scc1 TPX")
    a("s_waitcnt vmcnt(0)")
    a("v_cmp_eq_u64 vcc, s[60:61], v[60:61]")
    a("s_mov_b64 exec, -1")
    a("s_add_u32 s63, s63, 1")
    a("s_cmp_gt_u32 s63, 0x40000")
    a("s_cselect_b32 s58, -1, vcc_lo")
    a("s_lshr_b32 s59, s58, 1")
    a("s_and_b32 s58, s58, s59")
    a("s_lshr_b32 s59, s58, 2")
    a("s_and_b32 s58, s58, s59")
    a("s_and_b32 s57, s58, s56")
    a("s_andn2_b32 s56, s56, s57")
    a("s_mov_b32 s59, s57")
    a.label("TPC")
    a("s_cmp_eq_u32 s59, 0")
    a("s_cbranch_scc1 TP")
    a("s_ff1_i32_b32 s58, s59")
    a("s_bitset0_b32 s59, s58")
    a("s_lshl_b32 s58, s58, 10")
    a(f"s_add_u32 m0, s58, {L_O}")
    a("s_add_u32 s65, s64, s58")
    for i in range(4):
        a(f"buffer_load_dwordx4 v3, {WS}, s65 offen offset:{1024*i} sc1 lds")
    a("s_branch TPC")
    a.label("TPX")
    a.nopad -= 1
    a("s_mov_b64 exec, -1")
    stamp(a, 13)
    a("s_cmp_lg_u32 s2, 0")
    a("s_cbranch_scc1 HEND")
    srd(a, 44, P_DBG, 256)
    a("v_mov_b32 v14, 0")
    a("v_mov_b32 v15, 0")
    a("s_mov_b64 exec, 1")
    a("buffer_store_dwordx2 v[14:15], v13, s[44:47], 0 offen sc1")
    a("s_mov_b64 exec, -1")
    endpgm(a)

    a.label("HPATH")
    a("s_memrealtime s[60:61]")
    a.label("HP3")
    a("s_waitcnt lgkmcnt(0)")
    stamp(a, 0)
    srd(a, 28, P_WS, WS_SIZE)
    srd(a, 40, P_SSMK, 512*2048*2)
    a("s_xor_b32 s56, s3, 11")
    a("s_or_b32 s56, s56, s2")
    a("s_cmp_lg_u32 s56, 0")
    a("s_cbranch_scc1 HP4")
    srd(a, 44, P_DBG, 256)
    a("s_or_b32 s60, s60, 1")
    a("v_mov_b32 v14, s60")
    a("v_mov_b32 v15, s61")
    a("s_mov_b64 exec, 1")
    a("buffer_store_dwordx2 v[14:15], v13, s[44:47], 0 offen sc1")
    a("s_mov_b64 exec, -1")
    a.label("HP4")
    a("s_cmp_eq_u32 s3, 10")
    a("s_cbranch_scc1 H10")
    a("s_cmp_eq_u32 s3, 11")
    a("s_cbranch_scc1 H11")
    a("v_lshl_add_u32 v8, v2, 2, v1")
    a("ds_write_b32 v8, v13")
    srd(a, 44, P_DBG, 256)
    a("s_waitcnt lgkmcnt(0)")
    barriers(a, 1 + NON_AT)
    NB = GB
    a("buffer_load_dwordx2 v[14:15], v13, s[44:47], 0 offen sc1")
    barriers(a, 2)
    a("s_waitcnt vmcnt(0)")
    a("v_cmp_ne_u32 vcc, 0, v14")
    a("s_cbranch_vccnz NOK1")
    a("buffer_load_dwordx2 v[14:15], v13, s[44:47], 0 offen sc1")
    a.label("NOK1")
    barriers(a, F0_AT - 1)
    a("s_mov_b32 s63, 0")
    a.nopad += 1
    a.label("LD2P")
    a("s_waitcnt vmcnt(0)")
    a("v_cmp_ne_u32 vcc, 0, v14")
    a("s_cbranch_vccnz LD2Q")
    a("s_add_u32 s63, s63, 1")
    a("v_mov_b32 v14, 1")
    a("s_cmp_gt_u32 s63, 0x40000")
    a("s_cbranch_scc1 LD2Q")
    a("buffer_load_dwordx2 v[14:15], v13, s[44:47], 0 offen sc1")
    a("s_branch LD2P")
    a.label("LD2Q")
    a.nopad -= 1
    publish(a, 0, 48, 49)
    a(f"ds_write_b64 v1, v[14:15] offset:{F_NONCE}")
    a("s_waitcnt lgkmcnt(0)")
    stamp(a, 1)
    a("v_readfirstlane_b32 s60, v14")
    a("v_readfirstlane_b32 s61, v15")
    a("s_lshl_b32 s56, s50, 1")
    barriers(a, 8 - F0_AT)
    if WFM == 0:
        lwait(a, 1, F_QX, 1, 61)
        poll(a, 0, 56, mode=1, sleep=2)
        ladd(a, 1, F_CONV, 54)
    stamp(a, 2)
    lwait(a, 1, F_ST, 8, 61, sleep=1)
    publish(a, 1, 52, 53)
    a("s_barrier")
    lwait(a, 1, F_K1, 1, 61, sleep=4)
    poll(a, 0, 56, mode=1, sleep=2)
    ladd(a, 1, F_K2, 54)
    endpgm(a)
    a.label("H11")
    srd(a, 40, P_WO, 512*512*2)
    a("""
    v_lshlrev_b32 v16, 10, v4
    v_lshl_add_u32 v16, v6, 4, v16
    s_lshl_b32 s56, s49, 14
    s_lshl_b32 s57, s48, 7
    s_add_u32 s56, s56, s57
    s_add_u32 s57, s56, 7168
    v_lshrrev_b32 v17, 5, v2
    v_bfe_u32 v18, v2, 2, 2
    v_lshl_add_u32 v17, v17, 2, v18
    v_lshlrev_b32 v17, 7, v17
    v_bfe_u32 v18, v2, 4, 1
    v_lshl_add_u32 v17, v18, 5, v17
    v_and_b32 v18, 3, v2
    v_lshl_add_u32 v17, v18, 3, v17
    s_lshl_b32 s58, s48, 16
    s_lshr_b32 s59, s49, 1
    s_lshl_b32 s59, s59, 10
    s_add_u32 s58, s58, s59
    s_and_b32 s59, s49, 1
    s_lshl_b32 s59, s59, 9
    s_add_u32 s58, s58, s59
    v_and_b32 v19, 15, v2
    v_lshlrev_b32 v19, 4, v19
    v_lshrrev_b32 v18, 5, v2
    v_lshl_add_u32 v19, v18, 8, v19
    v_bfe_u32 v18, v2, 4, 1
    v_lshl_add_u32 v19, v18, 14, v19
    """)
    a(f"v_add_u32 v17, {L_WT}, v17")
    a(f"s_add_u32 s58, s58, {WS_WOF}")
    a("s_add_u32 s59, s58, 32768")
    a(f"s_mov_b32 m0, {L_WT}")
    a("s_nop 0")
    a("buffer_load_dwordx4 v16, s[40:43], s56 offen lds")
    a("buffer_load_dwordx4 v16, s[40:43], s57 offen offset:1024 lds")
    barriers(a, 2 if WOE else 2 + GB)
    a("s_waitcnt vmcnt(0)")
    a("ds_read_b64_tr_b16 v[20:21], v17")
    a("ds_read_b64_tr_b16 v[22:23], v17 offset:1024")
    a("ds_read_b64_tr_b16 v[24:25], v17 offset:64")
    a("ds_read_b64_tr_b16 v[26:27], v17 offset:1088")
    a("s_waitcnt lgkmcnt(0)")
    a(f"buffer_store_dwordx4 v[20:23], v19, {WS}, s58 offen sc1")
    a(f"buffer_store_dwordx4 v[24:27], v19, {WS}, s59 offen sc1")
    if WOE and GB: a("s_barrier")
    srd(a, 40, P_SSMK, 512*2048*2)
    a("s_lshl_b32 s64, s66, 13")
    a("v_and_b32 v8, 1, v2")
    a("v_mul_u32_u24 v8, 8324, v8")
    a(f"v_add_u32 v8, {L_HE[0]}, v8")
    for n in range(1, 9):
        if n == F0_AT: a("s_waitcnt vmcnt(0)")
        a("s_barrier")
        if n == HAT:
            for q in range(2):
                a(f"s_mov_b32 m0, {L_HE[q]}")
                a(f"s_add_u32 s65, s64, {4096*q}")
                for i in range(4):
                    a(f"buffer_load_dwordx4 v3, s[40:43], s65 offen offset:{1024*i} lds")
    lwait(a, 1, F_QX, 1, 62)
    for q in (1, 0):
        a(f"s_mov_b32 m0, {L_HO[q]}")
        a(f"s_add_u32 s65, s64, {4096*q + 2}")
        for i in range(4):
            a(f"buffer_load_dwordx4 v3, s[40:43], s65 offen offset:{1024*i} lds")
    a("s_waitcnt vmcnt(8)")
    a("ds_read_b32 v9, v8")
    a("s_waitcnt lgkmcnt(0)")
    a("v_lshlrev_b32 v9, 16, v9")
    a("s_mov_b64 exec, 3")
    a(f"ds_write_b32 v8, v9 offset:{L_HO[0] - L_HE[0] - 4}")
    a("s_mov_b64 exec, -1")
    a("s_waitcnt vmcnt(4) lgkmcnt(0)")
    ladd(a, 1, F_CONV + 4, 54)
    a("s_waitcnt vmcnt(0)")
    ladd(a, 1, F_CONV, 54)
    stamp(a, 1)
    endpgm(a)

    a.label("H10")
    VXR = 48
    for i in range(5):
        a(f"v_add_u32 v8, {64*i}, v2")
        a("v_mul_u32_u24 v9, 205, v8")
        a("v_lshrrev_b32 v9, 10, v9")
        a("v_mul_u32_u24 v11, 5, v9")
        a("v_sub_u32 v8, v8, v11")
        a("v_min_u32 v8, 3, v8")
        a("v_lshlrev_b32 v8, 4, v8")
        a(f"v_lshl_add_u32 v{VXR+i}, v9, 6, v8")
    for i in range(4): a(f"v_mov_b32 v{32+i}, 0")
    a("s_lshl_b32 s64, s66, 13")
    def hdma():
        for q in range(2):
            a(f"s_mov_b32 m0, {L_HE[q]}")
            a(f"s_add_u32 s65, s64, {4096*q}")
            for i in range(4):
                a(f"buffer_load_dwordx4 v3, s[40:43], s65 offen offset:{1024*i} lds")
    barriers(a, 3 + GB)
    for q in range(2):
        a(f"v_add_u32 v8, {L_XR[q]}, v3")
        a("ds_write_b128 v8, v[32:35] offset:5120")
        a("ds_write_b128 v8, v[32:35] offset:6144")
        a("s_mov_b32 exec_hi, 0")
        a("ds_write_b128 v8, v[32:35] offset:7168")
        a("s_mov_b64 exec, -1")
    a("v_lshlrev_b32 v8, 2, v2")
    a(f"v_add_u32 v8, {L_HE[0] - 64}, v8")
    a("s_mov_b64 exec, 0xffff")
    a("ds_write_b32 v8, v32")
    a(f"ds_write_b32 v8, v32 offset:{L_HO[0] - L_HE[0] - 4}")
    a(f"ds_write_b32 v8, v32 offset:{L_HE[1] - L_HE[0]}")
    a(f"ds_write_b32 v8, v32 offset:{L_HO[1] - L_HE[0] - 4}")
    a("s_mov_b64 exec, -1")
    a("s_lshl_b32 s62, s48, 11")
    a(f"s_add_u32 s62, s62, {WS_FL}")
    for n in range(2, 9):
        a("s_barrier")
        if n == F0_AT + 1: nonce_lds(a)
        if n == XRP:
            a("s_mov_b32 exec_hi, 0")
            a(f"buffer_load_dwordx2 v[60:61], v12, {WS}, s62 offen sc1")
            a("s_mov_b64 exec, -1")
    lwait(a, 1, F_QX, 1, 62)
    a("s_waitcnt vmcnt(0)")
    a("s_mov_b32 exec_hi, 0")
    a("v_cmp_ne_u64 vcc, s[60:61], v[60:61]")
    a("s_mov_b64 exec, -1")
    a("s_cbranch_vccz F0OK")
    stamp(a, 6)
    poll(a, 0, 48, sleep=E('F0_PS', 2))
    a.label("F0OK")
    stamp(a, 1)
    a(f"s_add_u32 s64, s64, {WS_XR}")
    for q in (1, 0):
        a(f"s_add_u32 s65, s64, {4096*q}")
        for i in range(5):
            a(f"s_mov_b32 m0, {L_XR[q] + 1024*i}")
            a("s_nop 0")
            a(f"buffer_load_dwordx4 v{VXR+i}, {WS}, s65 offen sc1 lds")
    a("s_waitcnt vmcnt(5)")
    ladd(a, 1, F_CONV + 4, 54)
    a("s_waitcnt vmcnt(0)")
    ladd(a, 1, F_CONV, 54)
    stamp(a, 2)
    a("s_lshl_b32 s64, s48, 18")
    a("s_lshl_b32 s65, s49, 7")
    a("s_add_u32 s64, s64, s65")
    a(f"s_add_u32 s64, s64, {WS_ZT}")
    for i in range(8):
        a(f"v_xor_b32 v8, {i}, v6")
        a("v_lshlrev_b32 v8, 4, v8")
        a(f"v_lshl_add_u32 v{16+i}, v4, 12, v8")
    a("s_barrier")
    a("s_sleep 70")
    lwait(a, 1, F_ZD, 8, 61, sleep=16)
    publish(a, 2, 48, 49)
    a("s_sleep 100")
    poll(a, 2, 48, sleep=16)
    for i in range(8):
        a(f"s_mov_b32 m0, {L_Z + 1024*i}")
        a("s_nop 0")
        a(f"buffer_load_dwordx4 v{16+i}, {WS}, s64 offen sc1 lds")
        a("s_add_u32 s64, s64, 32768")
    a("s_waitcnt vmcnt(0)")
    stamp(a, 4)
    a.label("HEND")
    endpgm(a)

def gen_compute(a):
    a.label("CPATH")
    a.label("C_NN")
    a("""
    v_and_b32 v4, 31, v2
    v_lshrrev_b32 v5, 5, v2
    v_bfe_u32 v63, v2, 1, 3
    v_xor_b32 v63, v63, v5
    s_and_b32 s56, s3, 1
    s_lshl_b32 s56, s56, 12
    v_lshlrev_b32 v61, 7, v4
    v_add_u32 v61, s56, v61
    """)
    for st in range(4):
        a(f"v_xor_b32 v60, {2*st}, v63")
        a(f"v_lshl_add_u32 v{56+st}, v60, 4, v61")
    a("""
    v_bfe_u32 v61, v2, 2, 2
    v_lshl_add_u32 v62, v5, 3, v61
    v_lshlrev_b32 v60, 8, v62
    v_bfe_u32 v63, v2, 4, 1
    v_lshl_add_u32 v60, v63, 5, v60
    v_and_b32 v63, 3, v2
    v_lshl_add_u32 v60, v63, 3, v60
    s_lshr_b32 s56, s3, 1
    v_xor_b32 v63, s56, v61
    v_lshl_add_u32 v60, v63, 6, v60
    """)
    a(f"v_add_u32 v60, {L_RING}, v60")
    for i in range(32): a(f"v_mov_b32 v{64+i}, 0")
    a("""
    s_lshl_b32 s56, s52, 2
    s_and_b32 s57, s3, 2
    s_add_u32 s56, s56, s57
    s_lshl_b32 s56, s56, 6
    s_lshl_b32 s57, s53, 1
    s_add_u32 s56, s56, s57
    s_and_b32 s57, s3, 1
    s_add_u32 s64, s56, s57
    s_lshl_b32 s56, s64, 11
    s_mov_b32 s59, 0xffff0000
    """)
    a("s_waitcnt lgkmcnt(0)")
    stamp(a, 0)
    a("v_lshlrev_b32 v11, 4, v4")
    a(f"v_add_u32 v11, {L_A1 + 17408}, v11")
    srd(a, 28, P_WS, WS_SIZE)
    srd(a, 32, P_Q, 2048*512*2)
    srd(a, 36, P_OUT, 2048*1024*2)
    a(f"s_lshl_b32 s67, s66, 2")
    a(f"s_load_dword s68, s[{P_SSMD}:{P_SSMD+1}], s67")
    a("""
    s_lshl_b32 s57, s3, 10
    v_lshlrev_b32 v10, 9, v5
    v_lshl_add_u32 v10, v4, 2, v10
    v_add_u32 v10, s57, v10
    v_add_u32 v0, s57, v3
    s_sub_u32 s57, 7, s3
    v_and_b32 v12, 7, v4
    v_xor_b32 v12, s57, v12
    v_lshlrev_b32 v12, 4, v12
    v_lshl_add_u32 v12, v4, 8, v12
    v_lshlrev_b32 v9, 3, v5
    v_sub_u32 v12, v12, v9
    s_lshl_b32 s57, s3, 2
    v_lshrrev_b32 v8, 4, v2
    v_add_u32 v8, s57, v8
    v_xor_b32 v8, v8, v2
    v_and_b32 v8, 7, v8
    v_lshlrev_b32 v8, 4, v8
    v_lshrrev_b32 v9, 3, v2
    v_lshl_add_u32 v8, v9, 12, v8
    s_lshl_b32 s65, s48, 18
    s_lshl_b32 s57, s3, 15
    s_add_u32 s65, s65, s57
    s_sub_u32 s57, 31, s49
    s_lshl_b32 s57, s57, 7
    s_add_u32 s65, s65, s57
    v_mov_b32 v54, 1
    """)
    a(f"v_add_u32 v10, {L_A1}, v10")
    a(f"v_add_u32 v12, {L_A1S + 8}, v12")
    a(f"v_add_u32 v0, {L_A1S}, v0")
    a(f"s_add_u32 s65, s65, {WS_XR}")
    a("""
    v_and_b32 v7, 0x33, v2
    v_bfe_u32 v6, v2, 2, 1
    v_lshl_or_b32 v7, v6, 3, v7
    v_bfe_u32 v6, v2, 3, 1
    v_lshl_or_b32 v7, v6, 2, v7
    v_lshlrev_b32 v7, 4, v7
    v_lshlrev_b32 v61, 7, v62
    v_bfe_u32 v63, v2, 4, 1
    v_lshl_add_u32 v61, v63, 5, v61
    v_lshlrev_b32 v9, 17, v63
    v_and_b32 v63, 3, v2
    v_lshl_add_u32 v61, v63, 3, v61
    v_bfe_u32 v63, v2, 3, 1
    s_lshr_b32 s58, s3, 1
    v_xor_b32 v63, s58, v63
    v_lshl_add_u32 v61, v63, 6, v61
    v_lshl_add_u32 v9, v5, 8, v9
    v_and_b32 v6, 15, v2
    v_lshl_add_u32 v9, v6, 4, v9
    """)
    a(f"v_add_u32 v61, {L_RING}, v61")
    a(f"s_add_u32 s56, s56, {WS_KV}")
    a("s_add_u32 s57, s56, 131072")
    a("s_barrier")
    a("ds_read_b128 v[140:143], v11")
    stamp(a, 1)
    dstamp(a, 13)
    KR = 128; VR = 135; SK = 140; KF = 144; TAP = 152; KVv = 156; KS = 160; OUT = 164
    for r in range(7): a(f"ds_read_b32 v{KR+r}, v10 offset:{(5+r)*128}")
    for r in range(4): a(f"ds_read_b32 v{VR+r}, v10 offset:{9216 + r*128}")
    a("s_waitcnt lgkmcnt(0)")
    estamp(a, 5)
    for c in range(2):
        def unpack(dst, src, hi):
            if hi: a(f"v_and_b32 v{dst}, s59, v{src}")
            else:  a(f"v_lshlrev_b32 v{dst}, 16, v{src}")
        for r in range(7): unpack(KF + r, KR + r, c)
        for j in range(4): unpack(TAP + j, SK + 2*c + (j >> 1), j & 1)
        for r in range(4): unpack(KVv + r, VR + r, c)
        for r in range(4): a(f"v_mul_f32 v{KS+r}, v{KF+r}, v{TAP+3}")
        for r in range(4): a(f"v_fmac_f32 v{KS+r}, v{KF+r+1}, v{TAP+2}")
        for r in range(4): a(f"v_fmac_f32 v{KS+r}, v{KF+r+2}, v{TAP+1}")
        for r in range(4): a(f"v_fmac_f32 v{KS+r}, v{KF+r+3}, v{TAP+0}")
        for r in range(4): a(f"v_mul_f32 v{KVv+r}, v{KVv+r}, v{KS+r}")
        o = OUT + 2*c
        a(f"v_cvt_pk_bf16_f32 v{o}, v{KVv+3}, v{KVv+2}")
        a(f"v_cvt_pk_bf16_f32 v{o+1}, v{KVv+1}, v{KVv}")
        a(f"ds_write_b64 v12, {vr(o,2)} offset:{128*c}")
        estamp(a, 6 + c)
    a("s_waitcnt lgkmcnt(0)")
    if GB:
        a("s_barrier")
        a("ds_read_b128 v[48:51], v0")
        a("s_waitcnt lgkmcnt(0)")
        a(f"buffer_store_dwordx4 v[48:51], v8, {WS}, s65 offen sc1")
    a("s_cmp_ge_u32 s3, 4")
    a("s_cbranch_scc1 VPATH")
    FS = [16, 96]
    def p1_reads(c):
        xo = c*8192; wo = (c & 3)*16384
        for st in range(4):
            b = FS[c & 1] + 8*st
            a(f"ds_read_b128 {vr(b,4)}, v{56+st} offset:{xo}")
            a(f"ds_read_b64_tr_b16 {vr(b+4,2)}, v60 offset:{wo + 16*st*256}")
            a(f"ds_read_b64_tr_b16 {vr(b+6,2)}, v60 offset:{wo + (16*st+4)*256}")
    def p1_mfma(c, isv):
        for st in range(4):
            b = FS[c & 1] + 8*st
            x = vr(b,4); w = vr(b+4,4)
            if isv: a(f"v_mfma_f32_32x32x16_bf16 v[64:79], {x}, {w}, v[64:79]")
            else:   a(f"v_mfma_f32_32x32x16_bf16 v[64:79], {w}, {x}, v[64:79]")
    def pass1(isv):
        for c in range(8):
            if c == F0_AT: a("s_waitcnt vmcnt(0)")
            a("s_barrier")
            dstamp(a, 1 + c)
            if c in (0, 4): stamp(a, 2 + c//4)
            if c == 0 and not GB: a("ds_read_b128 v[48:51], v0")
            p1_reads(c)
            if c: p1_mfma(c - 1, isv)
            elif not GB:
                a("s_waitcnt lgkmcnt(12)")
                a(f"buffer_store_dwordx4 v[48:51], v8, {WS}, s65 offen sc1")
            a("s_waitcnt lgkmcnt(0)")
        a("s_barrier")
    pass1(False)
    P2B = [16, 24, 32, 40, 128, 136]
    lg2 = Cnt(a, "lgkmcnt", 15)
    def p2_read1(n):
        j = n >> 3; st = n & 7
        b = P2B[n % 6]
        if st == 0 and j:
            u = uid()
            lg2.wait(f"f{j}")
            a.nopad += 1
            a(f"v_cmp_gt_u32 vcc, {j}, v55")
            a(f"s_cbranch_vccz P2X{u}")
            a.label(f"P2W{u}")
            a(f"ds_read_b32 v55, v1 offset:{F_W}")
            a("s_waitcnt lgkmcnt(0)")
            a(f"v_cmp_gt_u32 vcc, {j}, v55")
            a(f"s_cbranch_vccnz P2W{u}")
            a.label(f"P2X{u}")
            a.nopad -= 1
        lg2.op(f"ds_read_b128 {vr(b,4)}, v{56+(st&3)} offset:{(2*j + (st>>2))*8192}", f"s{n}")
        lg2.op(f"ds_read_b64_tr_b16 {vr(b+4,2)}, v61 offset:{j*16384 + (16*st)*128}", f"s{n}")
        lg2.op(f"ds_read_b64_tr_b16 {vr(b+6,2)}, v61 offset:{j*16384 + (16*st + 4)*128}", f"s{n}")
        if st == 4 and j < 3: lg2.op(f"ds_read_b32 v55, v1 offset:{F_W}", f"f{j+1}")
    a("s_setprio 2")
    dstamp(a, 9)
    for n in range(4): p2_read1(n)
    p1_mfma(7, False)
    for n in range(32):
        if f"s{n}" in lg2.ops: lg2.wait(f"s{n}")
        b = P2B[n % 6]
        a(f"v_mfma_f32_32x32x16_bf16 v[80:95], {vr(b+4,4)}, {vr(b,4)}, v[80:95]")
        if n + 4 < 32: p2_read1(n + 4)
        if n in (KST, KST + 1):
            hh = n - KST
            for p in range(4):
                a(f"v_cvt_pk_bf16_f32 v{[48,160][hh]+p}, v{64+8*hh+2*p}, v{64+8*hh+2*p+1}")
            a(f"buffer_store_dwordx4 {vr([48,160][hh],4)}, v7, {WS}, s{56+hh} offen sc1")
    ladd(a, 1, F_P2D, 54)
    qs = f32bits(0.25 * math.log2(math.e))
    a(f"s_mov_b32 s58, {qs:#x}")
    a("s_lshl_b32 s56, s64, 10")
    a(f"s_add_u32 s56, s56, {WS_QF}")
    a("s_add_u32 s57, s56, 65536")
    a("s_nop 6")
    for hh in range(2):
        for i in range(8): a(f"v_mul_f32 v{80+8*hh+i}, s58, v{80+8*hh+i}")
        for p in range(4):
            a(f"v_cvt_pk_bf16_f32 v{96+4*hh+p}, v{80+8*hh+2*p}, v{80+8*hh+2*p+1}")
        a(f"buffer_store_dwordx4 {vr(96+4*hh,4)}, v3, {WS}, s{56+hh} offen sc1")
    a("s_setprio 0")
    stamp(a, 4)
    a("s_branch WIN1")

    a.label("VPATH")
    pass1(True)
    p1_mfma(7, True)
    a("s_nop 7")
    lwait(a, 1, F_QX, 1, 55)
    for j in range(2):
        for p in range(4):
            a(f"v_cvt_pk_bf16_f32 v{16+4*j+p}, v{64+8*j+2*p}, v{64+8*j+2*p+1}")
        a(f"buffer_store_dwordx4 {vr(16+4*j,4)}, v9, {WS}, s56 offen offset:{1024 + 512*j} sc1")
    stamp(a, 4)

    a.label("WIN1")
    AL = 48; AH = 49; AB = 50
    WF = 104
    Q = 4; KF = 8; V = 12; IDX = 28; AK = 29; AV = 30; S = 32; O = 64; NM = 80
    C0 = 136; C1 = 152; CB = [104, 120]
    a("""
    s_mov_b32 s59, 0xffff0000
    s_lshr_b32 s64, s3, 2
    s_and_b32 s65, s3, 3
    v_and_b32 v6, 1, v2
    """)
    a(f"v_mul_u32_u24 v6, {L_HO[0] - 64 - (L_HE[0] - 62)}, v6")
    a(f"v_sub_u32 v6, {L_HO[0] - 64}, v6")
    a("v_lshl_add_u32 v6, v4, 1, v6")
    a("v_lshl_add_u32 v6, v5, 4, v6")
    a("s_mul_i32 s56, s64, 8324")
    a("s_lshl_b32 s57, s65, 9")
    a("s_add_u32 s56, s56, s57")
    a(f"v_add_u32 v{AL}, s56, v6")
    a(f"v_add_u32 v{AH}, 2048, v{AL}")
    a("v_sub_u32 v6, 31, v4")
    a("v_mul_u32_u24 v6, 80, v6")
    a("v_lshl_add_u32 v6, v5, 4, v6")
    a("s_mul_i32 s56, s64, 7680")
    a("s_mul_i32 s57, s65, 640")
    a("s_add_u32 s57, s56, s57")
    a(f"s_add_u32 s57, s57, {L_XR[0]}")
    a(f"v_add_u32 v{AB}, s57, v6")
    for i in range(32): a(f"v_mov_b32 v{C0+i}, 0")
    a("v_mov_b32 v0, 1")
    a("s_lshl_b32 s57, s64, 2")
    a("v_add_u32 v51, s57, v1")
    stamp(a, 5)
    fstamp(a, 1)
    lwait(a, 51, F_CONV, 2, 55)
    fstamp(a, 2)
    stamp(a, 6)
    def cr1(i):
        b = CB[i & 1]
        a(f"ds_read2_b32 {vr(b,2)}, v{AL} offset0:{8*i} offset1:{8*i+1}")
        a(f"ds_read2_b32 {vr(b+2,2)}, v{AL} offset0:{8*i+2} offset1:{8*i+3}")
        a(f"ds_read_b128 {vr(b+8,4)}, v{AB} offset:{(i>>1)*80 + (i&1)*32 + 2560}")
    def cr2(i):
        b = CB[i & 1]
        a(f"ds_read_b128 {vr(b+12,4)}, v{AB} offset:{(i>>1)*80 + (i&1)*32}")
        a(f"ds_read2_b32 {vr(b+4,2)}, v{AH} offset0:{8*i} offset1:{8*i+1}")
        a(f"ds_read2_b32 {vr(b+6,2)}, v{AH} offset0:{8*i+2} offset1:{8*i+3}")
    fil = Asm()
    f = fil
    f("s_lshl_b32 s57, s3, 13")
    f(f"s_add_u32 s57, s57, {L_RED}")
    f("""
    v_add_u32 v40, s57, v3
    v_xor_b32 v41, 64, v40
    v_xor_b32 v42, 128, v40
    v_xor_b32 v43, 192, v40
    v_and_b32 v6, 3, v2
    v_lshrrev_b32 v44, 2, v2
    s_and_b32 s57, s65, 1
    s_lshl_b32 s57, s57, 4
    v_add_u32 v44, s57, v44
    v_lshlrev_b32 v7, 2, v6
    v_xor_b32 v44, v44, v7
    v_lshlrev_b32 v44, 4, v44
    v_lshl_add_u32 v44, v6, 10, v44
    s_lshr_b32 s57, s65, 1
    s_lshl_b32 s57, s57, 12
    s_lshl_b32 s58, s64, 15
    s_add_u32 s57, s57, s58
    """)
    f(f"s_add_u32 s57, s57, {L_RED}")
    f("""
    v_add_u32 v44, s57, v44
    s_lshl_b32 s57, s65, 6
    s_sub_u32 s57, 255, s57
    v_sub_u32 v7, s57, v2
    v_lshrrev_b32 v45, 2, v7
    v_mul_u32_u24 v45, 80, v45
    v_and_b32 v7, 3, v7
    v_lshl_add_u32 v45, v7, 4, v45
    """)
    f(f"s_add_u32 s56, s56, {L_XR[0]}")
    f("""
    v_add_u32 v45, s56, v45
    s_lshl_b32 s57, s64, 4
    s_lshr_b32 s58, s68, s57
    s_lshl_b32 s58, s58, 16
    s_lshl_b32 s56, s66, 1
    s_add_u32 s56, s56, s64
    s_lshl_b32 s56, s56, 12
    s_lshl_b32 s57, s65, 10
    s_add_u32 s56, s56, s57
    """)
    f(f"s_add_u32 s56, s56, {WS_ZT}")
    f("""
    s_lshl_b32 s55, s50, 3
    s_add_u32 s55, s55, s3
    s_lshl_b32 s55, s55, 14
    """)
    f(f"s_add_u32 s55, s55, {WS_WOF}")
    f("""
    v_lshrrev_b32 v46, 3, v2
    v_and_b32 v7, 7, v2
    v_lshlrev_b32 v46, 10, v46
    v_lshl_add_u32 v46, v7, 4, v46
    s_lshl_b32 s64, s49, 16
    s_lshl_b32 s57, s3, 13
    s_add_u32 s64, s64, s57
    s_lshl_b32 s57, s48, 7
    s_add_u32 s64, s64, s57
    """)
    f("v_and_b32 v31, 27, v2")
    f("v_cmp_eq_u32 vcc, 16, v31")
    f("v_mov_b32 v31, 0x3f803f80")
    f(f"v_mov_b32 v{IDX}, 0xdddd")
    f(f"v_cndmask_b32 v{V}, 0, v31, vcc")
    for i in range(1, 16): f(f"v_mov_b32 v{V+i}, v{V}")
    f("s_mov_b32 s66, 0xffff")
    f("s_mov_b32 s67, 0xffff")
    f("s_mov_b32 s68, 0")
    f(f"s_mov_b32 s69, {(1<<1)|(1<<2)|(1<<8)}")
    f("s_lshl_b32 s57, s3, 10")
    f(f"s_add_u32 s57, s57, {L_Q}")
    f(f"v_add_u32 v{S}, s57, v3")
    f(f"v_mov_b32 v{AK}, v3")
    f("v_and_b32 v31, 15, v2")
    f("v_lshlrev_b32 v31, 4, v31")
    f(f"v_lshrrev_b32 v{AV}, 5, v2")
    f(f"v_lshl_add_u32 v{AV}, v{AV}, 8, v31")
    f(f"v_add_u32 v{AV}, 1024, v{AV}")
    for i in range(16): f(f"v_mov_b32 v{O+i}, 0")
    for i in range(8): f(f"v_mov_b32 v{S+16+8+i}, 0")
    f("s_mov_b32 s65, 0")
    fl = [l for l, _ in fil.l]
    per = -(-len(fl) // 42)
    def fill():
        for _ in range(per):
            if fl: a(fl.pop(0))
    cr1(0); cr2(0)
    for i in range(16):
        b = CB[i & 1]
        if i < 15: cr1(i + 1)
        a(f"s_waitcnt lgkmcnt({6 if i < 15 else 5})")
        a(f"v_mfma_f32_32x32x16_bf16 {vr(C0,16)}, {vr(b,4)}, {vr(b+8,4)}, {vr(C0,16)}")
        fill()
        a(f"s_waitcnt lgkmcnt({3 if i < 15 else 2})")
        a(f"v_mfma_f32_32x32x16_bf16 {vr(C1,16)}, {vr(b,4)}, {vr(b+12,4)}, {vr(C1,16)}")
        if i < 15: cr2(i + 1)
        if i == 14:
            a(f"ds_read_b32 v55, v1 offset:{F_P2D}")
            a("ds_read_b128 v[36:39], v45")
        fill()
        a(f"v_mfma_f32_32x32x16_bf16 {vr(C1,16)}, {vr(b+4,4)}, {vr(b+8,4)}, {vr(C1,16)}")
        fill()
        if i in (ST_AT, ST_AV):
            u = uid()
            if ST_AT != ST_AV:
                a("s_cmp_lt_u32 s3, 4")
                a(f"s_cbranch_scc{0 if i == ST_AT else 1} STS{u}")
            a("s_waitcnt vmcnt(0) lgkmcnt(0)")
            ladd(a, 1, F_ST, 0)
            a("s_waitcnt lgkmcnt(0)")
            a.label(f"STS{u}")
    assert not fl
    fstamp(a, 5)
    a("s_waitcnt lgkmcnt(0)")
    lwait(a, 1, F_P2D, 4, 55, pre=True)
    for d in range(4):
        a(f"v_lshlrev_b32 v{Q+7-2*d}, 16, v{36+d}")
        a(f"v_and_b32 v{Q+6-2*d}, s59, v{36+d}")
    for j in range(4): a(f"ds_write_b128 v{40+j}, {vr(C0+4*j,4)} offset:{j*1024}")
    for j in range(4): a(f"ds_write_b128 v{40+j}, {vr(C1+4*j,4)} offset:{4096 + j*1024}")
    a("v_mov_b32 v96, v46")
    a("s_waitcnt lgkmcnt(0)")
    fstamp(a, 8)
    ladd(a, 51, F_C1, 0)
    lwait(a, 51, F_C1, 4, 55)
    fstamp(a, 9)
    stamp(a, 7)
    R = 104
    for src in range(4):
        a(f"ds_read_b128 {vr(R+8*src,4)}, v44 offset:{src*8192}")
        a(f"ds_read_b128 {vr(R+4+8*src,4)}, v44 offset:{src*8192 + 512}")
    a("s_waitcnt lgkmcnt(6)")
    for i in range(8): a(f"v_fmac_f32 v{R+i}, s58, v{Q+i}")
    for src in range(1, 4):
        a(f"s_waitcnt lgkmcnt({6 - 2*src})")
        for i in range(8): a(f"v_add_f32 v{R+i}, v{R+i}, v{R+8*src+i}")
    for i in range(4): a(f"v_cvt_pk_bf16_f32 v{100+i}, v{R+2*i}, v{R+1+2*i}")
    a(f"buffer_store_dwordx4 v[100:103], v3, {WS}, s56 offen sc1")
    a.label("RUN1")
    stamp(a, 8)
    fstamp(a, 12)
    a("s_barrier")
    fstamp(a, 13)
    stamp(a, 9)
    a(f"ds_read_b128 {vr(Q,4)}, v{S}")
    a("s_mov_b64 exec, 1")
    a(f"ds_add_u32 v1, v0 offset:{F_QRD}")
    a("s_mov_b64 exec, -1")
    def prolog(cin):
        a(f"ds_read_b128 {vr(KF,4)}, v3")
        a("s_mov_b64 exec, s[66:67]")
        a(f"ds_read_b128 {vr(V,4)}, v{AV}")
        a(f"ds_read_b128 {vr(V+4,4)}, v{AV} offset:512")
        a(f"ds_read_b128 {vr(V+12,4)}, v{AV} offset:512")
        a("s_mov_b64 exec, -1")
        a("s_waitcnt lgkmcnt(3)")
        a(f"v_mfma_f32_32x32x16_bf16 {vr(S,16)}, {vr(KF,4)}, {vr(Q,4)}, {cin}")
        a(f"ds_read_b128 {vr(KF,4)}, v{AK} offset:2048")
        a("s_waitcnt lgkmcnt(1)")
        a("s_nop 9")
    prolog("0")
    a.nopad += 1
    U = 8
    def tile(u, wf=None, cin="0", last=None, mid=None):
        c = u & 1; p = c ^ 1
        Sc = S + 16*c; Sp = S + 16*p
        def ex(i): a(f"v_exp_f32 v{Sc+i}, v{Sc+i}")
        def wl(st):
            a(f"buffer_load_dwordx4 {vr(WF+4*st,4)}, v3, {WS}, s55 offen offset:{1024*(st&3)} sc1")
            if st % 4 == 3: a("s_add_u32 s55, s55, 4096")
        a(f"s_setprio {3-(u&3)}")
        ex(0); ex(1)
        a(f"v_smfmac_f32_32x32x32_bf16 {vr(O,16)}, {vr(V+8*p+4,4)}, {vr(Sp+8,8)}, v{IDX}")
        a("s_mov_b64 exec, s[66:67]")
        a(f"ds_read_b128 {vr(V+8*p,4)}, v{AV} offset:{(u+1)*2048}")
        a(f"ds_read_b128 {vr(V+8*p+4,4)}, v{AV} offset:{(u+1)*2048+512}")
        a("s_mov_b64 exec, -1")
        ex(2); ex(3); ex(4)
        a("s_waitcnt lgkmcnt(2)")
        a(f"v_mfma_f32_32x32x16_bf16 {vr(Sp,16)}, {vr(KF,4)}, {vr(Q,4)}, {cin}")
        a(f"ds_read_b128 {vr(KF,4)}, v{AK} offset:{(u+2)*2048}")
        if wf is not None: wl(2*wf)
        if mid: mid()
        for i in range(5, 10): ex(i)
        a(f"v_smfmac_f32_32x32x32_bf16 {vr(O,16)}, {vr(V+8*c,4)}, {vr(Sc,8)}, v{IDX}")
        if wf is not None: wl(2*wf + 1)
        if last: last()
        for i in range(10, 16): ex(i)
    def samp(off): return lambda: a(f"ds_read_b32 v97, v1 offset:{off}")
    def chk(n, lab):
        def f():
            a(f"v_cmp_gt_u32 vcc, {n}, v97")
            a(f"s_cbranch_vccnz {lab}")
            a.label(lab + "R")
        return f
    def zd():
        a("s_waitcnt vmcnt(0)")
        ladd(a, 1, F_ZD, 0)
    def ql(): a("buffer_load_dwordx4 v[100:103], v96, s[32:35], s64 offen")
    for u in range(24):
        tile(u, wf=(u - 16 if u >= 16 else None),
             mid={2: samp(F_K1), 12: zd, 13: ql, 14: samp(F_K2)}.get(u),
             last={3: chk(1, "CK1"), 15: chk(2, "CK2")}.get(u))
    a(f"v_add_u32 v{AK}, {24*2048}, v{AK}")
    a(f"v_add_u32 v{AV}, {24*2048}, v{AV}")
    a.raw(".p2align 6")
    a.label("LOOP")
    def lend():
        a("s_add_u32 s65, s65, 1")
        a("s_cmp_lt_u32 s65, 5")
    for u in range(U): tile(u, last=lend if u == U-1 else None)
    a(f"v_add_u32 v{AK}, {U*2048}, v{AK}")
    a(f"v_add_u32 v{AV}, {U*2048}, v{AV}")
    a("s_cbranch_scc1 LOOP")
    a.nopad -= 1
    a.label("LEXIT")
    a(f"v_smfmac_f32_32x32x32_bf16 {vr(O,16)}, {vr(V+8+4,4)}, {vr(S+16+8,8)}, v{IDX}")
    a("s_setprio 0")
    a(f"ds_read_b64 v[98:99], v1 offset:{F_NONCE}")
    a("""
    s_lshl_b32 s56, s51, 3
    s_add_u32 s56, s56, s3
    s_lshl_b32 s56, s56, 5
    s_add_u32 s56, s56, s54
    s_lshl_b32 s55, s56, 6
    s_lshl_b32 s56, s56, 10
    """)
    a(f"s_add_u32 s55, s55, {WS_FL + 3*16384}")
    a(f"s_add_u32 s64, s56, {WS_OF}")
    a(f"s_mov_b32 s56, {f32bits(2.0**100):#x}")
    a(f"s_mov_b32 s57, {f32bits(2.0**40):#x}")
    a(f"s_mov_b32 s58, {f32bits(2.0**-40):#x}")
    a("s_waitcnt lgkmcnt(0)")
    a(f"v_rcp_f32 v{AK}, v{O+8}")
    a("s_cmp_lg_u32 s68, 0")
    a("s_cbranch_scc1 FIN")
    a(f"v_add_f32 v31, abs(v{O}), abs(v{O+1})")
    for i in range(2, 8): a(f"v_add_f32 v31, v31, abs(v{O+i})")
    a("v_cmp_ngt_f32 vcc, s56, v31")
    a(f"v_cmp_ngt_f32 s[62:63], s57, v{O+8}")
    a(f"v_cmp_nlt_f32 s[70:71], s58, v{O+8}")
    a("s_or_b64 s[62:63], s[62:63], s[70:71]")
    a("s_or_b64 s[62:63], vcc, s[62:63]")
    a("s_cbranch_scc1 FALLBACK")
    a.label("FIN")
    for i in range(8): a(f"v_mul_f32 v{O+i}, v{O+i}, v{AK}")
    for i in range(4): a(f"v_cvt_pk_bf16_f32 v{KF+i}, v{O+2*i}, v{O+2*i+1}")
    a(f"buffer_store_dwordx4 {vr(KF,4)}, v3, {WS}, s64 offen sc1")
    stamp(a, 10)
    a("s_waitcnt vmcnt(1)")
    a("s_barrier")
    stamp(a, 11)
    a("""
    v_lshrrev_b32 v4, 3, v2
    v_and_b32 v5, 7, v2
    v_xor_b32 v6, s3, v5
    v_lshlrev_b32 v6, 4, v6
    v_lshl_add_u32 v6, v5, 10, v6
    v_lshl_add_u32 v6, v4, 1, v6
    """)
    a(f"v_add_u32 v6, {L_Z}, v6")
    for jj in range(8): a(f"ds_read_u16_d16_hi v{32+jj}, v6 offset:{128*jj}")
    a("""
    v_lshlrev_b32 v7, 11, v4
    v_lshl_add_u32 v7, v5, 4, v7
    s_lshl_b32 s64, s49, 17
    s_lshl_b32 s57, s3, 14
    s_add_u32 s64, s64, s57
    s_lshl_b32 s57, s48, 7
    s_add_u32 s64, s64, s57
    v_and_b32 v14, 15, v2
    v_lshrrev_b32 v15, 4, v2
    v_lshlrev_b32 v13, 4, v14
    v_lshl_add_u32 v13, v15, 9, v13
    v_and_b32 v12, 1, v15
    v_lshl_add_u32 v14, v12, 4, v14
    v_lshlrev_b32 v14, 11, v14
    v_lshrrev_b32 v15, 1, v15
    v_lshl_add_u32 v14, v15, 4, v14
    s_lshl_b32 s56, s48, 3
    s_add_u32 s56, s56, s51
    s_lshl_b32 s56, s56, 16
    s_lshl_b32 s57, s3, 5
    s_add_u32 s56, s56, s57
    s_lshl_b32 s57, s50, 8
    s_add_u32 s56, s56, s57
    s_add_u32 s56, s56, 1024
    v_mov_b32 v12, 0
    """)
    for p in range(4):
        a(f"v_lshlrev_b32 v{40+2*p}, 16, v{100+p}")
        a(f"v_and_b32 v{41+2*p}, s59, v{100+p}")
    a("s_waitcnt lgkmcnt(0)")
    for i in range(8):
        a(f"v_and_b32 v{32+i}, s59, v{32+i}")
        a(f"v_mul_f32 v{32+i}, v{32+i}, v{40+i}")
    for i in range(4): a(f"v_cvt_pk_bf16_f32 v{100+i}, v{32+2*i}, v{33+2*i}")
    a("s_waitcnt vmcnt(0)")
    a("s_mov_b64 exec, 1")
    a(f"buffer_store_dwordx2 v[98:99], v12, {WS}, s55 offen sc1")
    a("s_mov_b64 exec, -1")
    a(f"buffer_store_dwordx4 v[100:103], v7, s[36:39], s64 offen {os.environ.get('A3F','')}")
    a(f"v_add_u32 v5, {F_GQ}, v1")
    a("s_mov_b32 s65, 0")
    a.nopad += 1
    a.label("GQ")
    a("ds_read_b32 v4, v5")
    a("s_waitcnt lgkmcnt(0)")
    a.label("GQ2")
    a("v_readfirstlane_b32 s57, v4")
    a("s_cmp_eq_u32 s57, 0")
    a("s_cbranch_scc1 GQ")
    a("s_lshl_b32 s58, s57, 10")
    a("v_add_u32 v6, s58, v13")
    a("ds_read_b32 v4, v5 offset:4")
    for st in range(2):
        for m in range(2):
            a(f"ds_read_b128 {vr(16+8*st+4*m,4)}, v6 offset:{2048*st + 256*m}")
    a("v_add_u32 v5, 4, v5")
    a("s_add_u32 s65, s65, 1")
    a("s_cmp_gt_u32 s57, 16")
    a("s_cbranch_scc1 GH")
    for g in (0, 1, 2):
        a(f"s_cmp_eq_u32 s57, {4*g+4}")
        a(f"s_cbranch_scc1 GC{g}")
    def gcase(g, last=False):
        a.label(f"GC{g}")
        for st in range(2):
            for m in range(2):
                a(f"s_waitcnt lgkmcnt({3 - 2*st - m})")
                d = vr(32+8*g+4*m,4)
                a(f"v_mfma_f32_16x16x32_bf16 {d}, {vr(WF+4*(2*g+st),4)}, {vr(16+8*st+4*m,4)}, {d if st else 0}")
        a("s_cmp_lt_u32 s65, 8")
        a("s_cbranch_scc1 GQ2")
        if not last: a("s_branch GE")
    gcase(3)
    a.label("GH")
    for g in (4, 5, 6):
        a(f"s_cmp_eq_u32 s57, {4*g+4}")
        a(f"s_cbranch_scc1 GC{g}")
    for g in (7, 0, 1, 2, 4, 5): gcase(g)
    gcase(6, True)
    a.label("GE")
    a.nopad -= 1
    stamp(a, 12)
    a("s_nop 7")
    for step in (1, 2, 4):
        for g in range(0, 8, 2*step):
            for i in range(0, 8, 2):
                a(f"v_pk_add_f32 {vr(32+8*g+i,2)}, {vr(32+8*g+i,2)}, {vr(32+8*(g+step)+i,2)}")
    for m in range(2):
        a(f"v_cvt_pk_bf16_f32 v{16+2*m}, v{32+4*m}, v{33+4*m}")
        a(f"v_cvt_pk_bf16_f32 v{17+2*m}, v{34+4*m}, v{35+4*m}")
    a("s_nop 1")
    a("v_permlane16_swap_b32 v16, v18")
    a("v_permlane16_swap_b32 v17, v19")
    a(f"buffer_store_dwordx4 v[16:19], v14, s[36:39], s56 offen {os.environ.get('OUTF','')}")
    stamp(a, 13)
    endpgm(a)
    a.label("CK1")
    lwait(a, 1, F_K1, 1, 97)
    a("s_branch CK1R")
    a.label("CK2")
    lwait(a, 1, F_K2, 2, 97)
    a("s_branch CK2R")

    a.nopad += 1
    a.label("FALLBACK")
    a("s_mov_b32 s68, 1")
    a(f"v_mov_b32 v{AK}, v3")
    a(f"v_mov_b32 v31, {f32bits(float('-inf')):#x}")
    a("s_mov_b32 s65, 0")
    a.label("MAXL")
    a(f"ds_read_b128 {vr(KF,4)}, v{AK}")
    a(f"v_add_u32 v{AK}, 2048, v{AK}")
    a("s_waitcnt lgkmcnt(0)")
    a(f"v_mfma_f32_32x32x16_bf16 {vr(S,16)}, {vr(KF,4)}, {vr(Q,4)}, 0")
    a("s_nop 15")
    for i in range(0, 16, 2): a(f"v_max3_f32 v31, v31, v{S+i}, v{S+i+1}")
    a("s_add_u32 s65, s65, 1")
    a("s_cmp_lt_u32 s65, 64")
    a("s_cbranch_scc1 MAXL")
    a(f"v_mov_b32 v{S}, v31")
    a("s_nop 1")
    a(f"v_permlane32_swap_b32 v31, v{S}")
    a("s_nop 1")
    a(f"v_max_f32 v31, v31, v{S}")
    for i in range(16): a(f"v_sub_f32 v{NM+i}, 0, v31")
    a(f"v_mov_b32 v{AK}, v3")
    a(f"v_subrev_u32 v{AV}, {64*2048}, v{AV}")
    for i in range(16): a(f"v_mov_b32 v{O+i}, 0")
    for i in range(8): a(f"v_mov_b32 v{S+16+8+i}, 0")
    a("s_mov_b32 s65, 0")
    prolog(vr(NM,16))
    a.label("FBL")
    for u in range(2): tile(u, cin=vr(NM,16))
    a(f"v_add_u32 v{AK}, {2*2048}, v{AK}")
    a(f"v_add_u32 v{AV}, {2*2048}, v{AV}")
    a("s_add_u32 s65, s65, 1")
    a("s_cmp_lt_u32 s65, 32")
    a("s_cbranch_scc1 FBL")
    a("s_branch LEXIT")

HEAD = '.amdgcn_target "amdgcn-amd-amdhsa--gfx950"\n.text\n'
def sizes(lines):
    txt = HEAD
    for i, (l, _) in enumerate(lines):
        if l.startswith("@@") or l.startswith(".p2align"): continue
        txt += f"ZZ{i}:\n{l}\n"
    txt += "ZZEND:\n"
    open("_sz.s", "w").write(txt)
    subprocess.run(["clang", "-x", "assembler", "-target", "amdgcn-amd-amdhsa", "-mcpu=gfx950", "-c", "_sz.s", "-o", "_sz.o"], check=True)
    out = subprocess.run(["llvm-objdump", "-t", "_sz.o"], capture_output=True, text=True).stdout
    ad = {}
    for m in re.finditer(r"^([0-9a-f]+) .* ZZ(\w+)$", out, re.M): ad[m.group(2)] = int(m.group(1), 16)
    keys = sorted((int(k) for k in ad if k != "END"))
    sz = {}
    for x, y in zip(keys, keys[1:] + ["END"]): sz[x] = ad[str(y)] - ad[str(x)]
    return sz

def layout(lines):
    NW = 8
    if not PADS:
        return "\n".join(l for l, _ in lines if not l.startswith("@@")) + "\n"
    sz = sizes(lines)
    CALL = 8*NW
    out = []; pos = 0; npad = 0; i = 0; n = len(lines)
    def emit_pad():
        nonlocal pos, npad
        prev = out[-1].strip() if out else ""
        if not (prev.startswith("s_branch") or prev.startswith("s_endpgm")):
            out.append(f"    s_branch PSK{npad}"); pos += 4
        out.append(".p2align 10"); pos = (pos + 1023)//1024*1024
        out.append(f"PAD{npad}:"); out.append(f"@@PADNEXT{npad}@@"); pos += 4
        out.append(f"PSK{npad}:")
        npad += 1
    def lsize(k, p):
        l = lines[k][0]
        if l == "@@PADCALL@@": return CALL
        if l.startswith("@@"): return 0
        if l.startswith(".p2align"):
            al = 1 << int(l.split()[1]); return (-p) % al
        return sz.get(k, 0)
    while i < n:
        l, np_ = lines[i]
        if l == "@@FORCEPAD@@":
            emit_pad(); i += 1; continue
        if not np_ and pos >= 1024:
            p = pos; k = i
            p += lsize(k, p); k += 1
            while k < n and lines[k][1] and lines[k][0] != "@@FORCEPAD@@":
                p += lsize(k, p); k += 1
            lim = (pos // 1024 + 1)*1024 if pos % 1024 else pos + 1024
            if p + 4 > lim and k < n and lines[k][0] != "@@FORCEPAD@@" and (pos % 1024) > 8:
                emit_pad()
        out.append(l); pos += lsize(i, pos); i += 1
    txt = "\n".join(out) + "\n"
    call = ""
    for w in range(NW):
        call += f"    s_cmp_eq_u32 s3, {w}\n    s_cbranch_scc1 {'PAD%d' % w if w < npad else 'PADRET'}\n"
    txt = txt.replace("@@PADCALL@@\n", call)
    for k in range(npad):
        nxt = f"PAD{k+NW}" if k + NW < npad else "PADRET"
        txt = txt.replace(f"@@PADNEXT{k}@@", f"    s_branch {nxt}")
    return txt

def main():
    ref = open(f"cdna_kernels/{NAME}.s.ref").read().split("\n")
    hdr = []
    for line in ref:
        if line.startswith(";") and "@launch" not in line: hdr.append(line)
        elif not line.startswith(";"): break
    a = Asm(); gen_entry(a); gen_loader1(a)
    cut = next(i for i, (l, _) in enumerate(a.l) if "L0: " in l or l.strip().startswith("@@CUT")) if False else None
    b = Asm(); gen_compute(b)
    c = Asm(); c.nopad = 1; stampout(c); c.label("END"); c("s_endpgm")
    k = max(i for i, (l, _) in enumerate(a.l) if l == "LQ:")
    first = a.l[:k]; second = a.l[k:]
    kf = next(i for i, (l, _) in enumerate(b.l) if l == "FALLBACK:")
    lines = first + b.l[:kf] + second + b.l[kf:] + c.l
    out = "\n".join(hdr) + "\n"
    out += f"; @launch grid=(256,1,1) block=(768,1,1) lds={L_TOTAL}\n"
    out += HEAD + layout(lines)
    out += f""".section .rodata,"a"
.p2align 6
.amdhsa_kernel {KN}
  .amdhsa_next_free_vgpr 168
  .amdhsa_next_free_sgpr 96
  .amdhsa_accum_offset 168
  .amdhsa_group_segment_fixed_size 0
  .amdhsa_kernarg_size 96
  .amdhsa_user_sgpr_count 2
  .amdhsa_user_sgpr_kernarg_segment_ptr 1
  .amdhsa_system_sgpr_workgroup_id_x 1
  .amdhsa_float_denorm_mode_32 3
.end_amdhsa_kernel
"""
    dst = sys.argv[1] if len(sys.argv) > 1 else f"cdna_kernels/{NAME}.s"
    open(dst, "w").write(out)

if __name__ == "__main__":
    main()
```

```python
import sys, math, struct, os, subprocess, re

NAME = "concat_heads__ssm_conv_h3__softmax_full_mha__prompt"
KN = NAME + "_kernel"
E = lambda n, d: int(os.environ.get(n, str(d)))
STAMP = E("STAMP", 0); DIAG = E("DIAG", 0)
F0_AT = E("F0_AT", 4); ST_AT = E("ST_AT", 2); ST_AV = E("ST_AV", 1); WF_AT = E("WF_AT", 7); PADS = E("PADS", 0); GATH = E("GATH", 2); XRP = E("XRP", 7); QST = E("QST", 8); GB = E("GB", 0); WOE = E("WOE", 0); KST = E("KST", 30); WFM = E("WFM", 1); HAT = E("HAT", 6); NON_AT = E("NON_AT", 0)

WS_QF  = 0; WS_KV = 2 << 20; WS_OF = 6 << 20; WS_XR = 8 << 20; WS_ZT = 10 << 20
WS_FL  = 12 << 20; WS_WOF = 13 << 20; WS_ST = 16 << 20; WS_SIZE = 18 << 20

L_X = 0; L_RING = 65536; L_CONV = 131072
L_XR = [L_CONV, L_CONV + 7680]
L_HE = [L_CONV + 15360 + 64, L_CONV + 15360 + 8324 + 64]
L_HO = [L_HE[0] + 4096 + 68, L_HE[1] + 4096 + 68]
L_MISC = L_CONV + 15360 + 2*8324
L_TOTAL = 163840
L_Q = 57344; L_Z = L_CONV; L_O = 4096; L_RED = 65536
L_A1 = L_CONV
L_A1S = L_CONV + 18432
L_WT = L_CONV + 26624
F_X = 0; F_W = 4; F_QX = 8; F_FULL = 0; F_FULLA = 48; F_FREE = 64; F_STG = 112; F_XRD = 116; F_C1 = 120; F_ISS = 128
F_GQ = 200; F_K1 = 184; F_K2 = 188; F_QRD = 192; F_ZD = 196; F_CONV = 176; F_P2D = 148; F_ST = 152; F_WOF = 156; F_NONCE = 160; F_HE = 168

def f32bits(x): return struct.unpack("<I", struct.pack("<f", x))[0]

class Asm:
    def __init__(self): self.l = []; self.nopad = 0
    def __call__(self, s):
        for line in s.strip("\n").split("\n"):
            if line.strip(): self.l.append(("    " + line.strip(), self.nopad))
    def label(self, n): self.l.append((n + ":", 1))
    def raw(self, s): self.l.append((s, 1))

class Cnt:
    def __init__(self, a, name, mx): self.a = a; self.ops = []; self.name = name; self.mx = mx
    def op(self, s, tag): self.a(s); self.ops.append(tag)
    def wait(self, tag):
        idx = max(i for i, t in enumerate(self.ops) if t == tag)
        n = len(self.ops) - 1 - idx
        assert n <= self.mx, n
        self.a(f"s_waitcnt {self.name}({n})")
        self.ops = self.ops[idx+1:]

def vr(b, n): return f"v[{b}:{b+n-1}]"
P_Q, P_K, P_V, P_SHK, P_SSMK, P_SSMD, P_X, P_WQKV, P_WO, P_OUT, P_DBG, P_WS = [4 + 2*i for i in range(12)]
def srd(a, d, ptr, size):
    a(f"s_mov_b32 s{d}, s{ptr}")
    a(f"s_and_b32 s{d+1}, s{ptr+1}, 0xffff")
    a(f"s_mov_b32 s{d+2}, {size}")
    a(f"s_mov_b32 s{d+3}, 0x00020000")
WS = "s[28:31]"
NST = 14
def stamp_begin(a):
    if STAMP:
        a("s_memrealtime s[72:73]")
        a("s_memtime s[76:77]")
def dstamp(a, k):
    if DIAG == 1: stamp(a, k, True)
def estamp(a, k):
    if DIAG == 2: stamp(a, k, True)
def fstamp(a, k):
    if DIAG == 3: stamp(a, k, True)
def stamp(a, k, d=False):
    if STAMP == 3:
        m = {2: 0, 4: 2, 8: 4, 9: 6, 10: 8, 12: 10, 13: 12}
        if not d and k in m:
            a("s_memrealtime s[94:95]")
            a("s_memtime s[78:79]")
            a("s_waitcnt lgkmcnt(0)")
            a(f"s_sub_u32 s{80+m[k]}, s94, s72")
            a(f"s_sub_u32 s{81+m[k]}, s78, s76")
    elif STAMP == 2:
        if not d:
            a("s_memrealtime s[94:95]")
            a("s_waitcnt lgkmcnt(0)")
            a(f"s_mov_b32 s{80+k}, s94")
    elif STAMP and (d or not DIAG or k == 0):
        a("s_memtime s[94:95]")
        a("s_waitcnt lgkmcnt(0)")
        a(f"s_sub_u32 s{80+k}, s94, s76")
def endpgm(a):
    if STAMP: a("s_branch STAMPOUT")
    else: a("s_endpgm")
def stampout(a):
    if STAMP:
        a.label("STAMPOUT")
        srd(a, 28, P_WS, WS_SIZE)
        a("s_waitcnt vmcnt(0)")
        a("s_memrealtime s[74:75]")
        a("s_memtime s[78:79]")
        a("s_waitcnt lgkmcnt(0)")
        a("s_sub_u32 s78, s78, s76")
        a("s_mov_b64 exec, 1")
        a("v_mov_b32 v4, s72")
        a("v_mov_b32 v5, s74")
        a("v_mov_b32 v6, s78")
        for k in range(NST): a(f"v_mov_b32 v{7+k}, s{80+k}")
        a("s_lshl_b32 s76, s2, 4")
        a("s_add_u32 s76, s76, s3")
        a("s_lshl_b32 s76, s76, 7")
        a(f"s_add_u32 s76, s76, {WS_ST}")
        a("v_mov_b32 v30, 0")
        for k in range(5):
            a(f"buffer_store_dwordx4 v[{4+4*k}:{7+4*k}], v30, {WS}, s76 offen offset:{16*k}")
        a("s_endpgm")

_uid = [0]
def uid(): _uid[0] += 1; return _uid[0]
def poll(a, stage, grp_sreg, mode=0, sleep=1):
    u = uid()
    if mode == 3: a(f"s_mov_b32 s62, {WS_FL + stage*16384}")
    else:
        a(f"s_lshl_b32 s62, s{grp_sreg}, 11")
        a(f"s_add_u32 s62, s62, {WS_FL + stage*16384}")
    a("s_mov_b32 s63, 0")
    if mode == 0: a("s_mov_b32 exec_hi, 0")
    a.nopad += 1
    a.label(f"POLL{u}")
    if mode == 3:
        a(f"buffer_load_dwordx4 v[60:63], v3, {WS}, s62 offen sc1")
        a(f"buffer_load_dwordx4 v[64:67], v3, {WS}, s62 offen offset:1024 sc1")
    else: a(f"buffer_load_dwordx2 v[60:61], v12, {WS}, s62 offen sc1")
    a("s_add_u32 s63, s63, 1")
    a("s_cmp_gt_u32 s63, 0x40000")
    a(f"s_cbranch_scc1 POLLX{u}")
    a("s_waitcnt vmcnt(0)")
    a("v_cmp_ne_u64 vcc, s[60:61], v[60:61]")
    if mode == 3:
        for r in (62, 64, 66):
            a(f"v_cmp_ne_u64 s[70:71], s[60:61], v[{r}:{r+1}]")
            a("s_or_b64 vcc, s[70:71], vcc")
        a(f"s_cbranch_scc0 POLLX{u}")
    else: a(f"s_cbranch_vccz POLLX{u}")
    a(f"s_sleep {sleep}")
    a(f"s_branch POLL{u}")
    a.label(f"POLLX{u}")
    a.nopad -= 1
    a("s_mov_b64 exec, -1")
def publish(a, stage, grp_sreg, slot_sreg):
    a(f"s_lshl_b32 s62, s{slot_sreg}, {3 if grp_sreg is None else 6}")
    if grp_sreg is not None:
        a(f"s_lshl_b32 s63, s{grp_sreg}, 11")
        a("s_add_u32 s62, s62, s63")
    a(f"s_add_u32 s62, s62, {WS_FL + stage*16384}")
    a("s_mov_b64 exec, 1")
    a(f"buffer_store_dwordx2 v[14:15], v13, {WS}, s62 offen sc1")
    a("s_mov_b64 exec, -1")
def nonce_lds(a, sgpr=True):
    u = uid()
    a.nopad += 1
    a.label(f"NL{u}")
    a(f"ds_read_b64 v[14:15], v1 offset:{F_NONCE}")
    a("s_waitcnt lgkmcnt(0)")
    a("v_cmp_eq_u32 vcc, 0, v14")
    a(f"s_cbranch_vccnz NL{u}")
    a.nopad -= 1
    if sgpr:
        a("v_readfirstlane_b32 s60, v14")
        a("v_readfirstlane_b32 s61, v15")
def lwait(a, vaddr, off, n, vt, pre=False, sleep=None):
    u = uid()
    a.nopad += 1
    if pre:
        a(f"v_cmp_gt_u32 vcc, {n}, v{vt}")
        a(f"s_cbranch_vccz LWX{u}")
    a.label(f"LW{u}")
    if sleep is None and pre and vt == 55: sleep = E("CSL", 0)
    if sleep: a(f"s_sleep {sleep*E('SLM',1)}")
    a(f"ds_read_b32 v{vt}, v{vaddr} offset:{off}")
    a("s_waitcnt lgkmcnt(0)")
    a(f"v_cmp_gt_u32 vcc, {n}, v{vt}")
    a(f"s_cbranch_vccnz LW{u}")
    a.label(f"LWX{u}")
    a.nopad -= 1
def lwait2(a, n):
    u = uid()
    a.nopad += 1
    a("v_min_u32 v55, v52, v53")
    a(f"v_cmp_gt_u32 vcc, {n}, v55")
    a(f"s_cbranch_vccz LWX{u}")
    a.label(f"LW{u}")
    a(f"ds_read_b64 v[52:53], v1 offset:{F_X}")
    a("s_waitcnt lgkmcnt(0)")
    a("v_min_u32 v55, v52, v53")
    a(f"v_cmp_gt_u32 vcc, {n}, v55")
    a(f"s_cbranch_vccnz LW{u}")
    a.label(f"LWX{u}")
    a.nopad -= 1
def ladd(a, vaddr, off, vone):
    a("s_mov_b64 exec, 1")
    a(f"ds_add_u32 v{vaddr}, v{vone} offset:{off}")
    a("s_mov_b64 exec, -1")
def barriers(a, n):
    for _ in range(n): a("s_barrier")

VX = 16; VW = 20; VQ = 24

def gen_entry(a):
    a.nopad += 1
    a.raw(f".globl {KN}")
    a.raw(".p2align 10")
    a.raw(f".type {KN},@function")
    a.label(KN)
    a("s_cmp_ge_u32 s2, 256")
    a("s_cbranch_scc1 END")
    stamp_begin(a)
    a("s_load_dwordx16 s[4:19], s[0:1], 0")
    a("s_load_dwordx8 s[20:27], s[0:1], 64")
    a("""
    v_lshrrev_b32 v1, 6, v0
    v_and_b32 v2, 63, v0
    v_readfirstlane_b32 s3, v1
    v_lshlrev_b32 v3, 4, v2
    s_and_b32 s48, s2, 7
    s_lshr_b32 s49, s2, 3
    s_and_b32 s50, s49, 3
    s_lshr_b32 s51, s49, 2
    s_and_b32 s52, s48, 4
    s_add_u32 s52, s52, s50
    s_and_b32 s53, s48, 3
    s_lshl_b32 s53, s53, 3
    s_add_u32 s53, s53, s51
    s_lshl_b32 s54, s48, 2
    s_add_u32 s54, s54, s50
    s_lshl_b32 s55, s50, 1
    s_add_u32 s55, s55, s51
    s_and_b32 s55, s55, 7
    s_lshl_b32 s66, s48, 5
    s_add_u32 s66, s66, s49
    """)
    a(f"v_mov_b32 v1, {L_MISC}")
    a("v_mov_b32 v54, 1")
    a("v_mov_b32 v13, 0")
    a("s_cmp_lt_u32 s3, 8")
    a("s_cbranch_scc1 CPATH")
    a("s_setprio 3")
    a("""
    v_lshrrev_b32 v4, 3, v2
    v_lshrrev_b32 v5, 4, v2
    v_and_b32 v6, 7, v2
    v_lshlrev_b32 v12, 6, v2
    s_cmp_eq_u32 s3, 8
    s_cbranch_scc1 XL0
    s_cmp_lg_u32 s3, 9
    s_cbranch_scc1 HPATH
    s_getpc_b64 s[56:57]
    s_lshl_b32 s58, s50, 13
    v_lshlrev_b32 v7, 7, v2
    v_add_u32 v7, s58, v7
    """)
    a(f"v_min_u32 v7, END - {KN} - 256, v7")
    a("global_load_dword v31, v7, s[56:57]")
    a("s_branch LQPAD")

def gen_loader1(a):
    a.label("XL0")
    a(f"s_setprio {E('LPRIO', 2)}")
    a("""
    v_lshlrev_b32 v10, 4, v6
    v_lshl_add_u32 v10, v4, 10, v10
    s_lshl_b32 s63, s49, 16
    s_lshl_b32 s64, s48, 7
    s_add_u32 s63, s63, s64
    v_add_u32 v28, s63, v10
    v_subrev_u32 v10, 8192, v28
    """)
    for i in range(1, 4): a(f"v_add_u32 v{28+i}, {8192-1024}, v{28+i-1}")
    a("v_xor_b32 v7, v6, v5")
    a("v_lshlrev_b32 v7, 4, v7")
    a(f"v_lshl_add_u32 v{VX}, v4, 10, v7")
    a(f"v_xor_b32 v{VX+1}, 64, v{VX}")
    a(f"v_add_u32 v{VX+1}, {8192-1024}, v{VX+1}")
    a(f"v_add_u32 v{VX+2}, {2*(8192-1024)}, v{VX}")
    a(f"v_add_u32 v{VX+3}, {2*(8192-1024)}, v{VX+1}")
    a("""
    v_bfe_u32 v7, v2, 2, 2
    v_xor_b32 v7, v7, v5
    v_mul_u32_u24 v8, 3072, v5
    v_lshrrev_b32 v9, 1, v7
    v_lshl_add_u32 v8, v9, 10, v8
    v_and_b32 v9, 1, v7
    v_lshl_add_u32 v8, v9, 6, v8
    v_and_b32 v9, 3, v2
    """)
    a(f"v_lshl_add_u32 v{VW}, v9, 4, v8")
    for i in range(1, 4): a(f"v_add_u32 v{VW+i}, {4*3072 - 1024}, v{VW+i-1}")
    a("""
    s_lshl_b32 s62, s48, 9
    s_lshl_b32 s57, s53, 16
    s_lshl_b32 s58, s52, 7
    s_mov_b32 s59, s55
    s_mov_b32 s56, 0
    s_mov_b32 s63, 32768
    """)
    a(f"s_mov_b32 m0, {L_A1}")
    a("s_waitcnt lgkmcnt(0)")
    stamp(a, 0)
    srd(a, 40, P_K, 2048*512*2)
    a("buffer_load_dwordx4 v10, s[40:43], 0 offen lds")
    for n, base in enumerate((1024, 9216)):
        if n:
            a(f"s_mov_b32 s40, s{P_V}")
            a(f"s_and_b32 s41, s{P_V+1}, 0xffff")
        for g in range(2):
            a(f"s_mov_b32 m0, {L_A1 + base + 4096*g}")
            a("s_nop 0")
            for i in range(4): a(f"buffer_load_dwordx4 v{28+i}, s[40:43], {'s63' if g else '0'} offen offset:{1024*i} lds")
    a(f"s_mov_b32 s40, s{P_SHK}")
    a(f"s_and_b32 s41, s{P_SHK+1}, 0xffff")
    a("s_movk_i32 s42, 4096")
    a(f"s_mov_b32 m0, {L_A1 + 17408}")
    a("s_mov_b32 exec_hi, 0")
    a("buffer_load_dwordx4 v3, s[40:43], s62 offen lds")
    a("s_mov_b64 exec, -1")
    srd(a, 32, P_X, 2048*512*2)
    srd(a, 36, P_WQKV, 512*1536*2)
    a("s_branch XLB")
    a.label("XL")
    a("s_cmp_eq_u32 s56, 2")
    a("s_cbranch_scc1 XLB")
    a("s_cmp_eq_u32 s56, 1")
    a("s_cbranch_scc0 XLC")
    a("s_waitcnt vmcnt(24)")
    if GB:
        a("s_barrier")
        a("s_barrier")
        a(f"s_sleep {E('GBS', 2)}")
        a("s_branch XLB")
    a.label("XLC")
    a("s_waitcnt vmcnt(48)")
    a("s_barrier")
    a.label("XLB")
    a("s_lshl_b32 s67, s56, 13")
    a("s_mov_b32 m0, s67")
    a("s_lshl_b32 s64, s59, 7")
    a("s_add_u32 s64, s64, s57")
    for i in range(4): a(f"buffer_load_dwordx4 v{VX+i}, s[32:35], s64 offen offset:{1024*i} lds")
    a("s_add_u32 m0, s67, 4096")
    a("s_add_u32 s64, s64, 32768")
    for i in range(4): a(f"buffer_load_dwordx4 v{VX+i}, s[32:35], s64 offen offset:{1024*i} lds")
    a("s_and_b32 s67, s56, 3")
    a("s_lshl_b32 s67, s67, 14")
    a(f"s_add_u32 m0, s67, {L_RING}")
    a(f"s_mul_i32 s65, s59, {64*3072}")
    a("s_add_u32 s65, s65, s58")
    a("s_add_u32 s65, s65, 1024")
    for G in range(4):
        if G:
            a("s_add_u32 m0, m0, 4096")
            a(f"s_add_u32 s65, s65, {16*3072}")
        for i in range(4): a(f"buffer_load_dwordx4 v{VW+i}, s[36:39], s65 offen offset:{1024*i} lds")
    a("s_cmp_eq_u32 s56, 3")
    a("s_addc_u32 s59, s59, 2")
    a("s_and_b32 s59, s59, 7")
    a("s_add_u32 s56, s56, 1")
    a("s_cmp_lt_u32 s56, 8")
    a("s_cbranch_scc1 XL")
    a("s_branch LQ2")
    a.nopad -= 1
    a.label("LQ")
    a.label("LQPAD")
    a("s_branch HPATH")
    a.label("LQ2")
    a("""
    v_bfe_u32 v10, v2, 4, 1
    v_lshlrev_b32 v10, 2, v10
    v_xor_b32 v10, v10, v6
    v_lshlrev_b32 v10, 4, v10
    v_mul_u32_u24 v8, 3072, v4
    """)
    a(f"v_add_u32 v{VQ}, v8, v10")
    for i in range(1, 4): a(f"v_add_u32 v{VQ+i}, {8*3072 - 1024}, v{VQ+i-1}")
    def sig(n, vm):
        a(f"v_mov_b32 v9, {n}")
        a(f"s_waitcnt vmcnt({vm})")
        a(f"ds_write_b32 v1, v9 offset:{F_W}")
    a("s_mov_b32 s56, 0")
    a("s_mov_b32 s59, s55")
    a(f"s_mov_b32 s67, {L_RING}")
    a.nopad += 1
    a.label("LQL")
    a("s_cmp_eq_u32 s56, 0")
    a("s_cbranch_scc1 LQW")
    a("s_cmp_eq_u32 s56, 1")
    a("s_cbranch_scc1 LQV")
    a("s_waitcnt vmcnt(32)")
    a.label("LQV")
    a("s_waitcnt vmcnt(40)")
    a.label("LQW")
    a("s_waitcnt vmcnt(48)")
    a("s_barrier")
    for hf in range(2):
        a("s_and_b32 s59, s59, 7")
        a(f"s_mul_i32 s65, s59, {64*3072}")
        a("s_add_u32 s65, s65, s58")
        for g in range(2):
            a(f"s_add_u32 m0, s67, {hf*8192 + g*4096}")
            a(f"s_add_u32 s65, s65, {32*3072*g}")
            for i in range(4):
                a(f"buffer_load_dwordx4 v{VQ+i}, s[36:39], s65 offen offset:{1024*i} lds")
        if hf == 0: a("s_add_u32 s59, s59, 2")
    a("s_cmp_eq_u32 s56, 1")
    a("s_addc_u32 s59, s59, 2")
    a("s_add_u32 s67, s67, 16384")
    a("s_add_u32 s56, s56, 1")
    a("s_cmp_lt_u32 s56, 4")
    a("s_cbranch_scc1 LQL")
    a.nopad -= 1
    a("s_mov_b64 exec, 1")
    a(f"ds_write_b32 v1, v54 offset:{F_QX}")
    sig(1, 32); sig(2, 16); sig(3, 0)
    a("s_mov_b64 exec, -1")
    stamp(a, 5)
    a("s_setprio 3")
    srd(a, 28, P_WS, WS_SIZE)
    nonce_lds(a)
    lwait(a, 1, F_ST, 8, 61, sleep=1)
    a.label("L0B")
    stamp(a, 7)
    a(f"s_sleep {E('P1S', 8)}")
    poll(a, 1, 48)
    stamp(a, 8)
    a("s_lshl_b32 s64, s54, 6")
    a("s_lshl_b32 s65, s51, 3")
    a("s_add_u32 s64, s64, s65")
    a("s_lshl_b32 s64, s64, 10")
    a(f"s_add_u32 s64, s64, {WS_QF}")
    a("s_lshl_b32 s65, s54, 17")
    a(f"s_add_u32 s65, s65, {WS_KV}")
    def linloop(ldsb, sreg, n4, lab):
        a(f"s_mov_b32 m0, {ldsb}")
        a("s_nop 0")
        a.nopad += 1
        a.label(lab)
        for i in range(4):
            a(f"buffer_load_dwordx4 v3, {WS}, s{sreg} offen offset:{1024*i} sc1 lds")
        a("s_add_u32 m0, m0, 4096")
        a(f"s_add_u32 s{sreg}, s{sreg}, 4096")
        a(f"s_cmp_lt_u32 m0, {ldsb + 4096*n4}")
        a(f"s_cbranch_scc1 {lab}")
        a.nopad -= 1
    linloop(L_Q, 64, 2, "KVL0")
    linloop(0, 65, 9, "KVL1")
    a("s_waitcnt vmcnt(24)")
    a("s_barrier")
    stamp(a, 9)
    linloop(36864, 65, 5, "KVL2")
    a("s_waitcnt vmcnt(20)")
    a(f"ds_write_b32 v1, v54 offset:{F_K1}")
    lwait(a, 1, F_QRD, 8, 61)
    linloop(57344, 65, 18, "KVL3")
    a("s_waitcnt vmcnt(0)")
    ladd(a, 1, F_K2, 54)
    stamp(a, 10)
    a("s_lshl_b32 s64, s48, 3")
    a("s_add_u32 s64, s64, s51")
    a("s_lshl_b32 s64, s64, 15")
    a(f"s_add_u32 s64, s64, {WS_OF}")
    a("s_lshl_b32 s62, s48, 3")
    a("s_add_u32 s62, s62, s51")
    a("s_lshl_b32 s62, s62, 11")
    a(f"s_add_u32 s62, s62, {WS_FL + 3*16384}")
    a("s_mov_b32 s56, 0x11111111")
    a("s_mov_b32 s57, 0")
    a("s_mov_b32 s63, 0")
    a(f"v_add_u32 v8, {F_GQ}, v1")
    a("s_barrier")
    stamp(a, 11)
    a.nopad += 1
    a.label("TP")
    a("s_mov_b32 exec_hi, 0")
    a(f"buffer_load_dwordx2 v[60:61], v12, {WS}, s62 offen sc1")
    a("s_waitcnt vmcnt(1)")
    a.label("TPA")
    a("s_cmp_eq_u32 s57, 0")
    a("s_cbranch_scc1 TPB")
    a("s_ff1_i32_b32 s58, s57")
    a("s_bitset0_b32 s57, s58")
    a("s_add_u32 s58, s58, 4")
    a("v_mov_b32 v9, s58")
    a("ds_write_b32 v8, v9")
    a("v_add_u32 v8, 4, v8")
    a("s_branch TPA")
    a.label("TPB")
    a("s_cmp_eq_u32 s56, 0")
    a("s_cbranch_scc1 TPX")
    a("s_waitcnt vmcnt(0)")
    a("v_cmp_eq_u64 vcc, s[60:61], v[60:61]")
    a("s_mov_b64 exec, -1")
    a("s_add_u32 s63, s63, 1")
    a("s_cmp_gt_u32 s63, 0x40000")
    a("s_cselect_b32 s58, -1, vcc_lo")
    a("s_lshr_b32 s59, s58, 1")
    a("s_and_b32 s58, s58, s59")
    a("s_lshr_b32 s59, s58, 2")
    a("s_and_b32 s58, s58, s59")
    a("s_and_b32 s57, s58, s56")
    a("s_andn2_b32 s56, s56, s57")
    a("s_mov_b32 s59, s57")
    a.label("TPC")
    a("s_cmp_eq_u32 s59, 0")
    a("s_cbranch_scc1 TP")
    a("s_ff1_i32_b32 s58, s59")
    a("s_bitset0_b32 s59, s58")
    a("s_lshl_b32 s58, s58, 10")
    a(f"s_add_u32 m0, s58, {L_O}")
    a("s_add_u32 s65, s64, s58")
    for i in range(4):
        a(f"buffer_load_dwordx4 v3, {WS}, s65 offen offset:{1024*i} sc1 lds")
    a("s_branch TPC")
    a.label("TPX")
    a.nopad -= 1
    a("s_mov_b64 exec, -1")
    stamp(a, 13)
    a("s_cmp_lg_u32 s2, 0")
    a("s_cbranch_scc1 HEND")
    srd(a, 44, P_DBG, 256)
    a("v_mov_b32 v14, 0")
    a("v_mov_b32 v15, 0")
    a("s_mov_b64 exec, 1")
    a("buffer_store_dwordx2 v[14:15], v13, s[44:47], 0 offen sc1")
    a("s_mov_b64 exec, -1")
    endpgm(a)

    a.label("HPATH")
    a("s_memrealtime s[60:61]")
    a.label("HP3")
    a("s_waitcnt lgkmcnt(0)")
    stamp(a, 0)
    srd(a, 28, P_WS, WS_SIZE)
    srd(a, 40, P_SSMK, 512*2048*2)
    a("s_xor_b32 s56, s3, 11")
    a("s_or_b32 s56, s56, s2")
    a("s_cmp_lg_u32 s56, 0")
    a("s_cbranch_scc1 HP4")
    srd(a, 44, P_DBG, 256)
    a("s_or_b32 s60, s60, 1")
    a("v_mov_b32 v14, s60")
    a("v_mov_b32 v15, s61")
    a("s_mov_b64 exec, 1")
    a("buffer_store_dwordx2 v[14:15], v13, s[44:47], 0 offen sc1")
    a("s_mov_b64 exec, -1")
    a.label("HP4")
    a("s_cmp_eq_u32 s3, 10")
    a("s_cbranch_scc1 H10")
    a("s_cmp_eq_u32 s3, 11")
    a("s_cbranch_scc1 H11")
    a("v_lshl_add_u32 v8, v2, 2, v1")
    a("ds_write_b32 v8, v13")
    srd(a, 44, P_DBG, 256)
    a("s_waitcnt lgkmcnt(0)")
    barriers(a, 1 + NON_AT)
    NB = GB
    a("buffer_load_dwordx2 v[14:15], v13, s[44:47], 0 offen sc1")
    barriers(a, 2)
    a("s_waitcnt vmcnt(0)")
    a("v_cmp_ne_u32 vcc, 0, v14")
    a("s_cbranch_vccnz NOK1")
    a("buffer_load_dwordx2 v[14:15], v13, s[44:47], 0 offen sc1")
    a.label("NOK1")
    barriers(a, F0_AT - 1)
    a("s_mov_b32 s63, 0")
    a.nopad += 1
    a.label("LD2P")
    a("s_waitcnt vmcnt(0)")
    a("v_cmp_ne_u32 vcc, 0, v14")
    a("s_cbranch_vccnz LD2Q")
    a("s_add_u32 s63, s63, 1")
    a("v_mov_b32 v14, 1")
    a("s_cmp_gt_u32 s63, 0x40000")
    a("s_cbranch_scc1 LD2Q")
    a("buffer_load_dwordx2 v[14:15], v13, s[44:47], 0 offen sc1")
    a("s_branch LD2P")
    a.label("LD2Q")
    a.nopad -= 1
    publish(a, 0, 48, 49)
    a(f"ds_write_b64 v1, v[14:15] offset:{F_NONCE}")
    a("s_waitcnt lgkmcnt(0)")
    stamp(a, 1)
    a("v_readfirstlane_b32 s60, v14")
    a("v_readfirstlane_b32 s61, v15")
    a("s_lshl_b32 s56, s50, 1")
    barriers(a, 8 - F0_AT)
    if WFM == 0:
        lwait(a, 1, F_QX, 1, 61)
        poll(a, 0, 56, mode=1, sleep=2)
        ladd(a, 1, F_CONV, 54)
    stamp(a, 2)
    lwait(a, 1, F_ST, 8, 61, sleep=1)
    publish(a, 1, 52, 53)
    a("s_barrier")
    lwait(a, 1, F_K1, 1, 61, sleep=4)
    poll(a, 0, 56, mode=1, sleep=2)
    ladd(a, 1, F_K2, 54)
    endpgm(a)
    a.label("H11")
    srd(a, 40, P_WO, 512*512*2)
    a("""
    v_lshlrev_b32 v16, 10, v4
    v_lshl_add_u32 v16, v6, 4, v16
    s_lshl_b32 s56, s49, 14
    s_lshl_b32 s57, s48, 7
    s_add_u32 s56, s56, s57
    s_add_u32 s57, s56, 7168
    v_lshrrev_b32 v17, 5, v2
    v_bfe_u32 v18, v2, 2, 2
    v_lshl_add_u32 v17, v17, 2, v18
    v_lshlrev_b32 v17, 7, v17
    v_bfe_u32 v18, v2, 4, 1
    v_lshl_add_u32 v17, v18, 5, v17
    v_and_b32 v18, 3, v2
    v_lshl_add_u32 v17, v18, 3, v17
    s_lshl_b32 s58, s48, 16
    s_lshr_b32 s59, s49, 1
    s_lshl_b32 s59, s59, 10
    s_add_u32 s58, s58, s59
    s_and_b32 s59, s49, 1
    s_lshl_b32 s59, s59, 9
    s_add_u32 s58, s58, s59
    v_and_b32 v19, 15, v2
    v_lshlrev_b32 v19, 4, v19
    v_lshrrev_b32 v18, 5, v2
    v_lshl_add_u32 v19, v18, 8, v19
    v_bfe_u32 v18, v2, 4, 1
    v_lshl_add_u32 v19, v18, 14, v19
    """)
    a(f"v_add_u32 v17, {L_WT}, v17")
    a(f"s_add_u32 s58, s58, {WS_WOF}")
    a("s_add_u32 s59, s58, 32768")
    a(f"s_mov_b32 m0, {L_WT}")
    a("s_nop 0")
    a("buffer_load_dwordx4 v16, s[40:43], s56 offen lds")
    a("buffer_load_dwordx4 v16, s[40:43], s57 offen offset:1024 lds")
    barriers(a, 2 if WOE else 2 + GB)
    a("s_waitcnt vmcnt(0)")
    a("ds_read_b64_tr_b16 v[20:21], v17")
    a("ds_read_b64_tr_b16 v[22:23], v17 offset:1024")
    a("ds_read_b64_tr_b16 v[24:25], v17 offset:64")
    a("ds_read_b64_tr_b16 v[26:27], v17 offset:1088")
    a("s_waitcnt lgkmcnt(0)")
    a(f"buffer_store_dwordx4 v[20:23], v19, {WS}, s58 offen sc1")
    a(f"buffer_store_dwordx4 v[24:27], v19, {WS}, s59 offen sc1")
    if WOE and GB: a("s_barrier")
    srd(a, 40, P_SSMK, 512*2048*2)
    a("s_lshl_b32 s64, s66, 13")
    a("v_and_b32 v8, 1, v2")
    a("v_mul_u32_u24 v8, 8324, v8")
    a(f"v_add_u32 v8, {L_HE[0]}, v8")
    for n in range(1, 9):
        if n == F0_AT: a("s_waitcnt vmcnt(0)")
        a("s_barrier")
        if n == HAT:
            for q in range(2):
                a(f"s_mov_b32 m0, {L_HE[q]}")
                a(f"s_add_u32 s65, s64, {4096*q}")
                for i in range(4):
                    a(f"buffer_load_dwordx4 v3, s[40:43], s65 offen offset:{1024*i} lds")
    lwait(a, 1, F_QX, 1, 62)
    if E("ODS", 0): a(f"s_sleep {E('ODS', 0)}")
    for q in (1, 0):
        a(f"s_mov_b32 m0, {L_HO[q]}")
        a(f"s_add_u32 s65, s64, {4096*q + 2}")
        for i in range(4):
            a(f"buffer_load_dwordx4 v3, s[40:43], s65 offen offset:{1024*i} lds")
    a("s_waitcnt vmcnt(8)")
    a("ds_read_b32 v9, v8")
    a("s_waitcnt lgkmcnt(0)")
    a("v_lshlrev_b32 v9, 16, v9")
    a("s_mov_b64 exec, 3")
    a(f"ds_write_b32 v8, v9 offset:{L_HO[0] - L_HE[0] - 4}")
    a("s_mov_b64 exec, -1")
    a("s_waitcnt vmcnt(4) lgkmcnt(0)")
    ladd(a, 1, F_CONV + 4, 54)
    a("s_waitcnt vmcnt(0)")
    ladd(a, 1, F_CONV, 54)
    stamp(a, 1)
    endpgm(a)

    a.label("H10")
    for i in range(4): a(f"v_mov_b32 v{32+i}, 0")
    a("s_lshl_b32 s64, s66, 13")
    def hdma():
        for q in range(2):
            a(f"s_mov_b32 m0, {L_HE[q]}")
            a(f"s_add_u32 s65, s64, {4096*q}")
            for i in range(4):
                a(f"buffer_load_dwordx4 v3, s[40:43], s65 offen offset:{1024*i} lds")
    barriers(a, 3 + GB)
    for q in range(2):
        a(f"v_add_u32 v8, {L_XR[q]}, v3")
        a("ds_write_b128 v8, v[32:35] offset:4096")
    a("v_lshlrev_b32 v8, 2, v2")
    a(f"v_add_u32 v8, {L_HE[0] - 64}, v8")
    a("s_mov_b64 exec, 0xffff")
    a("ds_write_b32 v8, v32")
    a(f"ds_write_b32 v8, v32 offset:{L_HO[0] - L_HE[0] - 4}")
    a(f"ds_write_b32 v8, v32 offset:{L_HE[1] - L_HE[0]}")
    a(f"ds_write_b32 v8, v32 offset:{L_HO[1] - L_HE[0] - 4}")
    a("s_mov_b64 exec, -1")
    a("s_lshl_b32 s62, s48, 11")
    a(f"s_add_u32 s62, s62, {WS_FL}")
    for n in range(2, 9):
        a("s_barrier")
        if n == F0_AT + 1: nonce_lds(a)
        if n == XRP:
            a("s_mov_b32 exec_hi, 0")
            a(f"buffer_load_dwordx2 v[60:61], v12, {WS}, s62 offen sc1")
            a("s_mov_b64 exec, -1")
    lwait(a, 1, F_QX, 1, 62)
    a("s_waitcnt vmcnt(0)")
    a("s_mov_b32 exec_hi, 0")
    a("v_cmp_ne_u64 vcc, s[60:61], v[60:61]")
    a("s_mov_b64 exec, -1")
    a("s_cbranch_vccz F0OK")
    stamp(a, 6)
    poll(a, 0, 48, sleep=E('F0_PS', 2))
    a.label("F0OK")
    stamp(a, 1)
    a(f"s_add_u32 s64, s64, {WS_XR}")
    for q in (1, 0):
        a(f"s_mov_b32 m0, {L_XR[q]}")
        a(f"s_add_u32 s65, s64, {4096*q}")
        for i in range(4):
            a(f"buffer_load_dwordx4 v3, {WS}, s65 offen offset:{1024*i} sc1 lds")
    a("s_waitcnt vmcnt(4)")
    ladd(a, 1, F_CONV + 4, 54)
    a("s_waitcnt vmcnt(0)")
    ladd(a, 1, F_CONV, 54)
    stamp(a, 2)
    a("s_lshl_b32 s64, s48, 18")
    a("s_lshl_b32 s65, s49, 7")
    a("s_add_u32 s64, s64, s65")
    a(f"s_add_u32 s64, s64, {WS_ZT}")
    for i in range(8):
        a(f"v_xor_b32 v8, {i}, v6")
        a("v_lshlrev_b32 v8, 4, v8")
        a(f"v_lshl_add_u32 v{16+i}, v4, 12, v8")
    a("s_barrier")
    a("s_sleep 70")
    lwait(a, 1, F_ZD, 8, 61, sleep=16)
    publish(a, 2, 48, 49)
    a("s_sleep 100")
    poll(a, 2, 48, sleep=16)
    for i in range(8):
        a(f"s_mov_b32 m0, {L_Z + 1024*i}")
        a("s_nop 0")
        a(f"buffer_load_dwordx4 v{16+i}, {WS}, s64 offen sc1 lds")
        a("s_add_u32 s64, s64, 32768")
    a("s_waitcnt vmcnt(0)")
    stamp(a, 4)
    a.label("HEND")
    endpgm(a)

def gen_compute(a):
    a.label("CPATH")
    a.label("C_NN")
    a("""
    v_and_b32 v4, 31, v2
    v_lshrrev_b32 v5, 5, v2
    v_bfe_u32 v63, v2, 1, 3
    v_xor_b32 v63, v63, v5
    s_and_b32 s56, s3, 1
    s_lshl_b32 s56, s56, 12
    v_lshlrev_b32 v61, 7, v4
    v_add_u32 v61, s56, v61
    """)
    for st in range(4):
        a(f"v_xor_b32 v60, {2*st}, v63")
        a(f"v_lshl_add_u32 v{56+st}, v60, 4, v61")
    a("""
    v_bfe_u32 v61, v2, 2, 2
    v_lshl_add_u32 v62, v5, 3, v61
    v_lshlrev_b32 v60, 8, v62
    v_bfe_u32 v63, v2, 4, 1
    v_lshl_add_u32 v60, v63, 5, v60
    v_and_b32 v63, 3, v2
    v_lshl_add_u32 v60, v63, 3, v60
    s_lshr_b32 s56, s3, 1
    v_xor_b32 v63, s56, v61
    v_lshl_add_u32 v60, v63, 6, v60
    """)
    a(f"v_add_u32 v60, {L_RING}, v60")
    for i in range(32): a(f"v_mov_b32 v{64+i}, 0")
    a("""
    s_lshl_b32 s56, s52, 2
    s_and_b32 s57, s3, 2
    s_add_u32 s56, s56, s57
    s_lshl_b32 s56, s56, 6
    s_lshl_b32 s57, s53, 1
    s_add_u32 s56, s56, s57
    s_and_b32 s57, s3, 1
    s_add_u32 s64, s56, s57
    s_lshl_b32 s56, s64, 11
    s_mov_b32 s59, 0xffff0000
    """)
    a("s_waitcnt lgkmcnt(0)")
    stamp(a, 0)
    a("v_lshlrev_b32 v11, 4, v4")
    a(f"v_add_u32 v11, {L_A1 + 17408}, v11")
    srd(a, 28, P_WS, WS_SIZE)
    srd(a, 32, P_Q, 2048*512*2)
    srd(a, 36, P_OUT, 2048*1024*2)
    a(f"s_lshl_b32 s67, s66, 2")
    a(f"s_load_dword s68, s[{P_SSMD}:{P_SSMD+1}], s67")
    a("""
    s_lshl_b32 s57, s3, 10
    v_lshlrev_b32 v10, 9, v5
    v_lshl_add_u32 v10, v4, 2, v10
    v_add_u32 v10, s57, v10
    v_add_u32 v0, s57, v3
    s_sub_u32 s57, 7, s3
    v_and_b32 v12, 7, v4
    v_xor_b32 v12, s57, v12
    v_lshlrev_b32 v12, 4, v12
    v_lshl_add_u32 v12, v4, 8, v12
    v_lshlrev_b32 v9, 3, v5
    v_sub_u32 v12, v12, v9
    s_lshl_b32 s57, s3, 2
    v_lshrrev_b32 v8, 4, v2
    v_add_u32 v8, s57, v8
    v_xor_b32 v8, v8, v2
    v_and_b32 v8, 7, v8
    v_lshlrev_b32 v8, 4, v8
    v_lshrrev_b32 v9, 3, v2
    v_lshl_add_u32 v8, v9, 12, v8
    s_lshl_b32 s65, s48, 18
    s_lshl_b32 s57, s3, 15
    s_add_u32 s65, s65, s57
    s_sub_u32 s57, 31, s49
    s_lshl_b32 s57, s57, 7
    s_add_u32 s65, s65, s57
    v_mov_b32 v54, 1
    """)
    a(f"v_add_u32 v10, {L_A1}, v10")
    a(f"v_add_u32 v12, {L_A1S + 8}, v12")
    a(f"v_add_u32 v0, {L_A1S}, v0")
    a(f"s_add_u32 s65, s65, {WS_XR}")
    a("""
    v_and_b32 v7, 0x33, v2
    v_bfe_u32 v6, v2, 2, 1
    v_lshl_or_b32 v7, v6, 3, v7
    v_bfe_u32 v6, v2, 3, 1
    v_lshl_or_b32 v7, v6, 2, v7
    v_lshlrev_b32 v7, 4, v7
    v_lshlrev_b32 v61, 7, v62
    v_bfe_u32 v63, v2, 4, 1
    v_lshl_add_u32 v61, v63, 5, v61
    v_lshlrev_b32 v9, 17, v63
    v_and_b32 v63, 3, v2
    v_lshl_add_u32 v61, v63, 3, v61
    v_bfe_u32 v63, v2, 3, 1
    s_lshr_b32 s58, s3, 1
    v_xor_b32 v63, s58, v63
    v_lshl_add_u32 v61, v63, 6, v61
    v_lshl_add_u32 v9, v5, 8, v9
    v_and_b32 v6, 15, v2
    v_lshl_add_u32 v9, v6, 4, v9
    """)
    a(f"v_add_u32 v61, {L_RING}, v61")
    a(f"s_add_u32 s56, s56, {WS_KV}")
    a("s_add_u32 s57, s56, 131072")
    a("s_barrier")
    a("ds_read_b128 v[140:143], v11")
    stamp(a, 1)
    dstamp(a, 13)
    KR = 128; VR = 135; SK = 140; KF = 144; TAP = 152; KVv = 156; KS = 160; OUT = 164
    for r in range(7): a(f"ds_read_b32 v{KR+r}, v10 offset:{(5+r)*128}")
    for r in range(4): a(f"ds_read_b32 v{VR+r}, v10 offset:{9216 + r*128}")
    a("s_waitcnt lgkmcnt(0)")
    estamp(a, 5)
    for c in range(2):
        def unpack(dst, src, hi):
            if hi: a(f"v_and_b32 v{dst}, s59, v{src}")
            else:  a(f"v_lshlrev_b32 v{dst}, 16, v{src}")
        for r in range(7): unpack(KF + r, KR + r, c)
        for j in range(4): unpack(TAP + j, SK + 2*c + (j >> 1), j & 1)
        for r in range(4): unpack(KVv + r, VR + r, c)
        for r in range(4): a(f"v_mul_f32 v{KS+r}, v{KF+r}, v{TAP+3}")
        for r in range(4): a(f"v_fmac_f32 v{KS+r}, v{KF+r+1}, v{TAP+2}")
        for r in range(4): a(f"v_fmac_f32 v{KS+r}, v{KF+r+2}, v{TAP+1}")
        for r in range(4): a(f"v_fmac_f32 v{KS+r}, v{KF+r+3}, v{TAP+0}")
        for r in range(4): a(f"v_mul_f32 v{KVv+r}, v{KVv+r}, v{KS+r}")
        o = OUT + 2*c
        a(f"v_cvt_pk_bf16_f32 v{o}, v{KVv+3}, v{KVv+2}")
        a(f"v_cvt_pk_bf16_f32 v{o+1}, v{KVv+1}, v{KVv}")
        a(f"ds_write_b64 v12, {vr(o,2)} offset:{128*c}")
        estamp(a, 6 + c)
    a("s_waitcnt lgkmcnt(0)")
    if GB:
        a("s_barrier")
        a("ds_read_b128 v[48:51], v0")
        a("s_waitcnt lgkmcnt(0)")
        a(f"buffer_store_dwordx4 v[48:51], v8, {WS}, s65 offen sc1")
    a("s_cmp_ge_u32 s3, 4")
    a("s_cbranch_scc1 VPATH")
    FS = [16, 96]
    def p1_reads(c):
        xo = c*8192; wo = (c & 3)*16384
        for st in range(4):
            b = FS[c & 1] + 8*st
            a(f"ds_read_b128 {vr(b,4)}, v{56+st} offset:{xo}")
            a(f"ds_read_b64_tr_b16 {vr(b+4,2)}, v60 offset:{wo + 16*st*256}")
            a(f"ds_read_b64_tr_b16 {vr(b+6,2)}, v60 offset:{wo + (16*st+4)*256}")
    def p1_mfma(c, isv):
        for st in range(4):
            b = FS[c & 1] + 8*st
            x = vr(b,4); w = vr(b+4,4)
            if isv: a(f"v_mfma_f32_32x32x16_bf16 v[64:79], {x}, {w}, v[64:79]")
            else:   a(f"v_mfma_f32_32x32x16_bf16 v[64:79], {w}, {x}, v[64:79]")
    def pass1(isv):
        for c in range(8):
            if c == F0_AT: a("s_waitcnt vmcnt(0)")
            a("s_barrier")
            dstamp(a, 1 + c)
            if c in (0, 4): stamp(a, 2 + c//4)
            if c == 0 and not GB: a("ds_read_b128 v[48:51], v0")
            p1_reads(c)
            if c: p1_mfma(c - 1, isv)
            elif not GB:
                a("s_waitcnt lgkmcnt(12)")
                a(f"buffer_store_dwordx4 v[48:51], v8, {WS}, s65 offen sc1")
            a("s_waitcnt lgkmcnt(0)")
        a("s_barrier")
    pass1(False)
    P2B = [16, 24, 32, 40, 128, 136]
    lg2 = Cnt(a, "lgkmcnt", 15)
    def p2_read1(n):
        j = n >> 3; st = n & 7
        b = P2B[n % 6]
        if st == 0 and j:
            u = uid()
            lg2.wait(f"f{j}")
            a.nopad += 1
            a(f"v_cmp_gt_u32 vcc, {j}, v55")
            a(f"s_cbranch_vccz P2X{u}")
            a.label(f"P2W{u}")
            a(f"ds_read_b32 v55, v1 offset:{F_W}")
            a("s_waitcnt lgkmcnt(0)")
            a(f"v_cmp_gt_u32 vcc, {j}, v55")
            a(f"s_cbranch_vccnz P2W{u}")
            a.label(f"P2X{u}")
            a.nopad -= 1
        lg2.op(f"ds_read_b128 {vr(b,4)}, v{56+(st&3)} offset:{(2*j + (st>>2))*8192}", f"s{n}")
        lg2.op(f"ds_read_b64_tr_b16 {vr(b+4,2)}, v61 offset:{j*16384 + (16*st)*128}", f"s{n}")
        lg2.op(f"ds_read_b64_tr_b16 {vr(b+6,2)}, v61 offset:{j*16384 + (16*st + 4)*128}", f"s{n}")
        if st == 4 and j < 3: lg2.op(f"ds_read_b32 v55, v1 offset:{F_W}", f"f{j+1}")
    a("s_setprio 2")
    dstamp(a, 9)
    for n in range(4): p2_read1(n)
    p1_mfma(7, False)
    for n in range(32):
        if f"s{n}" in lg2.ops: lg2.wait(f"s{n}")
        b = P2B[n % 6]
        a(f"v_mfma_f32_32x32x16_bf16 v[80:95], {vr(b+4,4)}, {vr(b,4)}, v[80:95]")
        if n + 4 < 32: p2_read1(n + 4)
        if n in (KST, KST + 1):
            hh = n - KST
            for p in range(4):
                a(f"v_cvt_pk_bf16_f32 v{[48,160][hh]+p}, v{64+8*hh+2*p}, v{64+8*hh+2*p+1}")
            a(f"buffer_store_dwordx4 {vr([48,160][hh],4)}, v7, {WS}, s{56+hh} offen sc1")
    ladd(a, 1, F_P2D, 54)
    qs = f32bits(0.25 * math.log2(math.e))
    a(f"s_mov_b32 s58, {qs:#x}")
    a("s_lshl_b32 s56, s64, 10")
    a(f"s_add_u32 s56, s56, {WS_QF}")
    a("s_add_u32 s57, s56, 65536")
    a("s_nop 6")
    for hh in range(2):
        for i in range(8): a(f"v_mul_f32 v{80+8*hh+i}, s58, v{80+8*hh+i}")
        for p in range(4):
            a(f"v_cvt_pk_bf16_f32 v{96+4*hh+p}, v{80+8*hh+2*p}, v{80+8*hh+2*p+1}")
        a(f"buffer_store_dwordx4 {vr(96+4*hh,4)}, v3, {WS}, s{56+hh} offen sc1")
    a("s_setprio 0")
    stamp(a, 4)
    a("s_branch WIN1")

    a.label("VPATH")
    pass1(True)
    p1_mfma(7, True)
    a("s_nop 7")
    lwait(a, 1, F_QX, 1, 55)
    for j in range(2):
        for p in range(4):
            a(f"v_cvt_pk_bf16_f32 v{16+4*j+p}, v{64+8*j+2*p}, v{64+8*j+2*p+1}")
        a(f"buffer_store_dwordx4 {vr(16+4*j,4)}, v9, {WS}, s56 offen offset:{1024 + 512*j} sc1")
    stamp(a, 4)

    a.label("WIN1")
    AL = 80; AB = 84
    WF = 104
    Q = 4; KF = 8; V = 12; IDX = 28; AK = 29; AV = 30; S = 32; O = 64; NM = 80
    C0 = 136
    FA = 104
    FB = [48, 52, 56, 60, 88, 92, 32, 36]
    a("""
    s_mov_b32 s59, 0xffff0000
    s_lshr_b32 s64, s3, 2
    s_and_b32 s65, s3, 3
    v_and_b32 v6, 1, v2
    v_and_b32 v4, 15, v2
    v_lshrrev_b32 v5, 4, v2
    """)
    a(f"v_mul_u32_u24 v6, {L_HO[0] - 32 - (L_HE[0] - 30)}, v6")
    a(f"v_sub_u32 v6, {L_HO[0] - 32}, v6")
    a("v_lshl_add_u32 v6, v4, 1, v6")
    a("v_lshl_add_u32 v6, v5, 4, v6")
    a("s_mul_i32 s56, s64, 8324")
    a("s_lshl_b32 s57, s65, 7")
    a("s_add_u32 s56, s56, s57")
    a(f"v_add_u32 v{AL}, s56, v6")
    for k in range(1, 4): a(f"v_add_u32 v{AL+k}, {1024*k}, v{AL}")
    a("v_lshlrev_b32 v6, 1, v4")
    a("v_sub_u32 v6, v5, v6")
    a("v_lshlrev_b32 v6, 4, v6")
    a("s_mul_i32 s56, s64, 7680")
    a("s_add_u32 s57, s56, s57")
    a(f"s_add_u32 s57, s57, {L_XR[0] + 30*16}")
    a(f"v_add_u32 v{AB}, s57, v6")
    a("v_mov_b32 v0, 1")
    a("s_lshl_b32 s57, s64, 2")
    a("v_add_u32 v85, s57, v1")
    stamp(a, 5)
    fstamp(a, 1)
    lwait(a, 85, F_CONV, 2, 86)
    fstamp(a, 2)
    stamp(a, 6)
    fil = Asm()
    f = fil
    f("s_lshl_b32 s57, s3, 13")
    f(f"s_add_u32 s57, s57, {L_RED}")
    f("""
    v_bfe_u32 v6, v2, 5, 1
    v_lshlrev_b32 v6, 7, v6
    v_xor_b32 v40, v3, v6
    v_add_u32 v40, s57, v40
    v_bfe_u32 v44, v2, 1, 4
    v_and_b32 v6, 1, v2
    v_lshlrev_b32 v7, 3, v6
    v_xor_b32 v44, v44, v7
    v_lshl_add_u32 v44, v6, 5, v44
    v_lshlrev_b32 v44, 4, v44
    v_lshrrev_b32 v6, 5, v2
    v_lshl_add_u32 v44, v6, 10, v44
    s_lshl_b32 s57, s65, 11
    s_lshl_b32 s58, s64, 15
    s_add_u32 s57, s57, s58
    """)
    f(f"s_add_u32 s57, s57, {L_RED}")
    f("""
    v_add_u32 v44, s57, v44
    s_lshl_b32 s57, s65, 6
    s_sub_u32 s57, 255, s57
    v_sub_u32 v45, s57, v2
    v_lshlrev_b32 v45, 4, v45
    """)
    f(f"s_add_u32 s56, s56, {L_XR[0]}")
    f("""
    v_add_u32 v45, s56, v45
    s_lshl_b32 s57, s64, 4
    s_lshr_b32 s58, s68, s57
    s_lshl_b32 s58, s58, 16
    s_lshl_b32 s56, s66, 1
    s_add_u32 s56, s56, s64
    s_lshl_b32 s56, s56, 12
    s_lshl_b32 s57, s65, 10
    s_add_u32 s56, s56, s57
    """)
    f(f"s_add_u32 s56, s56, {WS_ZT}")
    f("""
    s_lshl_b32 s55, s50, 3
    s_add_u32 s55, s55, s3
    s_lshl_b32 s55, s55, 14
    """)
    f(f"s_add_u32 s55, s55, {WS_WOF}")
    f("""
    v_lshrrev_b32 v46, 3, v2
    v_and_b32 v7, 7, v2
    v_lshlrev_b32 v46, 10, v46
    v_lshl_add_u32 v46, v7, 4, v46
    s_lshl_b32 s64, s49, 16
    s_lshl_b32 s57, s3, 13
    s_add_u32 s64, s64, s57
    s_lshl_b32 s57, s48, 7
    s_add_u32 s64, s64, s57
    """)
    f("v_and_b32 v31, 27, v2")
    f("v_cmp_eq_u32 vcc, 16, v31")
    f("v_mov_b32 v31, 0x3f803f80")
    f(f"v_mov_b32 v{IDX}, 0xdddd")
    f(f"v_cndmask_b32 v{V}, 0, v31, vcc")
    for i in range(1, 16): f(f"v_mov_b32 v{V+i}, v{V}")
    f("s_mov_b32 s66, 0xffff")
    f("s_mov_b32 s67, 0xffff")
    f("s_mov_b32 s68, 0")
    f(f"s_mov_b32 s69, {(1<<1)|(1<<2)|(1<<8)}")
    f("s_lshl_b32 s57, s3, 10")
    f(f"s_add_u32 s57, s57, {L_Q}")
    f(f"v_add_u32 v47, s57, v3")
    f(f"v_mov_b32 v{AK}, v3")
    f("v_and_b32 v31, 15, v2")
    f("v_lshlrev_b32 v31, 4, v31")
    f(f"v_lshrrev_b32 v{AV}, 5, v2")
    f(f"v_lshl_add_u32 v{AV}, v{AV}, 8, v31")
    f(f"v_add_u32 v{AV}, 1024, v{AV}")
    for i in range(16): f(f"v_mov_b32 v{O+i}, 0")
    f("s_mov_b32 s65, 0")
    fl = [l for l, _ in fil.l]
    per = -(-len(fl) // 56)
    def fill():
        for _ in range(per):
            if fl: a(fl.pop(0))
    lg = Cnt(a, "lgkmcnt", 15)
    def rA(i, j):
        o = 128*(j & 1) + 16*i
        lg.op(f"ds_read2_b32 {vr(FA+4*j,2)}, v{AL+(j>>1)} offset0:{o} offset1:{o+1}", f"A{i}{j}")
        lg.op(f"ds_read2_b32 {vr(FA+4*j+2,2)}, v{AL+(j>>1)} offset0:{o+2} offset1:{o+3}", f"A{i}{j}")
    def rB(i, T):
        lg.op(f"ds_read_b128 {vr(FB[T],4)}, v{AB} offset:{512*(7-T) + 64*i}", f"B{i}{T}")
    def need(tag):
        if tag in lg.ops: lg.wait(tag)
    def mm(i, j, T):
        need(f"A{i}{j}"); need(f"B{i}{T}")
        d = vr(C0 + 4*(j+T), 4)
        first = (i == 0 and j == 0)
        a(f"v_mfma_f32_16x16x32_bf16 {d}, {vr(FA+4*j,4)}, {vr(FB[T],4)}, {0 if first else d}")
        fill()
    rA(0, 0)
    for T in range(8): rB(0, T)
    rA(0, 1); rA(0, 2)
    nmm = 0
    def stblock(i):
        u = uid()
        if ST_AT != ST_AV:
            a("s_cmp_lt_u32 s3, 4")
            a(f"s_cbranch_scc{0 if i == ST_AT else 1} STS{u}")
        a("s_waitcnt vmcnt(0) lgkmcnt(0)")
        ladd(a, 1, F_ST, 0)
        a("s_waitcnt lgkmcnt(0)")
        a.label(f"STS{u}")
    for j in range(8):
        for T in range(8 - j): mm(0, j, T)
        if j + 3 < 8: rA(0, j + 3)
        rB(1, 7 - j)
        if j >= 5: rA(1, j - 5)
        if j in (ST_AT, ST_AV): stblock(j)
    for j in range(8):
        for T in range(7 - j, -1, -1): mm(1, j, T)
        if j + 3 < 8: rA(1, j + 3)
        if j == 4:
            lg.op(f"ds_read_b32 v86, v1 offset:{F_P2D}", "p")
            lg.op("ds_read_b128 v[36:39], v45", "p")
        if 8 + j in (ST_AT, ST_AV): stblock(8 + j)
    assert not fl
    fstamp(a, 5)
    a("s_waitcnt lgkmcnt(0)")
    lwait(a, 1, F_P2D, 4, 86, pre=True)
    for d in range(4):
        a(f"v_lshlrev_b32 v{Q+7-2*d}, 16, v{36+d}")
        a(f"v_and_b32 v{Q+6-2*d}, s59, v{36+d}")
    for U_ in range(8): a(f"ds_write_b128 v40, {vr(C0+4*U_,4)} offset:{U_*1024}")
    for i in range(8): a(f"v_mov_b32 v{S+16+8+i}, 0")
    a("v_mov_b32 v96, v46")
    a("s_waitcnt lgkmcnt(0)")
    fstamp(a, 8)
    ladd(a, 85, F_C1, 0)
    lwait(a, 85, F_C1, 4, 86)
    fstamp(a, 9)
    stamp(a, 7)
    R = 104
    for src in range(4):
        a(f"ds_read_b128 {vr(R+8*src,4)}, v44 offset:{src*8192}")
        a(f"ds_read_b128 {vr(R+4+8*src,4)}, v44 offset:{src*8192 + 256}")
    a("s_waitcnt lgkmcnt(6)")
    for i in range(8): a(f"v_fmac_f32 v{R+i}, s58, v{Q+i}")
    for src in range(1, 4):
        a(f"s_waitcnt lgkmcnt({6 - 2*src})")
        for i in range(8): a(f"v_add_f32 v{R+i}, v{R+i}, v{R+8*src+i}")
    for i in range(4): a(f"v_cvt_pk_bf16_f32 v{100+i}, v{R+2*i}, v{R+1+2*i}")
    a(f"buffer_store_dwordx4 v[100:103], v3, {WS}, s56 offen sc1")
    a.label("RUN1")
    stamp(a, 8)
    fstamp(a, 12)
    a("s_barrier")
    fstamp(a, 13)
    stamp(a, 9)
    a(f"ds_read_b128 {vr(Q,4)}, v47")
    a("s_mov_b64 exec, 1")
    a(f"ds_add_u32 v1, v0 offset:{F_QRD}")
    a("s_mov_b64 exec, -1")
    def prolog(cin):
        a(f"ds_read_b128 {vr(KF,4)}, v3")
        a("s_mov_b64 exec, s[66:67]")
        a(f"ds_read_b128 {vr(V,4)}, v{AV}")
        a(f"ds_read_b128 {vr(V+4,4)}, v{AV} offset:512")
        a(f"ds_read_b128 {vr(V+12,4)}, v{AV} offset:512")
        a("s_mov_b64 exec, -1")
        a("s_waitcnt lgkmcnt(3)")
        a(f"v_mfma_f32_32x32x16_bf16 {vr(S,16)}, {vr(KF,4)}, {vr(Q,4)}, {cin}")
        a(f"ds_read_b128 {vr(KF,4)}, v{AK} offset:2048")
        a("s_waitcnt lgkmcnt(1)")
        a("s_nop 9")
    prolog("0")
    a.nopad += 1
    U = 8
    def tile(u, wf=None, cin="0", last=None, mid=None):
        c = u & 1; p = c ^ 1
        Sc = S + 16*c; Sp = S + 16*p
        def ex(i): a(f"v_exp_f32 v{Sc+i}, v{Sc+i}")
        def wl(st):
            a(f"buffer_load_dwordx4 {vr(WF+4*st,4)}, v3, {WS}, s55 offen offset:{1024*(st&3)} sc1")
            if st % 4 == 3: a("s_add_u32 s55, s55, 4096")
        a(f"s_setprio {3-(u&3)}")
        ex(0); ex(1)
        a(f"v_smfmac_f32_32x32x32_bf16 {vr(O,16)}, {vr(V+8*p+4,4)}, {vr(Sp+8,8)}, v{IDX}")
        a("s_mov_b64 exec, s[66:67]")
        a(f"ds_read_b128 {vr(V+8*p,4)}, v{AV} offset:{(u+1)*2048}")
        a(f"ds_read_b128 {vr(V+8*p+4,4)}, v{AV} offset:{(u+1)*2048+512}")
        a("s_mov_b64 exec, -1")
        ex(2); ex(3); ex(4)
        a("s_waitcnt lgkmcnt(2)")
        a(f"v_mfma_f32_32x32x16_bf16 {vr(Sp,16)}, {vr(KF,4)}, {vr(Q,4)}, {cin}")
        a(f"ds_read_b128 {vr(KF,4)}, v{AK} offset:{(u+2)*2048}")
        if wf is not None: wl(2*wf)
        if mid: mid()
        for i in range(5, 10): ex(i)
        a(f"v_smfmac_f32_32x32x32_bf16 {vr(O,16)}, {vr(V+8*c,4)}, {vr(Sc,8)}, v{IDX}")
        if wf is not None: wl(2*wf + 1)
        if last: last()
        for i in range(10, 16): ex(i)
    def samp(off): return lambda: a(f"ds_read_b32 v97, v1 offset:{off}")
    def chk(n, lab):
        def f():
            a(f"v_cmp_gt_u32 vcc, {n}, v97")
            a(f"s_cbranch_vccnz {lab}")
            a.label(lab + "R")
        return f
    def zd():
        a("s_waitcnt vmcnt(0)")
        ladd(a, 1, F_ZD, 0)
    def ql(): a("buffer_load_dwordx4 v[100:103], v96, s[32:35], s64 offen")
    for u in range(24):
        tile(u, wf=(u - 16 if u >= 16 else None),
             mid={2: samp(F_K1), 12: zd, 13: ql, 14: samp(F_K2)}.get(u),
             last={3: chk(1, "CK1"), 15: chk(2, "CK2")}.get(u))
    a(f"v_add_u32 v{AK}, {24*2048}, v{AK}")
    a(f"v_add_u32 v{AV}, {24*2048}, v{AV}")
    a.raw(".p2align 6")
    a.label("LOOP")
    def lend():
        a("s_add_u32 s65, s65, 1")
        a("s_cmp_lt_u32 s65, 5")
    for u in range(U): tile(u, last=lend if u == U-1 else None)
    a(f"v_add_u32 v{AK}, {U*2048}, v{AK}")
    a(f"v_add_u32 v{AV}, {U*2048}, v{AV}")
    a("s_cbranch_scc1 LOOP")
    a.nopad -= 1
    a.label("LEXIT")
    a(f"v_smfmac_f32_32x32x32_bf16 {vr(O,16)}, {vr(V+8+4,4)}, {vr(S+16+8,8)}, v{IDX}")
    a("s_setprio 0")
    a(f"ds_read_b64 v[98:99], v1 offset:{F_NONCE}")
    a("""
    s_lshl_b32 s56, s51, 3
    s_add_u32 s56, s56, s3
    s_lshl_b32 s56, s56, 5
    s_add_u32 s56, s56, s54
    s_lshl_b32 s55, s56, 6
    s_lshl_b32 s56, s56, 10
    """)
    a(f"s_add_u32 s55, s55, {WS_FL + 3*16384}")
    a(f"s_add_u32 s64, s56, {WS_OF}")
    a(f"s_mov_b32 s56, {f32bits(2.0**100):#x}")
    a(f"s_mov_b32 s57, {f32bits(2.0**40):#x}")
    a(f"s_mov_b32 s58, {f32bits(2.0**-40):#x}")
    a("s_waitcnt lgkmcnt(0)")
    a(f"v_rcp_f32 v{AK}, v{O+8}")
    a("s_cmp_lg_u32 s68, 0")
    a("s_cbranch_scc1 FIN")
    a(f"v_add_f32 v31, abs(v{O}), abs(v{O+1})")
    for i in range(2, 8): a(f"v_add_f32 v31, v31, abs(v{O+i})")
    a("v_cmp_ngt_f32 vcc, s56, v31")
    a(f"v_cmp_ngt_f32 s[62:63], s57, v{O+8}")
    a(f"v_cmp_nlt_f32 s[70:71], s58, v{O+8}")
    a("s_or_b64 s[62:63], s[62:63], s[70:71]")
    a("s_or_b64 s[62:63], vcc, s[62:63]")
    a("s_cbranch_scc1 FALLBACK")
    a.label("FIN")
    for i in range(8): a(f"v_mul_f32 v{O+i}, v{O+i}, v{AK}")
    for i in range(4): a(f"v_cvt_pk_bf16_f32 v{KF+i}, v{O+2*i}, v{O+2*i+1}")
    a(f"buffer_store_dwordx4 {vr(KF,4)}, v3, {WS}, s64 offen sc1")
    stamp(a, 10)
    a("s_waitcnt vmcnt(1)")
    a("s_barrier")
    stamp(a, 11)
    a("""
    v_lshrrev_b32 v4, 3, v2
    v_and_b32 v5, 7, v2
    v_xor_b32 v6, s3, v5
    v_lshlrev_b32 v6, 4, v6
    v_lshl_add_u32 v6, v5, 10, v6
    v_lshl_add_u32 v6, v4, 1, v6
    """)
    a(f"v_add_u32 v6, {L_Z}, v6")
    for jj in range(8): a(f"ds_read_u16_d16_hi v{32+jj}, v6 offset:{128*jj}")
    a("""
    v_lshlrev_b32 v7, 11, v4
    v_lshl_add_u32 v7, v5, 4, v7
    s_lshl_b32 s64, s49, 17
    s_lshl_b32 s57, s3, 14
    s_add_u32 s64, s64, s57
    s_lshl_b32 s57, s48, 7
    s_add_u32 s64, s64, s57
    v_and_b32 v14, 15, v2
    v_lshrrev_b32 v15, 4, v2
    v_lshlrev_b32 v13, 4, v14
    v_lshl_add_u32 v13, v15, 9, v13
    v_and_b32 v12, 1, v15
    v_lshl_add_u32 v14, v12, 4, v14
    v_lshlrev_b32 v14, 11, v14
    v_lshrrev_b32 v15, 1, v15
    v_lshl_add_u32 v14, v15, 4, v14
    s_lshl_b32 s56, s48, 3
    s_add_u32 s56, s56, s51
    s_lshl_b32 s56, s56, 16
    s_lshl_b32 s57, s3, 5
    s_add_u32 s56, s56, s57
    s_lshl_b32 s57, s50, 8
    s_add_u32 s56, s56, s57
    s_add_u32 s56, s56, 1024
    v_mov_b32 v12, 0
    """)
    for p in range(4):
        a(f"v_lshlrev_b32 v{40+2*p}, 16, v{100+p}")
        a(f"v_and_b32 v{41+2*p}, s59, v{100+p}")
    a("s_waitcnt lgkmcnt(0)")
    for i in range(8):
        a(f"v_and_b32 v{32+i}, s59, v{32+i}")
        a(f"v_mul_f32 v{32+i}, v{32+i}, v{40+i}")
    for i in range(4): a(f"v_cvt_pk_bf16_f32 v{100+i}, v{32+2*i}, v{33+2*i}")
    a("s_waitcnt vmcnt(0)")
    a("s_mov_b64 exec, 1")
    a(f"buffer_store_dwordx2 v[98:99], v12, {WS}, s55 offen sc1")
    a("s_mov_b64 exec, -1")
    a(f"buffer_store_dwordx4 v[100:103], v7, s[36:39], s64 offen {os.environ.get('A3F','')}")
    a(f"v_add_u32 v5, {F_GQ}, v1")
    a("s_mov_b32 s65, 0")
    a.nopad += 1
    a.label("GQ")
    a("ds_read_b32 v4, v5")
    a("s_waitcnt lgkmcnt(0)")
    a.label("GQ2")
    a("v_readfirstlane_b32 s57, v4")
    a("s_cmp_eq_u32 s57, 0")
    a("s_cbranch_scc1 GQ")
    a("s_lshl_b32 s58, s57, 10")
    a("v_add_u32 v6, s58, v13")
    a("ds_read_b32 v4, v5 offset:4")
    for st in range(2):
        for m in range(2):
            a(f"ds_read_b128 {vr(16+8*st+4*m,4)}, v6 offset:{2048*st + 256*m}")
    a("v_add_u32 v5, 4, v5")
    a("s_add_u32 s65, s65, 1")
    a("s_cmp_gt_u32 s57, 16")
    a("s_cbranch_scc1 GH")
    for g in (0, 1, 2):
        a(f"s_cmp_eq_u32 s57, {4*g+4}")
        a(f"s_cbranch_scc1 GC{g}")
    def gcase(g, last=False):
        a.label(f"GC{g}")
        for st in range(2):
            for m in range(2):
                a(f"s_waitcnt lgkmcnt({3 - 2*st - m})")
                d = vr(32+8*g+4*m,4)
                a(f"v_mfma_f32_16x16x32_bf16 {d}, {vr(WF+4*(2*g+st),4)}, {vr(16+8*st+4*m,4)}, {d if st else 0}")
        a("s_cmp_lt_u32 s65, 8")
        a("s_cbranch_scc1 GQ2")
        if not last: a("s_branch GE")
    gcase(3)
    a.label("GH")
    for g in (4, 5, 6):
        a(f"s_cmp_eq_u32 s57, {4*g+4}")
        a(f"s_cbranch_scc1 GC{g}")
    for g in (7, 0, 1, 2, 4, 5): gcase(g)
    gcase(6, True)
    a.label("GE")
    a.nopad -= 1
    stamp(a, 12)
    a("s_nop 7")
    for step in (1, 2, 4):
        for g in range(0, 8, 2*step):
            for i in range(0, 8, 2):
                a(f"v_pk_add_f32 {vr(32+8*g+i,2)}, {vr(32+8*g+i,2)}, {vr(32+8*(g+step)+i,2)}")
    for m in range(2):
        a(f"v_cvt_pk_bf16_f32 v{16+2*m}, v{32+4*m}, v{33+4*m}")
        a(f"v_cvt_pk_bf16_f32 v{17+2*m}, v{34+4*m}, v{35+4*m}")
    a("s_nop 1")
    a("v_permlane16_swap_b32 v16, v18")
    a("v_permlane16_swap_b32 v17, v19")
    a(f"buffer_store_dwordx4 v[16:19], v14, s[36:39], s56 offen {os.environ.get('OUTF','')}")
    stamp(a, 13)
    endpgm(a)
    a.label("CK1")
    lwait(a, 1, F_K1, 1, 97)
    a("s_branch CK1R")
    a.label("CK2")
    lwait(a, 1, F_K2, 2, 97)
    a("s_branch CK2R")

    a.nopad += 1
    a.label("FALLBACK")
    a("s_mov_b32 s68, 1")
    a(f"v_mov_b32 v{AK}, v3")
    a(f"v_mov_b32 v31, {f32bits(float('-inf')):#x}")
    a("s_mov_b32 s65, 0")
    a.label("MAXL")
    a(f"ds_read_b128 {vr(KF,4)}, v{AK}")
    a(f"v_add_u32 v{AK}, 2048, v{AK}")
    a("s_waitcnt lgkmcnt(0)")
    a(f"v_mfma_f32_32x32x16_bf16 {vr(S,16)}, {vr(KF,4)}, {vr(Q,4)}, 0")
    a("s_nop 15")
    for i in range(0, 16, 2): a(f"v_max3_f32 v31, v31, v{S+i}, v{S+i+1}")
    a("s_add_u32 s65, s65, 1")
    a("s_cmp_lt_u32 s65, 64")
    a("s_cbranch_scc1 MAXL")
    a(f"v_mov_b32 v{S}, v31")
    a("s_nop 1")
    a(f"v_permlane32_swap_b32 v31, v{S}")
    a("s_nop 1")
    a(f"v_max_f32 v31, v31, v{S}")
    for i in range(16): a(f"v_sub_f32 v{NM+i}, 0, v31")
    a(f"v_mov_b32 v{AK}, v3")
    a(f"v_subrev_u32 v{AV}, {64*2048}, v{AV}")
    for i in range(16): a(f"v_mov_b32 v{O+i}, 0")
    for i in range(8): a(f"v_mov_b32 v{S+16+8+i}, 0")
    a("s_mov_b32 s65, 0")
    prolog(vr(NM,16))
    a.label("FBL")
    for u in range(2): tile(u, cin=vr(NM,16))
    a(f"v_add_u32 v{AK}, {2*2048}, v{AK}")
    a(f"v_add_u32 v{AV}, {2*2048}, v{AV}")
    a("s_add_u32 s65, s65, 1")
    a("s_cmp_lt_u32 s65, 32")
    a("s_cbranch_scc1 FBL")
    a("s_branch LEXIT")

HEAD = '.amdgcn_target "amdgcn-amd-amdhsa--gfx950"\n.text\n'
def sizes(lines):
    txt = HEAD
    for i, (l, _) in enumerate(lines):
        if l.startswith("@@") or l.startswith(".p2align"): continue
        txt += f"ZZ{i}:\n{l}\n"
    txt += "ZZEND:\n"
    open("_sz.s", "w").write(txt)
    subprocess.run(["clang", "-x", "assembler", "-target", "amdgcn-amd-amdhsa", "-mcpu=gfx950", "-c", "_sz.s", "-o", "_sz.o"], check=True)
    out = subprocess.run(["llvm-objdump", "-t", "_sz.o"], capture_output=True, text=True).stdout
    ad = {}
    for m in re.finditer(r"^([0-9a-f]+) .* ZZ(\w+)$", out, re.M): ad[m.group(2)] = int(m.group(1), 16)
    keys = sorted((int(k) for k in ad if k != "END"))
    sz = {}
    for x, y in zip(keys, keys[1:] + ["END"]): sz[x] = ad[str(y)] - ad[str(x)]
    return sz

def layout(lines):
    NW = 8
    if not PADS:
        return "\n".join(l for l, _ in lines if not l.startswith("@@")) + "\n"
    sz = sizes(lines)
    CALL = 8*NW
    out = []; pos = 0; npad = 0; i = 0; n = len(lines)
    def emit_pad():
        nonlocal pos, npad
        prev = out[-1].strip() if out else ""
        if not (prev.startswith("s_branch") or prev.startswith("s_endpgm")):
            out.append(f"    s_branch PSK{npad}"); pos += 4
        out.append(".p2align 10"); pos = (pos + 1023)//1024*1024
        out.append(f"PAD{npad}:"); out.append(f"@@PADNEXT{npad}@@"); pos += 4
        out.append(f"PSK{npad}:")
        npad += 1
    def lsize(k, p):
        l = lines[k][0]
        if l == "@@PADCALL@@": return CALL
        if l.startswith("@@"): return 0
        if l.startswith(".p2align"):
            al = 1 << int(l.split()[1]); return (-p) % al
        return sz.get(k, 0)
    while i < n:
        l, np_ = lines[i]
        if l == "@@FORCEPAD@@":
            emit_pad(); i += 1; continue
        if not np_ and pos >= 1024:
            p = pos; k = i
            p += lsize(k, p); k += 1
            while k < n and lines[k][1] and lines[k][0] != "@@FORCEPAD@@":
                p += lsize(k, p); k += 1
            lim = (pos // 1024 + 1)*1024 if pos % 1024 else pos + 1024
            if p + 4 > lim and k < n and lines[k][0] != "@@FORCEPAD@@" and (pos % 1024) > 8:
                emit_pad()
        out.append(l); pos += lsize(i, pos); i += 1
    txt = "\n".join(out) + "\n"
    call = ""
    for w in range(NW):
        call += f"    s_cmp_eq_u32 s3, {w}\n    s_cbranch_scc1 {'PAD%d' % w if w < npad else 'PADRET'}\n"
    txt = txt.replace("@@PADCALL@@\n", call)
    for k in range(npad):
        nxt = f"PAD{k+NW}" if k + NW < npad else "PADRET"
        txt = txt.replace(f"@@PADNEXT{k}@@", f"    s_branch {nxt}")
    return txt

def main():
    ref = open(f"cdna_kernels/{NAME}.s.ref").read().split("\n")
    hdr = []
    for line in ref:
        if line.startswith(";") and "@launch" not in line: hdr.append(line)
        elif not line.startswith(";"): break
    a = Asm(); gen_entry(a); gen_loader1(a)
    cut = next(i for i, (l, _) in enumerate(a.l) if "L0: " in l or l.strip().startswith("@@CUT")) if False else None
    b = Asm(); gen_compute(b)
    c = Asm(); c.nopad = 1; stampout(c); c.label("END"); c("s_endpgm")
    k = max(i for i, (l, _) in enumerate(a.l) if l == "LQ:")
    first = a.l[:k]; second = a.l[k:]
    kf = next(i for i, (l, _) in enumerate(b.l) if l == "FALLBACK:")
    lines = first + b.l[:kf] + second + b.l[kf:] + c.l
    out = "\n".join(hdr) + "\n"
    out += f"; @launch grid=(256,1,1) block=(768,1,1) lds={L_TOTAL}\n"
    out += HEAD + layout(lines)
    out += f""".section .rodata,"a"
.p2align 6
.amdhsa_kernel {KN}
  .amdhsa_next_free_vgpr 168
  .amdhsa_next_free_sgpr 96
  .amdhsa_accum_offset 168
  .amdhsa_group_segment_fixed_size 0
  .amdhsa_kernarg_size 96
  .amdhsa_user_sgpr_count 2
  .amdhsa_user_sgpr_kernarg_segment_ptr 1
  .amdhsa_system_sgpr_workgroup_id_x 1
  .amdhsa_float_denorm_mode_32 3
.end_amdhsa_kernel
"""
    dst = sys.argv[1] if len(sys.argv) > 1 else f"cdna_kernels/{NAME}.s"
    open(dst, "w").write(out)

if __name__ == "__main__":
    main()
```

```python
import sys, math, struct, os, subprocess, re

NAME = "concat_heads__ssm_conv_h3__softmax_full_mha__prompt"
KN = NAME + "_kernel"
E = lambda n, d: int(os.environ.get(n, str(d)))
STAMP = E("STAMP", 0); DIAG = E("DIAG", 0)
F0_AT = E("F0_AT", 4); ST_AT = E("ST_AT", -2); ST_AV = E("ST_AV", -2); WF_AT = E("WF_AT", 7); PADS = E("PADS", 0); GATH = E("GATH", 2); XRP = E("XRP", 7); QST = E("QST", 8); GB = E("GB", 0); WOE = E("WOE", 0); KST = E("KST", 30); WFM = E("WFM", 1); HAT = E("HAT", 6); NON_AT = E("NON_AT", 0)

WS_QF  = 0; WS_KV = 2 << 20; WS_OF = 6 << 20; WS_XR = 8 << 20; WS_ZT = 10 << 20
WS_FL  = 12 << 20; WS_WOF = 13 << 20; WS_ST = 16 << 20; WS_SIZE = 18 << 20

L_X = 0; L_RING = 65536; L_CONV = 131072
L_XR = [L_CONV, L_CONV + 7680]
L_HE = [L_CONV + 15360 + 64, L_CONV + 15360 + 8324 + 64]
L_HO = [L_HE[0] + 4096 + 68, L_HE[1] + 4096 + 68]
L_MISC = L_CONV + 15360 + 2*8324
L_TOTAL = 163840
L_Q = 57344; L_Z = L_CONV; L_O = 4096; L_RED = 65536
L_A1 = L_CONV
L_A1S = L_CONV + 18432
L_WT = L_CONV + 26624
F_X = 0; F_W = 4; F_QX = 8; F_FULL = 0; F_FULLA = 48; F_FREE = 64; F_STG = 112; F_XRD = 116; F_C1 = 120; F_ISS = 128
F_GQ = 200; F_K1 = 184; F_K2 = 188; F_QRD = 192; F_ZD = 196; F_CONV = 176; F_P2D = 148; F_ST = 152; F_WOF = 156; F_NONCE = 160; F_HE = 168

def f32bits(x): return struct.unpack("<I", struct.pack("<f", x))[0]

class Asm:
    def __init__(self): self.l = []; self.nopad = 0
    def __call__(self, s):
        for line in s.strip("\n").split("\n"):
            if line.strip(): self.l.append(("    " + line.strip(), self.nopad))
    def label(self, n): self.l.append((n + ":", 1))
    def raw(self, s): self.l.append((s, 1))

class Cnt:
    def __init__(self, a, name, mx): self.a = a; self.ops = []; self.name = name; self.mx = mx
    def op(self, s, tag): self.a(s); self.ops.append(tag)
    def wait(self, tag):
        idx = max(i for i, t in enumerate(self.ops) if t == tag)
        n = len(self.ops) - 1 - idx
        assert n <= self.mx, n
        self.a(f"s_waitcnt {self.name}({n})")
        self.ops = self.ops[idx+1:]

def vr(b, n): return f"v[{b}:{b+n-1}]"
P_Q, P_K, P_V, P_SHK, P_SSMK, P_SSMD, P_X, P_WQKV, P_WO, P_OUT, P_DBG, P_WS = [4 + 2*i for i in range(12)]
def srd(a, d, ptr, size):
    a(f"s_mov_b32 s{d}, s{ptr}")
    a(f"s_and_b32 s{d+1}, s{ptr+1}, 0xffff")
    a(f"s_mov_b32 s{d+2}, {size}")
    a(f"s_mov_b32 s{d+3}, 0x00020000")
WS = "s[28:31]"
NST = 14
def stamp_begin(a):
    if STAMP:
        a("s_memrealtime s[72:73]")
        a("s_memtime s[76:77]")
def dstamp(a, k):
    if DIAG == 1: stamp(a, k, True)
def estamp(a, k):
    if DIAG == 2: stamp(a, k, True)
def fstamp(a, k):
    if DIAG == 3: stamp(a, k, True)
def stamp(a, k, d=False):
    if STAMP == 3:
        m = {2: 0, 4: 2, 8: 4, 9: 6, 10: 8, 12: 10, 13: 12}
        if not d and k in m:
            a("s_memrealtime s[94:95]")
            a("s_memtime s[78:79]")
            a("s_waitcnt lgkmcnt(0)")
            a(f"s_sub_u32 s{80+m[k]}, s94, s72")
            a(f"s_sub_u32 s{81+m[k]}, s78, s76")
    elif STAMP == 2:
        if not d:
            a("s_memrealtime s[94:95]")
            a("s_waitcnt lgkmcnt(0)")
            a(f"s_mov_b32 s{80+k}, s94")
    elif STAMP and (d or not DIAG or k == 0):
        a("s_memtime s[94:95]")
        a("s_waitcnt lgkmcnt(0)")
        a(f"s_sub_u32 s{80+k}, s94, s76")
def endpgm(a):
    if STAMP: a("s_branch STAMPOUT")
    else: a("s_endpgm")
def stampout(a):
    if STAMP:
        a.label("STAMPOUT")
        srd(a, 28, P_WS, WS_SIZE)
        a("s_waitcnt vmcnt(0)")
        a("s_memrealtime s[74:75]")
        a("s_memtime s[78:79]")
        a("s_waitcnt lgkmcnt(0)")
        a("s_sub_u32 s78, s78, s76")
        a("s_mov_b64 exec, 1")
        a("v_mov_b32 v4, s72")
        a("v_mov_b32 v5, s74")
        a("v_mov_b32 v6, s78")
        for k in range(NST): a(f"v_mov_b32 v{7+k}, s{80+k}")
        a("s_lshl_b32 s76, s2, 4")
        a("s_add_u32 s76, s76, s3")
        a("s_lshl_b32 s76, s76, 7")
        a(f"s_add_u32 s76, s76, {WS_ST}")
        a("v_mov_b32 v30, 0")
        for k in range(5):
            a(f"buffer_store_dwordx4 v[{4+4*k}:{7+4*k}], v30, {WS}, s76 offen offset:{16*k}")
        a("s_endpgm")

_uid = [0]
def uid(): _uid[0] += 1; return _uid[0]
def poll(a, stage, grp_sreg, mode=0, sleep=1):
    u = uid()
    if mode == 3: a(f"s_mov_b32 s62, {WS_FL + stage*16384}")
    else:
        a(f"s_lshl_b32 s62, s{grp_sreg}, 11")
        a(f"s_add_u32 s62, s62, {WS_FL + stage*16384}")
    a("s_mov_b32 s63, 0")
    if mode == 0: a("s_mov_b32 exec_hi, 0")
    a.nopad += 1
    a.label(f"POLL{u}")
    if mode == 3:
        a(f"buffer_load_dwordx4 v[60:63], v3, {WS}, s62 offen sc1")
        a(f"buffer_load_dwordx4 v[64:67], v3, {WS}, s62 offen offset:1024 sc1")
    else: a(f"buffer_load_dwordx2 v[60:61], v12, {WS}, s62 offen sc1")
    a("s_add_u32 s63, s63, 1")
    a("s_cmp_gt_u32 s63, 0x40000")
    a(f"s_cbranch_scc1 POLLX{u}")
    a("s_waitcnt vmcnt(0)")
    a("v_cmp_ne_u64 vcc, s[60:61], v[60:61]")
    if mode == 3:
        for r in (62, 64, 66):
            a(f"v_cmp_ne_u64 s[70:71], s[60:61], v[{r}:{r+1}]")
            a("s_or_b64 vcc, s[70:71], vcc")
        a(f"s_cbranch_scc0 POLLX{u}")
    else: a(f"s_cbranch_vccz POLLX{u}")
    a(f"s_sleep {sleep}")
    a(f"s_branch POLL{u}")
    a.label(f"POLLX{u}")
    a.nopad -= 1
    a("s_mov_b64 exec, -1")
def publish(a, stage, grp_sreg, slot_sreg):
    a(f"s_lshl_b32 s62, s{slot_sreg}, {3 if grp_sreg is None else 6}")
    if grp_sreg is not None:
        a(f"s_lshl_b32 s63, s{grp_sreg}, 11")
        a("s_add_u32 s62, s62, s63")
    a(f"s_add_u32 s62, s62, {WS_FL + stage*16384}")
    a("s_mov_b64 exec, 1")
    a(f"buffer_store_dwordx2 v[14:15], v13, {WS}, s62 offen sc1")
    a("s_mov_b64 exec, -1")
def nonce_lds(a, sgpr=True):
    u = uid()
    a.nopad += 1
    a.label(f"NL{u}")
    a(f"ds_read_b64 v[14:15], v1 offset:{F_NONCE}")
    a("s_waitcnt lgkmcnt(0)")
    a("v_cmp_eq_u32 vcc, 0, v14")
    a(f"s_cbranch_vccnz NL{u}")
    a.nopad -= 1
    if sgpr:
        a("v_readfirstlane_b32 s60, v14")
        a("v_readfirstlane_b32 s61, v15")
def lwait(a, vaddr, off, n, vt, pre=False, sleep=None):
    u = uid()
    a.nopad += 1
    if pre:
        a(f"v_cmp_gt_u32 vcc, {n}, v{vt}")
        a(f"s_cbranch_vccz LWX{u}")
    a.label(f"LW{u}")
    if sleep is None and pre and vt == 55: sleep = E("CSL", 0)
    if sleep: a(f"s_sleep {sleep*E('SLM',1)}")
    a(f"ds_read_b32 v{vt}, v{vaddr} offset:{off}")
    a("s_waitcnt lgkmcnt(0)")
    a(f"v_cmp_gt_u32 vcc, {n}, v{vt}")
    a(f"s_cbranch_vccnz LW{u}")
    a.label(f"LWX{u}")
    a.nopad -= 1
def lwait2(a, n):
    u = uid()
    a.nopad += 1
    a("v_min_u32 v55, v52, v53")
    a(f"v_cmp_gt_u32 vcc, {n}, v55")
    a(f"s_cbranch_vccz LWX{u}")
    a.label(f"LW{u}")
    a(f"ds_read_b64 v[52:53], v1 offset:{F_X}")
    a("s_waitcnt lgkmcnt(0)")
    a("v_min_u32 v55, v52, v53")
    a(f"v_cmp_gt_u32 vcc, {n}, v55")
    a(f"s_cbranch_vccnz LW{u}")
    a.label(f"LWX{u}")
    a.nopad -= 1
def ladd(a, vaddr, off, vone):
    a("s_mov_b64 exec, 1")
    a(f"ds_add_u32 v{vaddr}, v{vone} offset:{off}")
    a("s_mov_b64 exec, -1")
def barriers(a, n):
    for _ in range(n): a("s_barrier")

VX = 16; VW = 20; VQ = 24

def gen_entry(a):
    a.nopad += 1
    a.raw(f".globl {KN}")
    a.raw(".p2align 10")
    a.raw(f".type {KN},@function")
    a.label(KN)
    a("s_cmp_ge_u32 s2, 256")
    a("s_cbranch_scc1 END")
    stamp_begin(a)
    a("s_load_dwordx16 s[4:19], s[0:1], 0")
    a("s_load_dwordx8 s[20:27], s[0:1], 64")
    a("""
    v_lshrrev_b32 v1, 6, v0
    v_and_b32 v2, 63, v0
    v_readfirstlane_b32 s3, v1
    v_lshlrev_b32 v3, 4, v2
    s_and_b32 s48, s2, 7
    s_lshr_b32 s49, s2, 3
    s_and_b32 s50, s49, 3
    s_lshr_b32 s51, s49, 2
    s_and_b32 s52, s48, 4
    s_add_u32 s52, s52, s50
    s_and_b32 s53, s48, 3
    s_lshl_b32 s53, s53, 3
    s_add_u32 s53, s53, s51
    s_lshl_b32 s54, s48, 2
    s_add_u32 s54, s54, s50
    s_lshl_b32 s55, s50, 1
    s_add_u32 s55, s55, s51
    s_and_b32 s55, s55, 7
    s_lshl_b32 s66, s48, 5
    s_add_u32 s66, s66, s49
    """)
    a(f"v_mov_b32 v1, {L_MISC}")
    a("v_mov_b32 v54, 1")
    a("v_mov_b32 v13, 0")
    a("s_cmp_lt_u32 s3, 8")
    a("s_cbranch_scc1 CPATH")
    a("s_setprio 3")
    a("""
    v_lshrrev_b32 v4, 3, v2
    v_lshrrev_b32 v5, 4, v2
    v_and_b32 v6, 7, v2
    v_lshlrev_b32 v12, 6, v2
    s_cmp_eq_u32 s3, 8
    s_cbranch_scc1 XL0
    s_cmp_lg_u32 s3, 9
    s_cbranch_scc1 HPATH
    s_getpc_b64 s[56:57]
    s_lshl_b32 s58, s50, 13
    v_lshlrev_b32 v7, 7, v2
    v_add_u32 v7, s58, v7
    """)
    a(f"v_min_u32 v7, END - {KN} - 256, v7")
    a("global_load_dword v31, v7, s[56:57]")
    a("s_branch LQPAD")

def gen_loader1(a):
    a.label("XL0")
    a(f"s_setprio {E('LPRIO', 2)}")
    a("""
    v_lshlrev_b32 v10, 4, v6
    v_lshl_add_u32 v10, v4, 10, v10
    s_lshl_b32 s63, s49, 16
    s_lshl_b32 s64, s48, 7
    s_add_u32 s63, s63, s64
    v_add_u32 v28, s63, v10
    v_subrev_u32 v10, 8192, v28
    """)
    for i in range(1, 4): a(f"v_add_u32 v{28+i}, {8192-1024}, v{28+i-1}")
    a("v_xor_b32 v7, v6, v5")
    a("v_lshlrev_b32 v7, 4, v7")
    a(f"v_lshl_add_u32 v{VX}, v4, 10, v7")
    a(f"v_xor_b32 v{VX+1}, 64, v{VX}")
    a(f"v_add_u32 v{VX+1}, {8192-1024}, v{VX+1}")
    a(f"v_add_u32 v{VX+2}, {2*(8192-1024)}, v{VX}")
    a(f"v_add_u32 v{VX+3}, {2*(8192-1024)}, v{VX+1}")
    a("""
    v_bfe_u32 v7, v2, 2, 2
    v_xor_b32 v7, v7, v5
    v_mul_u32_u24 v8, 3072, v5
    v_lshrrev_b32 v9, 1, v7
    v_lshl_add_u32 v8, v9, 10, v8
    v_and_b32 v9, 1, v7
    v_lshl_add_u32 v8, v9, 6, v8
    v_and_b32 v9, 3, v2
    """)
    a(f"v_lshl_add_u32 v{VW}, v9, 4, v8")
    for i in range(1, 4): a(f"v_add_u32 v{VW+i}, {4*3072 - 1024}, v{VW+i-1}")
    a("""
    s_lshl_b32 s62, s48, 9
    s_lshl_b32 s57, s53, 16
    s_lshl_b32 s58, s52, 7
    s_mov_b32 s59, s55
    s_mov_b32 s56, 0
    s_mov_b32 s63, 32768
    """)
    a(f"s_mov_b32 m0, {L_A1}")
    a("s_waitcnt lgkmcnt(0)")
    stamp(a, 0)
    srd(a, 40, P_K, 2048*512*2)
    a("buffer_load_dwordx4 v10, s[40:43], 0 offen lds")
    for n, base in enumerate((1024, 9216)):
        if n:
            a(f"s_mov_b32 s40, s{P_V}")
            a(f"s_and_b32 s41, s{P_V+1}, 0xffff")
        for g in range(2):
            a(f"s_mov_b32 m0, {L_A1 + base + 4096*g}")
            a("s_nop 0")
            for i in range(4): a(f"buffer_load_dwordx4 v{28+i}, s[40:43], {'s63' if g else '0'} offen offset:{1024*i} lds")
    a(f"s_mov_b32 s40, s{P_SHK}")
    a(f"s_and_b32 s41, s{P_SHK+1}, 0xffff")
    a("s_movk_i32 s42, 4096")
    a(f"s_mov_b32 m0, {L_A1 + 17408}")
    a("s_mov_b32 exec_hi, 0")
    a("buffer_load_dwordx4 v3, s[40:43], s62 offen lds")
    a("s_mov_b64 exec, -1")
    srd(a, 32, P_X, 2048*512*2)
    srd(a, 36, P_WQKV, 512*1536*2)
    a("s_branch XLB")
    a.label("XL")
    a("s_cmp_eq_u32 s56, 2")
    a("s_cbranch_scc1 XLB")
    a("s_cmp_eq_u32 s56, 1")
    a("s_cbranch_scc0 XLC")
    a("s_waitcnt vmcnt(24)")
    if GB:
        a("s_barrier")
        a("s_barrier")
        a(f"s_sleep {E('GBS', 2)}")
        a("s_branch XLB")
    a.label("XLC")
    a("s_waitcnt vmcnt(48)")
    a("s_barrier")
    a.label("XLB")
    a("s_lshl_b32 s67, s56, 13")
    a("s_mov_b32 m0, s67")
    a("s_lshl_b32 s64, s59, 7")
    a("s_add_u32 s64, s64, s57")
    for i in range(4): a(f"buffer_load_dwordx4 v{VX+i}, s[32:35], s64 offen offset:{1024*i} lds")
    a("s_add_u32 m0, s67, 4096")
    a("s_add_u32 s64, s64, 32768")
    for i in range(4): a(f"buffer_load_dwordx4 v{VX+i}, s[32:35], s64 offen offset:{1024*i} lds")
    a("s_and_b32 s67, s56, 3")
    a("s_lshl_b32 s67, s67, 14")
    a(f"s_add_u32 m0, s67, {L_RING}")
    a(f"s_mul_i32 s65, s59, {64*3072}")
    a("s_add_u32 s65, s65, s58")
    a("s_add_u32 s65, s65, 1024")
    for G in range(4):
        if G:
            a("s_add_u32 m0, m0, 4096")
            a(f"s_add_u32 s65, s65, {16*3072}")
        for i in range(4): a(f"buffer_load_dwordx4 v{VW+i}, s[36:39], s65 offen offset:{1024*i} lds")
    a("s_cmp_eq_u32 s56, 3")
    a("s_addc_u32 s59, s59, 2")
    a("s_and_b32 s59, s59, 7")
    a("s_add_u32 s56, s56, 1")
    a("s_cmp_lt_u32 s56, 8")
    a("s_cbranch_scc1 XL")
    a("s_branch LQ2")
    a.nopad -= 1
    a.label("LQ")
    a.label("LQPAD")
    a("s_branch HPATH")
    a.label("LQ2")
    a("""
    v_bfe_u32 v10, v2, 4, 1
    v_lshlrev_b32 v10, 2, v10
    v_xor_b32 v10, v10, v6
    v_lshlrev_b32 v10, 4, v10
    v_mul_u32_u24 v8, 3072, v4
    """)
    a(f"v_add_u32 v{VQ}, v8, v10")
    for i in range(1, 4): a(f"v_add_u32 v{VQ+i}, {8*3072 - 1024}, v{VQ+i-1}")
    def sig(n, vm):
        a(f"v_mov_b32 v9, {n}")
        a(f"s_waitcnt vmcnt({vm})")
        a(f"ds_write_b32 v1, v9 offset:{F_W}")
    a("s_mov_b32 s56, 0")
    a("s_mov_b32 s59, s55")
    a(f"s_mov_b32 s67, {L_RING}")
    a.nopad += 1
    a.label("LQL")
    a("s_cmp_eq_u32 s56, 0")
    a("s_cbranch_scc1 LQW")
    a("s_cmp_eq_u32 s56, 1")
    a("s_cbranch_scc1 LQV")
    a("s_waitcnt vmcnt(32)")
    a.label("LQV")
    a("s_waitcnt vmcnt(40)")
    a.label("LQW")
    a("s_waitcnt vmcnt(48)")
    a("s_barrier")
    for hf in range(2):
        a("s_and_b32 s59, s59, 7")
        a(f"s_mul_i32 s65, s59, {64*3072}")
        a("s_add_u32 s65, s65, s58")
        for g in range(2):
            a(f"s_add_u32 m0, s67, {hf*8192 + g*4096}")
            a(f"s_add_u32 s65, s65, {32*3072*g}")
            for i in range(4):
                a(f"buffer_load_dwordx4 v{VQ+i}, s[36:39], s65 offen offset:{1024*i} lds")
        if hf == 0: a("s_add_u32 s59, s59, 2")
    a("s_cmp_eq_u32 s56, 1")
    a("s_addc_u32 s59, s59, 2")
    a("s_add_u32 s67, s67, 16384")
    a("s_add_u32 s56, s56, 1")
    a("s_cmp_lt_u32 s56, 4")
    a("s_cbranch_scc1 LQL")
    a.nopad -= 1
    a("s_mov_b64 exec, 1")
    a(f"ds_write_b32 v1, v54 offset:{F_QX}")
    sig(1, 32); sig(2, 16); sig(3, 0)
    a("s_mov_b64 exec, -1")
    stamp(a, 5)
    a("s_setprio 3")
    srd(a, 28, P_WS, WS_SIZE)
    nonce_lds(a)
    lwait(a, 1, F_ST, 8, 61, sleep=1)
    a.label("L0B")
    stamp(a, 7)
    a(f"s_sleep {E('P1S', 8)}")
    poll(a, 1, 48)
    stamp(a, 8)
    a("s_lshl_b32 s64, s54, 6")
    a("s_lshl_b32 s65, s51, 3")
    a("s_add_u32 s64, s64, s65")
    a("s_lshl_b32 s64, s64, 10")
    a(f"s_add_u32 s64, s64, {WS_QF}")
    a("s_lshl_b32 s65, s54, 17")
    a(f"s_add_u32 s65, s65, {WS_KV}")
    def linloop(ldsb, sreg, n4, lab):
        a(f"s_mov_b32 m0, {ldsb}")
        a("s_nop 0")
        a.nopad += 1
        a.label(lab)
        for i in range(4):
            a(f"buffer_load_dwordx4 v3, {WS}, s{sreg} offen offset:{1024*i} sc1 lds")
        a("s_add_u32 m0, m0, 4096")
        a(f"s_add_u32 s{sreg}, s{sreg}, 4096")
        a(f"s_cmp_lt_u32 m0, {ldsb + 4096*n4}")
        a(f"s_cbranch_scc1 {lab}")
        a.nopad -= 1
    linloop(L_Q, 64, 2, "KVL0")
    linloop(0, 65, 9, "KVL1")
    a("s_waitcnt vmcnt(24)")
    a("s_barrier")
    stamp(a, 9)
    linloop(36864, 65, 5, "KVL2")
    a("s_waitcnt vmcnt(20)")
    a(f"ds_write_b32 v1, v54 offset:{F_K1}")
    lwait(a, 1, F_QRD, 8, 61)
    linloop(57344, 65, 18, "KVL3")
    a("s_waitcnt vmcnt(0)")
    ladd(a, 1, F_K2, 54)
    stamp(a, 10)
    a("s_lshl_b32 s64, s48, 3")
    a("s_add_u32 s64, s64, s51")
    a("s_lshl_b32 s64, s64, 15")
    a(f"s_add_u32 s64, s64, {WS_OF}")
    a("s_lshl_b32 s62, s48, 3")
    a("s_add_u32 s62, s62, s51")
    a("s_lshl_b32 s62, s62, 11")
    a(f"s_add_u32 s62, s62, {WS_FL + 3*16384}")
    a("s_mov_b32 s56, 0x11111111")
    a("s_mov_b32 s57, 0")
    a("s_mov_b32 s63, 0")
    a(f"v_add_u32 v8, {F_GQ}, v1")
    a("s_barrier")
    stamp(a, 11)
    a.nopad += 1
    a.label("TP")
    a("s_mov_b32 exec_hi, 0")
    a(f"buffer_load_dwordx2 v[60:61], v12, {WS}, s62 offen sc1")
    a("s_waitcnt vmcnt(1)")
    a.label("TPA")
    a("s_cmp_eq_u32 s57, 0")
    a("s_cbranch_scc1 TPB")
    a("s_ff1_i32_b32 s58, s57")
    a("s_bitset0_b32 s57, s58")
    a("s_add_u32 s58, s58, 4")
    a("v_mov_b32 v9, s58")
    a("ds_write_b32 v8, v9")
    a("v_add_u32 v8, 4, v8")
    a("s_branch TPA")
    a.label("TPB")
    a("s_cmp_eq_u32 s56, 0")
    a("s_cbranch_scc1 TPX")
    a("s_waitcnt vmcnt(0)")
    a("v_cmp_eq_u64 vcc, s[60:61], v[60:61]")
    a("s_mov_b64 exec, -1")
    a("s_add_u32 s63, s63, 1")
    a("s_cmp_gt_u32 s63, 0x40000")
    a("s_cselect_b32 s58, -1, vcc_lo")
    a("s_lshr_b32 s59, s58, 1")
    a("s_and_b32 s58, s58, s59")
    a("s_lshr_b32 s59, s58, 2")
    a("s_and_b32 s58, s58, s59")
    a("s_and_b32 s57, s58, s56")
    a("s_andn2_b32 s56, s56, s57")
    a("s_mov_b32 s59, s57")
    a.label("TPC")
    a("s_cmp_eq_u32 s59, 0")
    a("s_cbranch_scc1 TP")
    a("s_ff1_i32_b32 s58, s59")
    a("s_bitset0_b32 s59, s58")
    a("s_lshl_b32 s58, s58, 10")
    a(f"s_add_u32 m0, s58, {L_O}")
    a("s_add_u32 s65, s64, s58")
    for i in range(4):
        a(f"buffer_load_dwordx4 v3, {WS}, s65 offen offset:{1024*i} sc1 lds")
    a("s_branch TPC")
    a.label("TPX")
    a.nopad -= 1
    a("s_mov_b64 exec, -1")
    stamp(a, 13)
    a("s_cmp_lg_u32 s2, 0")
    a("s_cbranch_scc1 HEND")
    srd(a, 44, P_DBG, 256)
    a("v_mov_b32 v14, 0")
    a("v_mov_b32 v15, 0")
    a("s_mov_b64 exec, 1")
    a("buffer_store_dwordx2 v[14:15], v13, s[44:47], 0 offen sc1")
    a("s_mov_b64 exec, -1")
    endpgm(a)

    a.label("HPATH")
    a("s_memrealtime s[60:61]")
    a.label("HP3")
    a("s_waitcnt lgkmcnt(0)")
    stamp(a, 0)
    srd(a, 28, P_WS, WS_SIZE)
    srd(a, 40, P_SSMK, 512*2048*2)
    a("s_xor_b32 s56, s3, 11")
    a("s_or_b32 s56, s56, s2")
    a("s_cmp_lg_u32 s56, 0")
    a("s_cbranch_scc1 HP4")
    srd(a, 44, P_DBG, 256)
    a("s_or_b32 s60, s60, 1")
    a("v_mov_b32 v14, s60")
    a("v_mov_b32 v15, s61")
    a("s_mov_b64 exec, 1")
    a("buffer_store_dwordx2 v[14:15], v13, s[44:47], 0 offen sc1")
    a("s_mov_b64 exec, -1")
    a.label("HP4")
    a("s_cmp_eq_u32 s3, 10")
    a("s_cbranch_scc1 H10")
    a("s_cmp_eq_u32 s3, 11")
    a("s_cbranch_scc1 H11")
    a("v_lshl_add_u32 v8, v2, 2, v1")
    a("ds_write_b32 v8, v13")
    srd(a, 44, P_DBG, 256)
    a("s_waitcnt lgkmcnt(0)")
    barriers(a, 1 + NON_AT)
    NB = GB
    a("buffer_load_dwordx2 v[14:15], v13, s[44:47], 0 offen sc1")
    barriers(a, 2)
    a("s_waitcnt vmcnt(0)")
    a("v_cmp_ne_u32 vcc, 0, v14")
    a("s_cbranch_vccnz NOK1")
    a("buffer_load_dwordx2 v[14:15], v13, s[44:47], 0 offen sc1")
    a.label("NOK1")
    barriers(a, F0_AT - 1)
    a("s_mov_b32 s63, 0")
    a.nopad += 1
    a.label("LD2P")
    a("s_waitcnt vmcnt(0)")
    a("v_cmp_ne_u32 vcc, 0, v14")
    a("s_cbranch_vccnz LD2Q")
    a("s_add_u32 s63, s63, 1")
    a("v_mov_b32 v14, 1")
    a("s_cmp_gt_u32 s63, 0x40000")
    a("s_cbranch_scc1 LD2Q")
    a("buffer_load_dwordx2 v[14:15], v13, s[44:47], 0 offen sc1")
    a("s_branch LD2P")
    a.label("LD2Q")
    a.nopad -= 1
    publish(a, 0, 48, 49)
    a(f"ds_write_b64 v1, v[14:15] offset:{F_NONCE}")
    a("s_waitcnt lgkmcnt(0)")
    stamp(a, 1)
    a("v_readfirstlane_b32 s60, v14")
    a("v_readfirstlane_b32 s61, v15")
    a("s_lshl_b32 s56, s50, 1")
    barriers(a, 8 - F0_AT)
    if WFM == 0:
        lwait(a, 1, F_QX, 1, 61)
        poll(a, 0, 56, mode=1, sleep=2)
        ladd(a, 1, F_CONV, 54)
    stamp(a, 2)
    lwait(a, 1, F_ST, 8, 61, sleep=1)
    publish(a, 1, 52, 53)
    a("s_barrier")
    lwait(a, 1, F_K1, 1, 61, sleep=4)
    poll(a, 0, 56, mode=1, sleep=2)
    ladd(a, 1, F_K2, 54)
    endpgm(a)
    a.label("H11")
    srd(a, 40, P_WO, 512*512*2)
    a("""
    v_lshlrev_b32 v16, 10, v4
    v_lshl_add_u32 v16, v6, 4, v16
    s_lshl_b32 s56, s49, 14
    s_lshl_b32 s57, s48, 7
    s_add_u32 s56, s56, s57
    s_add_u32 s57, s56, 7168
    v_lshrrev_b32 v17, 5, v2
    v_bfe_u32 v18, v2, 2, 2
    v_lshl_add_u32 v17, v17, 2, v18
    v_lshlrev_b32 v17, 7, v17
    v_bfe_u32 v18, v2, 4, 1
    v_lshl_add_u32 v17, v18, 5, v17
    v_and_b32 v18, 3, v2
    v_lshl_add_u32 v17, v18, 3, v17
    s_lshl_b32 s58, s48, 16
    s_lshr_b32 s59, s49, 1
    s_lshl_b32 s59, s59, 10
    s_add_u32 s58, s58, s59
    s_and_b32 s59, s49, 1
    s_lshl_b32 s59, s59, 9
    s_add_u32 s58, s58, s59
    v_and_b32 v19, 15, v2
    v_lshlrev_b32 v19, 4, v19
    v_lshrrev_b32 v18, 5, v2
    v_lshl_add_u32 v19, v18, 8, v19
    v_bfe_u32 v18, v2, 4, 1
    v_lshl_add_u32 v19, v18, 14, v19
    """)
    a(f"v_add_u32 v17, {L_WT}, v17")
    a(f"s_add_u32 s58, s58, {WS_WOF}")
    a("s_add_u32 s59, s58, 32768")
    a(f"s_mov_b32 m0, {L_WT}")
    a("s_nop 0")
    a("buffer_load_dwordx4 v16, s[40:43], s56 offen lds")
    a("buffer_load_dwordx4 v16, s[40:43], s57 offen offset:1024 lds")
    barriers(a, 2 if WOE else 2 + GB)
    a("s_waitcnt vmcnt(0)")
    a("ds_read_b64_tr_b16 v[20:21], v17")
    a("ds_read_b64_tr_b16 v[22:23], v17 offset:1024")
    a("ds_read_b64_tr_b16 v[24:25], v17 offset:64")
    a("ds_read_b64_tr_b16 v[26:27], v17 offset:1088")
    a("s_waitcnt lgkmcnt(0)")
    a(f"buffer_store_dwordx4 v[20:23], v19, {WS}, s58 offen sc1")
    a(f"buffer_store_dwordx4 v[24:27], v19, {WS}, s59 offen sc1")
    if WOE and GB: a("s_barrier")
    srd(a, 40, P_SSMK, 512*2048*2)
    a("s_lshl_b32 s64, s66, 13")
    a("v_and_b32 v8, 1, v2")
    a("v_mul_u32_u24 v8, 8324, v8")
    a(f"v_add_u32 v8, {L_HE[0]}, v8")
    for n in range(1, 9):
        if n == F0_AT: a("s_waitcnt vmcnt(0)")
        a("s_barrier")
        if n == HAT:
            for q in range(2):
                a(f"s_mov_b32 m0, {L_HE[q]}")
                a(f"s_add_u32 s65, s64, {4096*q}")
                for i in range(4):
                    a(f"buffer_load_dwordx4 v3, s[40:43], s65 offen offset:{1024*i} lds")
    lwait(a, 1, F_QX, 1, 62)
    if E("ODS", 0): a(f"s_sleep {E('ODS', 0)}")
    for q in (1, 0):
        a(f"s_mov_b32 m0, {L_HO[q]}")
        a(f"s_add_u32 s65, s64, {4096*q + 2}")
        for i in range(4):
            a(f"buffer_load_dwordx4 v3, s[40:43], s65 offen offset:{1024*i} lds")
    a("s_waitcnt vmcnt(8)")
    a("ds_read_b32 v9, v8")
    a("s_waitcnt lgkmcnt(0)")
    a("v_lshlrev_b32 v9, 16, v9")
    a("s_mov_b64 exec, 3")
    a(f"ds_write_b32 v8, v9 offset:{L_HO[0] - L_HE[0] - 4}")
    a("s_mov_b64 exec, -1")
    a("s_waitcnt vmcnt(4) lgkmcnt(0)")
    ladd(a, 1, F_CONV + 4, 54)
    a("s_waitcnt vmcnt(0)")
    ladd(a, 1, F_CONV, 54)
    stamp(a, 1)
    endpgm(a)

    a.label("H10")
    for i in range(4): a(f"v_mov_b32 v{32+i}, 0")
    a("s_lshl_b32 s64, s66, 13")
    def hdma():
        for q in range(2):
            a(f"s_mov_b32 m0, {L_HE[q]}")
            a(f"s_add_u32 s65, s64, {4096*q}")
            for i in range(4):
                a(f"buffer_load_dwordx4 v3, s[40:43], s65 offen offset:{1024*i} lds")
    barriers(a, 3 + GB)
    for q in range(2):
        a(f"v_add_u32 v8, {L_XR[q]}, v3")
        a("ds_write_b128 v8, v[32:35] offset:4096")
    a("v_lshlrev_b32 v8, 2, v2")
    a(f"v_add_u32 v8, {L_HE[0] - 64}, v8")
    a("s_mov_b64 exec, 0xffff")
    a("ds_write_b32 v8, v32")
    a(f"ds_write_b32 v8, v32 offset:{L_HO[0] - L_HE[0] - 4}")
    a(f"ds_write_b32 v8, v32 offset:{L_HE[1] - L_HE[0]}")
    a(f"ds_write_b32 v8, v32 offset:{L_HO[1] - L_HE[0] - 4}")
    a("s_mov_b64 exec, -1")
    a("s_lshl_b32 s62, s48, 11")
    a(f"s_add_u32 s62, s62, {WS_FL}")
    for n in range(2, 9):
        a("s_barrier")
        if n == F0_AT + 1: nonce_lds(a)
        if n == XRP:
            a("s_mov_b32 exec_hi, 0")
            a(f"buffer_load_dwordx2 v[60:61], v12, {WS}, s62 offen sc1")
            a("s_mov_b64 exec, -1")
    lwait(a, 1, F_QX, 1, 62)
    a("s_waitcnt vmcnt(0)")
    a("s_mov_b32 exec_hi, 0")
    a("v_cmp_ne_u64 vcc, s[60:61], v[60:61]")
    a("s_mov_b64 exec, -1")
    a("s_cbranch_vccz F0OK")
    stamp(a, 6)
    poll(a, 0, 48, sleep=E('F0_PS', 2))
    a.label("F0OK")
    stamp(a, 1)
    a(f"s_add_u32 s64, s64, {WS_XR}")
    for q in (1, 0):
        a(f"s_mov_b32 m0, {L_XR[q]}")
        a(f"s_add_u32 s65, s64, {4096*q}")
        for i in range(4):
            a(f"buffer_load_dwordx4 v3, {WS}, s65 offen offset:{1024*i} sc1 lds")
    a("s_waitcnt vmcnt(4)")
    ladd(a, 1, F_CONV + 4, 54)
    a("s_waitcnt vmcnt(0)")
    ladd(a, 1, F_CONV, 54)
    stamp(a, 2)
    a("s_lshl_b32 s64, s48, 18")
    a("s_lshl_b32 s65, s49, 7")
    a("s_add_u32 s64, s64, s65")
    a(f"s_add_u32 s64, s64, {WS_ZT}")
    for i in range(8):
        a(f"v_xor_b32 v8, {i}, v6")
        a("v_lshlrev_b32 v8, 4, v8")
        a(f"v_lshl_add_u32 v{16+i}, v4, 12, v8")
    a("s_barrier")
    a("s_sleep 70")
    lwait(a, 1, F_ZD, 8, 61, sleep=16)
    publish(a, 2, 48, 49)
    a("s_sleep 100")
    poll(a, 2, 48, sleep=16)
    for i in range(8):
        a(f"s_mov_b32 m0, {L_Z + 1024*i}")
        a("s_nop 0")
        a(f"buffer_load_dwordx4 v{16+i}, {WS}, s64 offen sc1 lds")
        a("s_add_u32 s64, s64, 32768")
    a("s_waitcnt vmcnt(0)")
    stamp(a, 4)
    a.label("HEND")
    endpgm(a)

def gen_compute(a):
    a.label("CPATH")
    a.label("C_NN")
    a("""
    v_and_b32 v4, 31, v2
    v_lshrrev_b32 v5, 5, v2
    v_bfe_u32 v63, v2, 1, 3
    v_xor_b32 v63, v63, v5
    s_and_b32 s56, s3, 1
    s_lshl_b32 s56, s56, 12
    v_lshlrev_b32 v61, 7, v4
    v_add_u32 v61, s56, v61
    """)
    for st in range(4):
        a(f"v_xor_b32 v60, {2*st}, v63")
        a(f"v_lshl_add_u32 v{56+st}, v60, 4, v61")
    a("""
    v_bfe_u32 v61, v2, 2, 2
    v_lshl_add_u32 v62, v5, 3, v61
    v_lshlrev_b32 v60, 8, v62
    v_bfe_u32 v63, v2, 4, 1
    v_lshl_add_u32 v60, v63, 5, v60
    v_and_b32 v63, 3, v2
    v_lshl_add_u32 v60, v63, 3, v60
    s_lshr_b32 s56, s3, 1
    v_xor_b32 v63, s56, v61
    v_lshl_add_u32 v60, v63, 6, v60
    """)
    a(f"v_add_u32 v60, {L_RING}, v60")
    for i in range(32): a(f"v_mov_b32 v{64+i}, 0")
    a("""
    s_lshl_b32 s56, s52, 2
    s_and_b32 s57, s3, 2
    s_add_u32 s56, s56, s57
    s_lshl_b32 s56, s56, 6
    s_lshl_b32 s57, s53, 1
    s_add_u32 s56, s56, s57
    s_and_b32 s57, s3, 1
    s_add_u32 s64, s56, s57
    s_lshl_b32 s56, s64, 11
    s_mov_b32 s59, 0xffff0000
    """)
    a("s_waitcnt lgkmcnt(0)")
    stamp(a, 0)
    a("v_lshlrev_b32 v11, 4, v4")
    a(f"v_add_u32 v11, {L_A1 + 17408}, v11")
    srd(a, 28, P_WS, WS_SIZE)
    srd(a, 32, P_Q, 2048*512*2)
    srd(a, 36, P_OUT, 2048*1024*2)
    a(f"s_lshl_b32 s67, s66, 2")
    a(f"s_load_dword s68, s[{P_SSMD}:{P_SSMD+1}], s67")
    a("""
    s_lshl_b32 s57, s3, 10
    v_lshlrev_b32 v10, 9, v5
    v_lshl_add_u32 v10, v4, 2, v10
    v_add_u32 v10, s57, v10
    v_add_u32 v0, s57, v3
    s_sub_u32 s57, 7, s3
    v_and_b32 v12, 7, v4
    v_xor_b32 v12, s57, v12
    v_lshlrev_b32 v12, 4, v12
    v_lshl_add_u32 v12, v4, 8, v12
    v_lshlrev_b32 v9, 3, v5
    v_sub_u32 v12, v12, v9
    s_lshl_b32 s57, s3, 2
    v_lshrrev_b32 v8, 4, v2
    v_add_u32 v8, s57, v8
    v_xor_b32 v8, v8, v2
    v_and_b32 v8, 7, v8
    v_lshlrev_b32 v8, 4, v8
    v_lshrrev_b32 v9, 3, v2
    v_lshl_add_u32 v8, v9, 12, v8
    s_lshl_b32 s65, s48, 18
    s_lshl_b32 s57, s3, 15
    s_add_u32 s65, s65, s57
    s_sub_u32 s57, 31, s49
    s_lshl_b32 s57, s57, 7
    s_add_u32 s65, s65, s57
    v_mov_b32 v54, 1
    """)
    a(f"v_add_u32 v10, {L_A1}, v10")
    a(f"v_add_u32 v12, {L_A1S + 8}, v12")
    a(f"v_add_u32 v0, {L_A1S}, v0")
    a(f"s_add_u32 s65, s65, {WS_XR}")
    a("""
    v_and_b32 v7, 0x33, v2
    v_bfe_u32 v6, v2, 2, 1
    v_lshl_or_b32 v7, v6, 3, v7
    v_bfe_u32 v6, v2, 3, 1
    v_lshl_or_b32 v7, v6, 2, v7
    v_lshlrev_b32 v7, 4, v7
    v_lshlrev_b32 v61, 7, v62
    v_bfe_u32 v63, v2, 4, 1
    v_lshl_add_u32 v61, v63, 5, v61
    v_lshlrev_b32 v9, 17, v63
    v_and_b32 v63, 3, v2
    v_lshl_add_u32 v61, v63, 3, v61
    v_bfe_u32 v63, v2, 3, 1
    s_lshr_b32 s58, s3, 1
    v_xor_b32 v63, s58, v63
    v_lshl_add_u32 v61, v63, 6, v61
    v_lshl_add_u32 v9, v5, 8, v9
    v_and_b32 v6, 15, v2
    v_lshl_add_u32 v9, v6, 4, v9
    """)
    a(f"v_add_u32 v61, {L_RING}, v61")
    a(f"s_add_u32 s56, s56, {WS_KV}")
    a("s_add_u32 s57, s56, 131072")
    a("s_barrier")
    a("ds_read_b128 v[140:143], v11")
    stamp(a, 1)
    dstamp(a, 13)
    KR = 128; VR = 135; SK = 140; KF = 144; TAP = 152; KVv = 156; KS = 160; OUT = 164
    for r in range(7): a(f"ds_read_b32 v{KR+r}, v10 offset:{(5+r)*128}")
    for r in range(4): a(f"ds_read_b32 v{VR+r}, v10 offset:{9216 + r*128}")
    a("s_waitcnt lgkmcnt(0)")
    estamp(a, 5)
    for c in range(2):
        def unpack(dst, src, hi):
            if hi: a(f"v_and_b32 v{dst}, s59, v{src}")
            else:  a(f"v_lshlrev_b32 v{dst}, 16, v{src}")
        for r in range(7): unpack(KF + r, KR + r, c)
        for j in range(4): unpack(TAP + j, SK + 2*c + (j >> 1), j & 1)
        for r in range(4): unpack(KVv + r, VR + r, c)
        for r in range(4): a(f"v_mul_f32 v{KS+r}, v{KF+r}, v{TAP+3}")
        for r in range(4): a(f"v_fmac_f32 v{KS+r}, v{KF+r+1}, v{TAP+2}")
        for r in range(4): a(f"v_fmac_f32 v{KS+r}, v{KF+r+2}, v{TAP+1}")
        for r in range(4): a(f"v_fmac_f32 v{KS+r}, v{KF+r+3}, v{TAP+0}")
        for r in range(4): a(f"v_mul_f32 v{KVv+r}, v{KVv+r}, v{KS+r}")
        o = OUT + 2*c
        a(f"v_cvt_pk_bf16_f32 v{o}, v{KVv+3}, v{KVv+2}")
        a(f"v_cvt_pk_bf16_f32 v{o+1}, v{KVv+1}, v{KVv}")
        a(f"ds_write_b64 v12, {vr(o,2)} offset:{128*c}")
        estamp(a, 6 + c)
    a("s_waitcnt lgkmcnt(0)")
    if GB:
        a("s_barrier")
        a("ds_read_b128 v[48:51], v0")
        a("s_waitcnt lgkmcnt(0)")
        a(f"buffer_store_dwordx4 v[48:51], v8, {WS}, s65 offen sc1")
    a("s_cmp_ge_u32 s3, 4")
    a("s_cbranch_scc1 VPATH")
    FS = [16, 96]
    def p1_reads(c):
        xo = c*8192; wo = (c & 3)*16384
        for st in range(4):
            b = FS[c & 1] + 8*st
            a(f"ds_read_b128 {vr(b,4)}, v{56+st} offset:{xo}")
            a(f"ds_read_b64_tr_b16 {vr(b+4,2)}, v60 offset:{wo + 16*st*256}")
            a(f"ds_read_b64_tr_b16 {vr(b+6,2)}, v60 offset:{wo + (16*st+4)*256}")
    def p1_mfma(c, isv):
        for st in range(4):
            b = FS[c & 1] + 8*st
            x = vr(b,4); w = vr(b+4,4)
            if isv: a(f"v_mfma_f32_32x32x16_bf16 v[64:79], {x}, {w}, v[64:79]")
            else:   a(f"v_mfma_f32_32x32x16_bf16 v[64:79], {w}, {x}, v[64:79]")
    def pass1(isv):
        for c in range(8):
            if c == F0_AT: a("s_waitcnt vmcnt(0)")
            a("s_barrier")
            dstamp(a, 1 + c)
            if c in (0, 4): stamp(a, 2 + c//4)
            if c == 0 and not GB: a("ds_read_b128 v[48:51], v0")
            p1_reads(c)
            if c: p1_mfma(c - 1, isv)
            elif not GB:
                a("s_waitcnt lgkmcnt(12)")
                a(f"buffer_store_dwordx4 v[48:51], v8, {WS}, s65 offen sc1")
            a("s_waitcnt lgkmcnt(0)")
        a("s_barrier")
    pass1(False)
    P2B = [16, 24, 32, 40, 128, 136]
    lg2 = Cnt(a, "lgkmcnt", 15)
    def p2_read1(n):
        j = n >> 3; st = n & 7
        b = P2B[n % 6]
        if st == 0 and j:
            u = uid()
            lg2.wait(f"f{j}")
            a.nopad += 1
            a(f"v_cmp_gt_u32 vcc, {j}, v55")
            a(f"s_cbranch_vccz P2X{u}")
            a.label(f"P2W{u}")
            a(f"ds_read_b32 v55, v1 offset:{F_W}")
            a("s_waitcnt lgkmcnt(0)")
            a(f"v_cmp_gt_u32 vcc, {j}, v55")
            a(f"s_cbranch_vccnz P2W{u}")
            a.label(f"P2X{u}")
            a.nopad -= 1
        lg2.op(f"ds_read_b128 {vr(b,4)}, v{56+(st&3)} offset:{(2*j + (st>>2))*8192}", f"s{n}")
        lg2.op(f"ds_read_b64_tr_b16 {vr(b+4,2)}, v61 offset:{j*16384 + (16*st)*128}", f"s{n}")
        lg2.op(f"ds_read_b64_tr_b16 {vr(b+6,2)}, v61 offset:{j*16384 + (16*st + 4)*128}", f"s{n}")
        if st == 4 and j < 3: lg2.op(f"ds_read_b32 v55, v1 offset:{F_W}", f"f{j+1}")
    a("s_setprio 2")
    dstamp(a, 9)
    for n in range(4): p2_read1(n)
    p1_mfma(7, False)
    for n in range(32):
        if f"s{n}" in lg2.ops: lg2.wait(f"s{n}")
        b = P2B[n % 6]
        a(f"v_mfma_f32_32x32x16_bf16 v[80:95], {vr(b+4,4)}, {vr(b,4)}, v[80:95]")
        if n + 4 < 32: p2_read1(n + 4)
        if n in (KST, KST + 1):
            hh = n - KST
            for p in range(4):
                a(f"v_cvt_pk_bf16_f32 v{[48,160][hh]+p}, v{64+8*hh+2*p}, v{64+8*hh+2*p+1}")
            a(f"buffer_store_dwordx4 {vr([48,160][hh],4)}, v7, {WS}, s{56+hh} offen sc1")
    ladd(a, 1, F_P2D, 54)
    qs = f32bits(0.25 * math.log2(math.e))
    a(f"s_mov_b32 s58, {qs:#x}")
    a("s_lshl_b32 s56, s64, 10")
    a(f"s_add_u32 s56, s56, {WS_QF}")
    a("s_add_u32 s57, s56, 65536")
    a("s_nop 6")
    for hh in range(2):
        for i in range(8): a(f"v_mul_f32 v{80+8*hh+i}, s58, v{80+8*hh+i}")
        for p in range(4):
            a(f"v_cvt_pk_bf16_f32 v{96+4*hh+p}, v{80+8*hh+2*p}, v{80+8*hh+2*p+1}")
        a(f"buffer_store_dwordx4 {vr(96+4*hh,4)}, v3, {WS}, s{56+hh} offen sc1")
    a("s_setprio 0")
    stamp(a, 4)
    a("s_branch WIN1")

    a.label("VPATH")
    pass1(True)
    p1_mfma(7, True)
    a("s_nop 7")
    lwait(a, 1, F_QX, 1, 55)
    for j in range(2):
        for p in range(4):
            a(f"v_cvt_pk_bf16_f32 v{16+4*j+p}, v{64+8*j+2*p}, v{64+8*j+2*p+1}")
        a(f"buffer_store_dwordx4 {vr(16+4*j,4)}, v9, {WS}, s56 offen offset:{1024 + 512*j} sc1")
    stamp(a, 4)

    a.label("WIN1")
    AL = 80; AB = 84
    WF = 104
    Q = 4; KF = 8; V = 12; IDX = 28; AK = 29; AV = 30; S = 32; O = 64; NM = 80
    C0 = 136
    FA = 104
    FB = [48, 52, 56, 60, 88, 92, 32, 36]
    a("""
    s_mov_b32 s59, 0xffff0000
    s_lshr_b32 s64, s3, 2
    s_and_b32 s65, s3, 3
    v_and_b32 v6, 1, v2
    v_and_b32 v4, 15, v2
    v_lshrrev_b32 v5, 4, v2
    """)
    a(f"v_mul_u32_u24 v6, {L_HO[0] - 32 - (L_HE[0] - 30)}, v6")
    a(f"v_sub_u32 v6, {L_HO[0] - 32}, v6")
    a("v_lshl_add_u32 v6, v4, 1, v6")
    a("v_lshl_add_u32 v6, v5, 4, v6")
    a("s_mul_i32 s56, s64, 8324")
    a("s_lshl_b32 s57, s65, 7")
    a("s_add_u32 s56, s56, s57")
    a(f"v_add_u32 v{AL}, s56, v6")
    for k in range(1, 4): a(f"v_add_u32 v{AL+k}, {1024*k}, v{AL}")
    a("v_lshlrev_b32 v6, 1, v4")
    a("v_sub_u32 v6, v5, v6")
    a("v_lshlrev_b32 v6, 4, v6")
    a("s_mul_i32 s56, s64, 7680")
    a("s_add_u32 s57, s56, s57")
    a(f"s_add_u32 s57, s57, {L_XR[0] + 30*16}")
    a(f"v_add_u32 v{AB}, s57, v6")
    a("v_mov_b32 v0, 1")
    a("s_lshl_b32 s57, s64, 2")
    a("v_add_u32 v85, s57, v1")
    fil = Asm()
    f = fil
    f("s_lshl_b32 s57, s3, 13")
    f(f"s_add_u32 s57, s57, {L_RED}")
    f("""
    v_bfe_u32 v6, v2, 5, 1
    v_lshlrev_b32 v6, 7, v6
    v_xor_b32 v40, v3, v6
    v_add_u32 v40, s57, v40
    v_bfe_u32 v44, v2, 1, 4
    v_and_b32 v6, 1, v2
    v_lshlrev_b32 v7, 3, v6
    v_xor_b32 v44, v44, v7
    v_lshl_add_u32 v44, v6, 5, v44
    v_lshlrev_b32 v44, 4, v44
    v_lshrrev_b32 v6, 5, v2
    v_lshl_add_u32 v44, v6, 10, v44
    s_lshl_b32 s57, s65, 11
    s_lshl_b32 s58, s64, 15
    s_add_u32 s57, s57, s58
    """)
    f(f"s_add_u32 s57, s57, {L_RED}")
    f("""
    v_add_u32 v44, s57, v44
    s_lshl_b32 s57, s65, 6
    s_sub_u32 s57, 255, s57
    v_sub_u32 v45, s57, v2
    v_lshlrev_b32 v45, 4, v45
    """)
    f(f"s_add_u32 s56, s56, {L_XR[0]}")
    f("""
    v_add_u32 v45, s56, v45
    s_lshl_b32 s57, s64, 4
    s_lshr_b32 s58, s68, s57
    s_lshl_b32 s58, s58, 16
    s_lshl_b32 s56, s66, 1
    s_add_u32 s56, s56, s64
    s_lshl_b32 s56, s56, 12
    s_lshl_b32 s57, s65, 10
    s_add_u32 s56, s56, s57
    """)
    f(f"s_add_u32 s56, s56, {WS_ZT}")
    f("""
    s_lshl_b32 s55, s50, 3
    s_add_u32 s55, s55, s3
    s_lshl_b32 s55, s55, 14
    """)
    f(f"s_add_u32 s55, s55, {WS_WOF}")
    f("""
    v_lshrrev_b32 v46, 3, v2
    v_and_b32 v7, 7, v2
    v_lshlrev_b32 v46, 10, v46
    v_lshl_add_u32 v46, v7, 4, v46
    s_lshl_b32 s64, s49, 16
    s_lshl_b32 s57, s3, 13
    s_add_u32 s64, s64, s57
    s_lshl_b32 s57, s48, 7
    s_add_u32 s64, s64, s57
    """)
    f("v_and_b32 v31, 27, v2")
    f("v_cmp_eq_u32 vcc, 16, v31")
    f("v_mov_b32 v31, 0x3f803f80")
    f(f"v_mov_b32 v{IDX}, 0xdddd")
    f(f"v_cndmask_b32 v{V}, 0, v31, vcc")
    for i in range(1, 16): f(f"v_mov_b32 v{V+i}, v{V}")
    f("s_mov_b32 s66, 0xffff")
    f("s_mov_b32 s67, 0xffff")
    f("s_mov_b32 s68, 0")
    f(f"s_mov_b32 s69, {(1<<1)|(1<<2)|(1<<8)}")
    f("s_lshl_b32 s57, s3, 10")
    f(f"s_add_u32 s57, s57, {L_Q}")
    f(f"v_add_u32 v47, s57, v3")
    f(f"v_mov_b32 v{AK}, v3")
    f("v_and_b32 v31, 15, v2")
    f("v_lshlrev_b32 v31, 4, v31")
    f(f"v_lshrrev_b32 v{AV}, 5, v2")
    f(f"v_lshl_add_u32 v{AV}, v{AV}, 8, v31")
    f(f"v_add_u32 v{AV}, 1024, v{AV}")
    for i in range(16): f(f"v_mov_b32 v{O+i}, 0")
    f("s_mov_b32 s65, 0")
    fl = [l for l, _ in fil.l]
    if E("FILL", 0) == 0:
        while fl: a(fl.pop(0))
    stamp(a, 5)
    fstamp(a, 1)
    def try_st(force=False):
        u = uid()
        if force: a("s_cmp_lg_u32 s63, 0")
        else:
            a("s_getreg_b32 s57, hwreg(HW_REG_IB_STS, 0, 4)")
            a("s_or_b32 s57, s57, s63")
        a(f"s_cbranch_scc1 TS{u}")
        a("s_waitcnt vmcnt(0)")
        ladd(a, 1, F_ST, 0)
        a("s_mov_b32 s63, 1")
        a.label(f"TS{u}")
    if ST_AT == -1:
        a("s_waitcnt vmcnt(0)")
        ladd(a, 1, F_ST, 0)
    if ST_AT == -2:
        a("s_mov_b32 s63, 0")
        a.label("CVW")
        try_st()
        a(f"ds_read_b32 v86, v85 offset:{F_CONV}")
        a("s_waitcnt lgkmcnt(0)")
        a("v_cmp_gt_u32 vcc, 2, v86")
        a("s_cbranch_vccnz CVW")
    else:
        lwait(a, 85, F_CONV, 2, 86)
    fstamp(a, 2)
    stamp(a, 6)
    per = -(-len(fl) // 56)
    def fill():
        for _ in range(per):
            if fl: a(fl.pop(0))
    lg = Cnt(a, "lgkmcnt", 15)
    def rA(i, j):
        o = 128*(j & 1) + 16*i
        lg.op(f"ds_read2_b32 {vr(FA+4*j,2)}, v{AL+(j>>1)} offset0:{o} offset1:{o+1}", f"A{i}{j}")
        lg.op(f"ds_read2_b32 {vr(FA+4*j+2,2)}, v{AL+(j>>1)} offset0:{o+2} offset1:{o+3}", f"A{i}{j}")
    def rB(i, T):
        lg.op(f"ds_read_b128 {vr(FB[T],4)}, v{AB} offset:{512*(7-T) + 64*i}", f"B{i}{T}")
    def need(tag):
        if tag in lg.ops: lg.wait(tag)
    def mm(i, j, T):
        need(f"A{i}{j}"); need(f"B{i}{T}")
        d = vr(C0 + 4*(j+T), 4)
        first = (i == 0 and j == 0)
        a(f"v_mfma_f32_16x16x32_bf16 {d}, {vr(FA+4*j,4)}, {vr(FB[T],4)}, {0 if first else d}")
        fill()
    rA(0, 0)
    for T in range(8): rB(0, T)
    rA(0, 1); rA(0, 2)
    nmm = 0
    def stblock(i):
        u = uid()
        if ST_AT != ST_AV:
            a("s_cmp_lt_u32 s3, 4")
            a(f"s_cbranch_scc{0 if i == ST_AT else 1} STS{u}")
        a("s_waitcnt vmcnt(0) lgkmcnt(0)")
        ladd(a, 1, F_ST, 0)
        a("s_waitcnt lgkmcnt(0)")
        a.label(f"STS{u}")
    for j in range(8):
        for T in range(8 - j): mm(0, j, T)
        if j + 3 < 8: rA(0, j + 3)
        rB(1, 7 - j)
        if j >= 5: rA(1, j - 5)
        if j == 4: lg.op(f"ds_read_b32 v86, v1 offset:{F_P2D}", "p")
        if j in (ST_AT, ST_AV): stblock(j)
        if ST_AT == -2 and j in (0, 1, 2, 3, 5): try_st()
    assert not fl
    need("p")
    lwait(a, 1, F_P2D, 4, 86, pre=True)
    def wr(U_): lg.op(f"ds_write_b128 v40, {vr(C0+4*U_,4)} offset:{U_*1024}", "w")
    for j in range(8):
        order = range(7 - j, -1, -1) if j == 0 else range(8 - j)
        for T in order: mm(1, j, T)
        if j + 3 < 8: rA(1, j + 3)
        if j == 1: lg.op("ds_read_b128 v[36:39], v45", "kv")
        if j == 2: wr(0); wr(1)
        if j in (3, 4): wr(j - 1)
        if 8 + j in (ST_AT, ST_AV): stblock(8 + j)
        if ST_AT == -2 and j in (0, 1, 2, 4): try_st()
    fstamp(a, 5)
    lg.wait("kv") if "kv" in lg.ops else None
    for d in range(4):
        a(f"v_lshlrev_b32 v{Q+7-2*d}, 16, v{36+d}")
        a(f"v_and_b32 v{Q+6-2*d}, s59, v{36+d}")
        if d == 1: wr(4); wr(5)
    wr(6); wr(7)
    for i in range(8): a(f"v_mov_b32 v{S+16+8+i}, 0")
    a("v_mov_b32 v96, v46")
    a("s_waitcnt lgkmcnt(0)")
    fstamp(a, 8)
    ladd(a, 85, F_C1, 0)
    if ST_AT == -2: try_st(True)
    lwait(a, 85, F_C1, 4, 86)
    fstamp(a, 9)
    stamp(a, 7)
    R = 104
    for src in range(4):
        a(f"ds_read_b128 {vr(R+8*src,4)}, v44 offset:{src*8192}")
        a(f"ds_read_b128 {vr(R+4+8*src,4)}, v44 offset:{src*8192 + 256}")
    a("s_waitcnt lgkmcnt(6)")
    for i in range(8): a(f"v_fmac_f32 v{R+i}, s58, v{Q+i}")
    for src in range(1, 4):
        a(f"s_waitcnt lgkmcnt({6 - 2*src})")
        for i in range(8): a(f"v_add_f32 v{R+i}, v{R+i}, v{R+8*src+i}")
    for i in range(4): a(f"v_cvt_pk_bf16_f32 v{100+i}, v{R+2*i}, v{R+1+2*i}")
    a(f"buffer_store_dwordx4 v[100:103], v3, {WS}, s56 offen sc1")
    a.label("RUN1")
    stamp(a, 8)
    fstamp(a, 12)
    a("s_barrier")
    fstamp(a, 13)
    stamp(a, 9)
    a(f"ds_read_b128 {vr(Q,4)}, v47")
    a("s_mov_b64 exec, 1")
    a(f"ds_add_u32 v1, v0 offset:{F_QRD}")
    a("s_mov_b64 exec, -1")
    def prolog(cin):
        a(f"ds_read_b128 {vr(KF,4)}, v3")
        a("s_mov_b64 exec, s[66:67]")
        a(f"ds_read_b128 {vr(V,4)}, v{AV}")
        a(f"ds_read_b128 {vr(V+4,4)}, v{AV} offset:512")
        a(f"ds_read_b128 {vr(V+12,4)}, v{AV} offset:512")
        a("s_mov_b64 exec, -1")
        a("s_waitcnt lgkmcnt(3)")
        a(f"v_mfma_f32_32x32x16_bf16 {vr(S,16)}, {vr(KF,4)}, {vr(Q,4)}, {cin}")
        a(f"ds_read_b128 {vr(KF,4)}, v{AK} offset:2048")
        a("s_waitcnt lgkmcnt(1)")
        a("s_nop 9")
    prolog("0")
    a.nopad += 1
    if E("ALN", 6): a.raw(f".p2align {E('ALN', 6)}")
    for _ in range(E("ALO", 0)): a("s_nop 0")
    U = 8
    def tile(u, wf=None, cin="0", last=None, mid=None):
        c = u & 1; p = c ^ 1
        Sc = S + 16*c; Sp = S + 16*p
        def ex(i): a(f"v_exp_f32 v{Sc+i}, v{Sc+i}")
        def wl(st):
            a(f"buffer_load_dwordx4 {vr(WF+4*st,4)}, v3, {WS}, s55 offen offset:{1024*(st&3)} sc1")
            if st % 4 == 3: a("s_add_u32 s55, s55, 4096")
        a(f"s_setprio {3-(u&3)}")
        ex(0); ex(1)
        a(f"v_smfmac_f32_32x32x32_bf16 {vr(O,16)}, {vr(V+8*p+4,4)}, {vr(Sp+8,8)}, v{IDX}")
        a("s_mov_b64 exec, s[66:67]")
        a(f"ds_read_b128 {vr(V+8*p,4)}, v{AV} offset:{(u+1)*2048}")
        a(f"ds_read_b128 {vr(V+8*p+4,4)}, v{AV} offset:{(u+1)*2048+512}")
        a("s_mov_b64 exec, -1")
        ex(2); ex(3); ex(4)
        a("s_waitcnt lgkmcnt(2)")
        a(f"v_mfma_f32_32x32x16_bf16 {vr(Sp,16)}, {vr(KF,4)}, {vr(Q,4)}, {cin}")
        a(f"ds_read_b128 {vr(KF,4)}, v{AK} offset:{(u+2)*2048}")
        if wf is not None: wl(2*wf)
        if mid: mid()
        for i in range(5, 10): ex(i)
        a(f"v_smfmac_f32_32x32x32_bf16 {vr(O,16)}, {vr(V+8*c,4)}, {vr(Sc,8)}, v{IDX}")
        if wf is not None: wl(2*wf + 1)
        if last: last()
        for i in range(10, 16): ex(i)
    def samp(off): return lambda: a(f"ds_read_b32 v97, v1 offset:{off}")
    def chk(n, lab):
        def f():
            a(f"v_cmp_gt_u32 vcc, {n}, v97")
            a(f"s_cbranch_vccnz {lab}")
            a.label(lab + "R")
        return f
    def zd():
        a("s_waitcnt vmcnt(0)")
        ladd(a, 1, F_ZD, 0)
    def ql(): a("buffer_load_dwordx4 v[100:103], v96, s[32:35], s64 offen")
    for u in range(24):
        tile(u, wf=(u - 16 if u >= 16 else None),
             mid={2: samp(F_K1), 12: zd, 13: ql, 14: samp(F_K2)}.get(u),
             last={3: chk(1, "CK1"), 15: chk(2, "CK2")}.get(u))
    a(f"v_add_u32 v{AK}, {24*2048}, v{AK}")
    a(f"v_add_u32 v{AV}, {24*2048}, v{AV}")
    a.raw(".p2align 6")
    a.label("LOOP")
    def lend():
        a("s_add_u32 s65, s65, 1")
        a("s_cmp_lt_u32 s65, 5")
    for u in range(U): tile(u, last=lend if u == U-1 else None)
    a(f"v_add_u32 v{AK}, {U*2048}, v{AK}")
    a(f"v_add_u32 v{AV}, {U*2048}, v{AV}")
    a("s_cbranch_scc1 LOOP")
    a.nopad -= 1
    a.label("LEXIT")
    a(f"v_smfmac_f32_32x32x32_bf16 {vr(O,16)}, {vr(V+8+4,4)}, {vr(S+16+8,8)}, v{IDX}")
    a("s_setprio 0")
    a(f"ds_read_b64 v[98:99], v1 offset:{F_NONCE}")
    a("""
    s_lshl_b32 s56, s51, 3
    s_add_u32 s56, s56, s3
    s_lshl_b32 s56, s56, 5
    s_add_u32 s56, s56, s54
    s_lshl_b32 s55, s56, 6
    s_lshl_b32 s56, s56, 10
    """)
    a(f"s_add_u32 s55, s55, {WS_FL + 3*16384}")
    a(f"s_add_u32 s64, s56, {WS_OF}")
    a(f"s_mov_b32 s56, {f32bits(2.0**100):#x}")
    a(f"s_mov_b32 s57, {f32bits(2.0**40):#x}")
    a(f"s_mov_b32 s58, {f32bits(2.0**-40):#x}")
    a("s_waitcnt lgkmcnt(0)")
    a(f"v_rcp_f32 v{AK}, v{O+8}")
    a("s_cmp_lg_u32 s68, 0")
    a("s_cbranch_scc1 FIN")
    a(f"v_add_f32 v31, abs(v{O}), abs(v{O+1})")
    for i in range(2, 8): a(f"v_add_f32 v31, v31, abs(v{O+i})")
    a("v_cmp_ngt_f32 vcc, s56, v31")
    a(f"v_cmp_ngt_f32 s[62:63], s57, v{O+8}")
    a(f"v_cmp_nlt_f32 s[70:71], s58, v{O+8}")
    a("s_or_b64 s[62:63], s[62:63], s[70:71]")
    a("s_or_b64 s[62:63], vcc, s[62:63]")
    a("s_cbranch_scc1 FALLBACK")
    a.label("FIN")
    for i in range(8): a(f"v_mul_f32 v{O+i}, v{O+i}, v{AK}")
    for i in range(4): a(f"v_cvt_pk_bf16_f32 v{KF+i}, v{O+2*i}, v{O+2*i+1}")
    a(f"buffer_store_dwordx4 {vr(KF,4)}, v3, {WS}, s64 offen sc1")
    stamp(a, 10)
    a("s_waitcnt vmcnt(1)")
    a("s_barrier")
    stamp(a, 11)
    a("""
    v_lshrrev_b32 v4, 3, v2
    v_and_b32 v5, 7, v2
    v_xor_b32 v6, s3, v5
    v_lshlrev_b32 v6, 4, v6
    v_lshl_add_u32 v6, v5, 10, v6
    v_lshl_add_u32 v6, v4, 1, v6
    """)
    a(f"v_add_u32 v6, {L_Z}, v6")
    for jj in range(8): a(f"ds_read_u16_d16_hi v{32+jj}, v6 offset:{128*jj}")
    a("""
    v_lshlrev_b32 v7, 11, v4
    v_lshl_add_u32 v7, v5, 4, v7
    s_lshl_b32 s64, s49, 17
    s_lshl_b32 s57, s3, 14
    s_add_u32 s64, s64, s57
    s_lshl_b32 s57, s48, 7
    s_add_u32 s64, s64, s57
    v_and_b32 v14, 15, v2
    v_lshrrev_b32 v15, 4, v2
    v_lshlrev_b32 v13, 4, v14
    v_lshl_add_u32 v13, v15, 9, v13
    v_and_b32 v12, 1, v15
    v_lshl_add_u32 v14, v12, 4, v14
    v_lshlrev_b32 v14, 11, v14
    v_lshrrev_b32 v15, 1, v15
    v_lshl_add_u32 v14, v15, 4, v14
    s_lshl_b32 s56, s48, 3
    s_add_u32 s56, s56, s51
    s_lshl_b32 s56, s56, 16
    s_lshl_b32 s57, s3, 5
    s_add_u32 s56, s56, s57
    s_lshl_b32 s57, s50, 8
    s_add_u32 s56, s56, s57
    s_add_u32 s56, s56, 1024
    v_mov_b32 v12, 0
    """)
    for p in range(4):
        a(f"v_lshlrev_b32 v{40+2*p}, 16, v{100+p}")
        a(f"v_and_b32 v{41+2*p}, s59, v{100+p}")
    a("s_waitcnt lgkmcnt(0)")
    for i in range(8):
        a(f"v_and_b32 v{32+i}, s59, v{32+i}")
        a(f"v_mul_f32 v{32+i}, v{32+i}, v{40+i}")
    for i in range(4): a(f"v_cvt_pk_bf16_f32 v{100+i}, v{32+2*i}, v{33+2*i}")
    a("s_waitcnt vmcnt(0)")
    a("s_mov_b64 exec, 1")
    a(f"buffer_store_dwordx2 v[98:99], v12, {WS}, s55 offen sc1")
    a("s_mov_b64 exec, -1")
    a(f"buffer_store_dwordx4 v[100:103], v7, s[36:39], s64 offen {os.environ.get('A3F','')}")
    a(f"v_add_u32 v5, {F_GQ}, v1")
    a("s_mov_b32 s65, 0")
    a.nopad += 1
    a.label("GQ")
    a("ds_read_b32 v4, v5")
    a("s_waitcnt lgkmcnt(0)")
    a.label("GQ2")
    a("v_readfirstlane_b32 s57, v4")
    a("s_cmp_eq_u32 s57, 0")
    a("s_cbranch_scc1 GQ")
    a("s_lshl_b32 s58, s57, 10")
    a("v_add_u32 v6, s58, v13")
    a("ds_read_b32 v4, v5 offset:4")
    for st in range(2):
        for m in range(2):
            a(f"ds_read_b128 {vr(16+8*st+4*m,4)}, v6 offset:{2048*st + 256*m}")
    a("v_add_u32 v5, 4, v5")
    a("s_add_u32 s65, s65, 1")
    a("s_cmp_gt_u32 s57, 16")
    a("s_cbranch_scc1 GH")
    for g in (0, 1, 2):
        a(f"s_cmp_eq_u32 s57, {4*g+4}")
        a(f"s_cbranch_scc1 GC{g}")
    def gcase(g, last=False):
        a.label(f"GC{g}")
        for st in range(2):
            for m in range(2):
                a(f"s_waitcnt lgkmcnt({3 - 2*st - m})")
                d = vr(32+8*g+4*m,4)
                a(f"v_mfma_f32_16x16x32_bf16 {d}, {vr(WF+4*(2*g+st),4)}, {vr(16+8*st+4*m,4)}, {d if st else 0}")
        a("s_cmp_lt_u32 s65, 8")
        a("s_cbranch_scc1 GQ2")
        if not last: a("s_branch GE")
    gcase(3)
    a.label("GH")
    for g in (4, 5, 6):
        a(f"s_cmp_eq_u32 s57, {4*g+4}")
        a(f"s_cbranch_scc1 GC{g}")
    for g in (7, 0, 1, 2, 4, 5): gcase(g)
    gcase(6, True)
    a.label("GE")
    a.nopad -= 1
    stamp(a, 12)
    a("s_nop 7")
    for step in (1, 2, 4):
        for g in range(0, 8, 2*step):
            for i in range(0, 8, 2):
                a(f"v_pk_add_f32 {vr(32+8*g+i,2)}, {vr(32+8*g+i,2)}, {vr(32+8*(g+step)+i,2)}")
    for m in range(2):
        a(f"v_cvt_pk_bf16_f32 v{16+2*m}, v{32+4*m}, v{33+4*m}")
        a(f"v_cvt_pk_bf16_f32 v{17+2*m}, v{34+4*m}, v{35+4*m}")
    a("s_nop 1")
    a("v_permlane16_swap_b32 v16, v18")
    a("v_permlane16_swap_b32 v17, v19")
    a(f"buffer_store_dwordx4 v[16:19], v14, s[36:39], s56 offen {os.environ.get('OUTF','')}")
    stamp(a, 13)
    endpgm(a)
    a.label("CK1")
    lwait(a, 1, F_K1, 1, 97)
    a("s_branch CK1R")
    a.label("CK2")
    lwait(a, 1, F_K2, 2, 97)
    a("s_branch CK2R")

    a.nopad += 1
    a.label("FALLBACK")
    a("s_mov_b32 s68, 1")
    a(f"v_mov_b32 v{AK}, v3")
    a(f"v_mov_b32 v31, {f32bits(float('-inf')):#x}")
    a("s_mov_b32 s65, 0")
    a.label("MAXL")
    a(f"ds_read_b128 {vr(KF,4)}, v{AK}")
    a(f"v_add_u32 v{AK}, 2048, v{AK}")
    a("s_waitcnt lgkmcnt(0)")
    a(f"v_mfma_f32_32x32x16_bf16 {vr(S,16)}, {vr(KF,4)}, {vr(Q,4)}, 0")
    a("s_nop 15")
    for i in range(0, 16, 2): a(f"v_max3_f32 v31, v31, v{S+i}, v{S+i+1}")
    a("s_add_u32 s65, s65, 1")
    a("s_cmp_lt_u32 s65, 64")
    a("s_cbranch_scc1 MAXL")
    a(f"v_mov_b32 v{S}, v31")
    a("s_nop 1")
    a(f"v_permlane32_swap_b32 v31, v{S}")
    a("s_nop 1")
    a(f"v_max_f32 v31, v31, v{S}")
    for i in range(16): a(f"v_sub_f32 v{NM+i}, 0, v31")
    a(f"v_mov_b32 v{AK}, v3")
    a(f"v_subrev_u32 v{AV}, {64*2048}, v{AV}")
    for i in range(16): a(f"v_mov_b32 v{O+i}, 0")
    for i in range(8): a(f"v_mov_b32 v{S+16+8+i}, 0")
    a("s_mov_b32 s65, 0")
    prolog(vr(NM,16))
    a.label("FBL")
    for u in range(2): tile(u, cin=vr(NM,16))
    a(f"v_add_u32 v{AK}, {2*2048}, v{AK}")
    a(f"v_add_u32 v{AV}, {2*2048}, v{AV}")
    a("s_add_u32 s65, s65, 1")
    a("s_cmp_lt_u32 s65, 32")
    a("s_cbranch_scc1 FBL")
    a("s_branch LEXIT")

HEAD = '.amdgcn_target "amdgcn-amd-amdhsa--gfx950"\n.text\n'
def sizes(lines):
    txt = HEAD
    for i, (l, _) in enumerate(lines):
        if l.startswith("@@") or l.startswith(".p2align"): continue
        txt += f"ZZ{i}:\n{l}\n"
    txt += "ZZEND:\n"
    open("_sz.s", "w").write(txt)
    subprocess.run(["clang", "-x", "assembler", "-target", "amdgcn-amd-amdhsa", "-mcpu=gfx950", "-c", "_sz.s", "-o", "_sz.o"], check=True)
    out = subprocess.run(["llvm-objdump", "-t", "_sz.o"], capture_output=True, text=True).stdout
    ad = {}
    for m in re.finditer(r"^([0-9a-f]+) .* ZZ(\w+)$", out, re.M): ad[m.group(2)] = int(m.group(1), 16)
    keys = sorted((int(k) for k in ad if k != "END"))
    sz = {}
    for x, y in zip(keys, keys[1:] + ["END"]): sz[x] = ad[str(y)] - ad[str(x)]
    return sz

def layout(lines):
    NW = 8
    if not PADS:
        return "\n".join(l for l, _ in lines if not l.startswith("@@")) + "\n"
    sz = sizes(lines)
    CALL = 8*NW
    out = []; pos = 0; npad = 0; i = 0; n = len(lines)
    def emit_pad():
        nonlocal pos, npad
        prev = out[-1].strip() if out else ""
        if not (prev.startswith("s_branch") or prev.startswith("s_endpgm")):
            out.append(f"    s_branch PSK{npad}"); pos += 4
        out.append(".p2align 10"); pos = (pos + 1023)//1024*1024
        out.append(f"PAD{npad}:"); out.append(f"@@PADNEXT{npad}@@"); pos += 4
        out.append(f"PSK{npad}:")
        npad += 1
    def lsize(k, p):
        l = lines[k][0]
        if l == "@@PADCALL@@": return CALL
        if l.startswith("@@"): return 0
        if l.startswith(".p2align"):
            al = 1 << int(l.split()[1]); return (-p) % al
        return sz.get(k, 0)
    while i < n:
        l, np_ = lines[i]
        if l == "@@FORCEPAD@@":
            emit_pad(); i += 1; continue
        if not np_ and pos >= 1024:
            p = pos; k = i
            p += lsize(k, p); k += 1
            while k < n and lines[k][1] and lines[k][0] != "@@FORCEPAD@@":
                p += lsize(k, p); k += 1
            lim = (pos // 1024 + 1)*1024 if pos % 1024 else pos + 1024
            if p + 4 > lim and k < n and lines[k][0] != "@@FORCEPAD@@" and (pos % 1024) > 8:
                emit_pad()
        out.append(l); pos += lsize(i, pos); i += 1
    txt = "\n".join(out) + "\n"
    call = ""
    for w in range(NW):
        call += f"    s_cmp_eq_u32 s3, {w}\n    s_cbranch_scc1 {'PAD%d' % w if w < npad else 'PADRET'}\n"
    txt = txt.replace("@@PADCALL@@\n", call)
    for k in range(npad):
        nxt = f"PAD{k+NW}" if k + NW < npad else "PADRET"
        txt = txt.replace(f"@@PADNEXT{k}@@", f"    s_branch {nxt}")
    return txt

def main():
    ref = open(f"cdna_kernels/{NAME}.s.ref").read().split("\n")
    hdr = []
    for line in ref:
        if line.startswith(";") and "@launch" not in line: hdr.append(line)
        elif not line.startswith(";"): break
    a = Asm(); gen_entry(a); gen_loader1(a)
    cut = next(i for i, (l, _) in enumerate(a.l) if "L0: " in l or l.strip().startswith("@@CUT")) if False else None
    b = Asm(); gen_compute(b)
    c = Asm(); c.nopad = 1; stampout(c); c.label("END"); c("s_endpgm")
    k = max(i for i, (l, _) in enumerate(a.l) if l == "LQ:")
    first = a.l[:k]; second = a.l[k:]
    kf = next(i for i, (l, _) in enumerate(b.l) if l == "FALLBACK:")
    lines = first + b.l[:kf] + second + b.l[kf:] + c.l
    out = "\n".join(hdr) + "\n"
    out += f"; @launch grid=(256,1,1) block=(768,1,1) lds={L_TOTAL}\n"
    out += HEAD + layout(lines)
    out += f""".section .rodata,"a"
.p2align 6
.amdhsa_kernel {KN}
  .amdhsa_next_free_vgpr 168
  .amdhsa_next_free_sgpr 96
  .amdhsa_accum_offset 168
  .amdhsa_group_segment_fixed_size 0
  .amdhsa_kernarg_size 96
  .amdhsa_user_sgpr_count 2
  .amdhsa_user_sgpr_kernarg_segment_ptr 1
  .amdhsa_system_sgpr_workgroup_id_x 1
  .amdhsa_float_denorm_mode_32 3
.end_amdhsa_kernel
"""
    dst = sys.argv[1] if len(sys.argv) > 1 else f"cdna_kernels/{NAME}.s"
    open(dst, "w").write(out)

if __name__ == "__main__":
    main()
```

```python
import sys, math, struct, os, subprocess, re

NAME = "concat_heads__ssm_conv_h3__softmax_full_mha__prompt"
KN = NAME + "_kernel"
E = lambda n, d: int(os.environ.get(n, str(d)))
STAMP = E("STAMP", 0); DIAG = E("DIAG", 0)
F0_AT = E("F0_AT", 7); ST_AT = E("ST_AT", -2); ST_AV = E("ST_AV", -2); WF_AT = E("WF_AT", 7); PADS = E("PADS", 0); GATH = E("GATH", 2); XRP = E("XRP", 99); WOAT = E("WOAT", 2); XS_AT = E("XS_AT", 4); QST = E("QST", 8); GB = E("GB", 0); WOE = E("WOE", 0); KST = E("KST", 30); WFM = E("WFM", 1); HAT = E("HAT", 6); NON_AT = E("NON_AT", 0)

WS_QF  = 0; WS_KV = 2 << 20; WS_OF = 6 << 20; WS_XR = 8 << 20; WS_ZT = 10 << 20
WS_FL  = 12 << 20; WS_WOF = 13 << 20; WS_ST = 16 << 20; WS_SIZE = 18 << 20

L_X = 0; L_RING = 65536; L_CONV = 131072
L_XR = [L_CONV, L_CONV + 7680]
L_HE = [L_CONV + 15360 + 64, L_CONV + 15360 + 8324 + 64]
L_HO = [L_HE[0] + 4096 + 68, L_HE[1] + 4096 + 68]
L_MISC = L_CONV + 15360 + 2*8324
L_TOTAL = 163840
L_Q = 57344; L_Z = L_CONV; L_O = 4096; L_RED = 65536
L_A1 = L_CONV
L_A1S = L_CONV + 18432
L_WT = L_CONV + 26624
F_X = 0; F_W = 4; F_QX = 8; F_FULL = 0; F_FULLA = 48; F_FREE = 64; F_STG = 112; F_XRD = 116; F_C1 = 120; F_ISS = 128
F_GQ = 200; F_K1 = 184; F_K2 = 188; F_QRD = 192; F_ZD = 196; F_CONV = 176; F_P2D = 148; F_ST = 152; F_WOF = 156; F_NONCE = 160; F_HE = 168

def f32bits(x): return struct.unpack("<I", struct.pack("<f", x))[0]

class Asm:
    def __init__(self): self.l = []; self.nopad = 0
    def __call__(self, s):
        for line in s.strip("\n").split("\n"):
            if line.strip(): self.l.append(("    " + line.strip(), self.nopad))
    def label(self, n): self.l.append((n + ":", 1))
    def raw(self, s): self.l.append((s, 1))

class Cnt:
    def __init__(self, a, name, mx): self.a = a; self.ops = []; self.name = name; self.mx = mx
    def op(self, s, tag): self.a(s); self.ops.append(tag)
    def wait(self, tag):
        idx = max(i for i, t in enumerate(self.ops) if t == tag)
        n = len(self.ops) - 1 - idx
        assert n <= self.mx, n
        self.a(f"s_waitcnt {self.name}({n})")
        self.ops = self.ops[idx+1:]

def vr(b, n): return f"v[{b}:{b+n-1}]"
P_Q, P_K, P_V, P_SHK, P_SSMK, P_SSMD, P_X, P_WQKV, P_WO, P_OUT, P_DBG, P_WS = [4 + 2*i for i in range(12)]
def srd(a, d, ptr, size):
    a(f"s_mov_b32 s{d}, s{ptr}")
    a(f"s_and_b32 s{d+1}, s{ptr+1}, 0xffff")
    a(f"s_mov_b32 s{d+2}, {size}")
    a(f"s_mov_b32 s{d+3}, 0x00020000")
WS = "s[28:31]"
NST = 14
def stamp_begin(a):
    if STAMP:
        a("s_memrealtime s[72:73]")
        a("s_memtime s[76:77]")
def dstamp(a, k):
    if DIAG == 1: stamp(a, k, True)
def estamp(a, k):
    if DIAG == 2: stamp(a, k, True)
def fstamp(a, k):
    if DIAG == 3: stamp(a, k, True)
def stamp(a, k, d=False):
    if STAMP == 3:
        m = {2: 0, 4: 2, 8: 4, 9: 6, 10: 8, 12: 10, 13: 12}
        if not d and k in m:
            a("s_memrealtime s[94:95]")
            a("s_memtime s[78:79]")
            a("s_waitcnt lgkmcnt(0)")
            a(f"s_sub_u32 s{80+m[k]}, s94, s72")
            a(f"s_sub_u32 s{81+m[k]}, s78, s76")
    elif STAMP == 2:
        if not d:
            a("s_memrealtime s[94:95]")
            a("s_waitcnt lgkmcnt(0)")
            a(f"s_mov_b32 s{80+k}, s94")
    elif STAMP and (d or not DIAG or k == 0):
        a("s_memtime s[94:95]")
        a("s_waitcnt lgkmcnt(0)")
        a(f"s_sub_u32 s{80+k}, s94, s76")
def endpgm(a):
    if STAMP: a("s_branch STAMPOUT")
    else: a("s_endpgm")
def stampout(a):
    if STAMP:
        a.label("STAMPOUT")
        srd(a, 28, P_WS, WS_SIZE)
        a("s_waitcnt vmcnt(0)")
        a("s_memrealtime s[74:75]")
        a("s_memtime s[78:79]")
        a("s_waitcnt lgkmcnt(0)")
        a("s_sub_u32 s78, s78, s76")
        a("s_mov_b64 exec, 1")
        a("v_mov_b32 v4, s72")
        a("v_mov_b32 v5, s74")
        a("v_mov_b32 v6, s78")
        for k in range(NST): a(f"v_mov_b32 v{7+k}, s{80+k}")
        a("s_lshl_b32 s76, s2, 4")
        a("s_add_u32 s76, s76, s3")
        a("s_lshl_b32 s76, s76, 7")
        a(f"s_add_u32 s76, s76, {WS_ST}")
        a("v_mov_b32 v30, 0")
        for k in range(5):
            a(f"buffer_store_dwordx4 v[{4+4*k}:{7+4*k}], v30, {WS}, s76 offen offset:{16*k}")
        a("s_endpgm")

_uid = [0]
def uid(): _uid[0] += 1; return _uid[0]
def poll(a, stage, grp_sreg, mode=0, sleep=1):
    u = uid()
    if mode == 3: a(f"s_mov_b32 s62, {WS_FL + stage*16384}")
    else:
        a(f"s_lshl_b32 s62, s{grp_sreg}, 11")
        a(f"s_add_u32 s62, s62, {WS_FL + stage*16384}")
    a("s_mov_b32 s63, 0")
    if mode == 0: a("s_mov_b32 exec_hi, 0")
    a.nopad += 1
    a.label(f"POLL{u}")
    if mode == 3:
        a(f"buffer_load_dwordx4 v[60:63], v3, {WS}, s62 offen sc1")
        a(f"buffer_load_dwordx4 v[64:67], v3, {WS}, s62 offen offset:1024 sc1")
    else: a(f"buffer_load_dwordx2 v[60:61], v12, {WS}, s62 offen sc1")
    a("s_add_u32 s63, s63, 1")
    a("s_cmp_gt_u32 s63, 0x40000")
    a(f"s_cbranch_scc1 POLLX{u}")
    a("s_waitcnt vmcnt(0)")
    a("v_cmp_ne_u64 vcc, s[60:61], v[60:61]")
    if mode == 3:
        for r in (62, 64, 66):
            a(f"v_cmp_ne_u64 s[70:71], s[60:61], v[{r}:{r+1}]")
            a("s_or_b64 vcc, s[70:71], vcc")
        a(f"s_cbranch_scc0 POLLX{u}")
    else: a(f"s_cbranch_vccz POLLX{u}")
    a(f"s_sleep {sleep}")
    a(f"s_branch POLL{u}")
    a.label(f"POLLX{u}")
    a.nopad -= 1
    a("s_mov_b64 exec, -1")
def publish(a, stage, grp_sreg, slot_sreg):
    a(f"s_lshl_b32 s62, s{slot_sreg}, {3 if grp_sreg is None else 6}")
    if grp_sreg is not None:
        a(f"s_lshl_b32 s63, s{grp_sreg}, 11")
        a("s_add_u32 s62, s62, s63")
    a(f"s_add_u32 s62, s62, {WS_FL + stage*16384}")
    a("s_mov_b64 exec, 1")
    a(f"buffer_store_dwordx2 v[14:15], v13, {WS}, s62 offen sc1")
    a("s_mov_b64 exec, -1")
def nonce_lds(a, sgpr=True):
    u = uid()
    a.nopad += 1
    a.label(f"NL{u}")
    a(f"ds_read_b64 v[14:15], v1 offset:{F_NONCE}")
    a("s_waitcnt lgkmcnt(0)")
    a("v_cmp_eq_u32 vcc, 0, v14")
    a(f"s_cbranch_vccnz NL{u}")
    a.nopad -= 1
    if sgpr:
        a("v_readfirstlane_b32 s60, v14")
        a("v_readfirstlane_b32 s61, v15")
def lwait(a, vaddr, off, n, vt, pre=False, sleep=None):
    u = uid()
    a.nopad += 1
    if pre:
        a(f"v_cmp_gt_u32 vcc, {n}, v{vt}")
        a(f"s_cbranch_vccz LWX{u}")
    a.label(f"LW{u}")
    if sleep is None and pre and vt == 55: sleep = E("CSL", 0)
    if sleep: a(f"s_sleep {sleep*E('SLM',1)}")
    a(f"ds_read_b32 v{vt}, v{vaddr} offset:{off}")
    a("s_waitcnt lgkmcnt(0)")
    a(f"v_cmp_gt_u32 vcc, {n}, v{vt}")
    a(f"s_cbranch_vccnz LW{u}")
    a.label(f"LWX{u}")
    a.nopad -= 1
def lwait2(a, n):
    u = uid()
    a.nopad += 1
    a("v_min_u32 v55, v52, v53")
    a(f"v_cmp_gt_u32 vcc, {n}, v55")
    a(f"s_cbranch_vccz LWX{u}")
    a.label(f"LW{u}")
    a(f"ds_read_b64 v[52:53], v1 offset:{F_X}")
    a("s_waitcnt lgkmcnt(0)")
    a("v_min_u32 v55, v52, v53")
    a(f"v_cmp_gt_u32 vcc, {n}, v55")
    a(f"s_cbranch_vccnz LW{u}")
    a.label(f"LWX{u}")
    a.nopad -= 1
def ladd(a, vaddr, off, vone):
    a("s_mov_b64 exec, 1")
    a(f"ds_add_u32 v{vaddr}, v{vone} offset:{off}")
    a("s_mov_b64 exec, -1")
def barriers(a, n):
    for _ in range(n): a("s_barrier")

VX = 16; VW = 20; VQ = 24

def gen_entry(a):
    a.nopad += 1
    a.raw(f".globl {KN}")
    a.raw(".p2align 10")
    a.raw(f".type {KN},@function")
    a.label(KN)
    a("s_cmp_ge_u32 s2, 256")
    a("s_cbranch_scc1 END")
    stamp_begin(a)
    a("s_load_dwordx16 s[4:19], s[0:1], 0")
    a("s_load_dwordx8 s[20:27], s[0:1], 64")
    a("""
    v_lshrrev_b32 v1, 6, v0
    v_and_b32 v2, 63, v0
    v_readfirstlane_b32 s3, v1
    v_lshlrev_b32 v3, 4, v2
    s_and_b32 s48, s2, 7
    s_lshr_b32 s49, s2, 3
    s_and_b32 s50, s49, 3
    s_lshr_b32 s51, s49, 2
    s_and_b32 s52, s48, 4
    s_add_u32 s52, s52, s50
    s_and_b32 s53, s48, 3
    s_lshl_b32 s53, s53, 3
    s_add_u32 s53, s53, s51
    s_lshl_b32 s54, s48, 2
    s_add_u32 s54, s54, s50
    s_lshl_b32 s55, s50, 1
    s_add_u32 s55, s55, s51
    s_and_b32 s55, s55, 7
    s_lshl_b32 s66, s48, 5
    s_add_u32 s66, s66, s49
    """)
    if E("ROT", 0) == 0: a("s_mov_b32 s55, 0")
    a(f"v_mov_b32 v1, {L_MISC}")
    a("v_mov_b32 v54, 1")
    a("v_mov_b32 v13, 0")
    a("s_cmp_lt_u32 s3, 8")
    a("s_cbranch_scc1 CPATH")
    a("s_setprio 3")
    a("""
    v_lshrrev_b32 v4, 3, v2
    v_lshrrev_b32 v5, 4, v2
    v_and_b32 v6, 7, v2
    v_lshlrev_b32 v12, 6, v2
    s_cmp_eq_u32 s3, 8
    s_cbranch_scc1 XL0
    s_cmp_lg_u32 s3, 9
    s_cbranch_scc1 HPATH
    s_getpc_b64 s[56:57]
    s_lshl_b32 s58, s50, 13
    v_lshlrev_b32 v7, 7, v2
    v_add_u32 v7, s58, v7
    """)
    a(f"v_min_u32 v7, END - {KN} - 256, v7")
    a("global_load_dword v31, v7, s[56:57]")
    a("s_branch LQPAD")

def gen_loader1(a):
    a.label("XL0")
    a(f"s_setprio {E('LPRIO', 2)}")
    a("""
    v_lshlrev_b32 v10, 4, v6
    v_lshl_add_u32 v10, v4, 10, v10
    s_lshl_b32 s63, s49, 16
    s_lshl_b32 s64, s48, 7
    s_add_u32 s63, s63, s64
    v_add_u32 v28, s63, v10
    v_subrev_u32 v10, 8192, v28
    """)
    for i in range(1, 4): a(f"v_add_u32 v{28+i}, {8192-1024}, v{28+i-1}")
    a("v_xor_b32 v7, v6, v5")
    a("v_lshlrev_b32 v7, 4, v7")
    a(f"v_lshl_add_u32 v{VX}, v4, 10, v7")
    a(f"v_xor_b32 v{VX+1}, 64, v{VX}")
    a(f"v_add_u32 v{VX+1}, {8192-1024}, v{VX+1}")
    a(f"v_add_u32 v{VX+2}, {2*(8192-1024)}, v{VX}")
    a(f"v_add_u32 v{VX+3}, {2*(8192-1024)}, v{VX+1}")
    a("""
    v_bfe_u32 v7, v2, 2, 2
    v_xor_b32 v7, v7, v5
    v_mul_u32_u24 v8, 3072, v5
    v_lshrrev_b32 v9, 1, v7
    v_lshl_add_u32 v8, v9, 10, v8
    v_and_b32 v9, 1, v7
    v_lshl_add_u32 v8, v9, 6, v8
    v_and_b32 v9, 3, v2
    """)
    a(f"v_lshl_add_u32 v{VW}, v9, 4, v8")
    for i in range(1, 4): a(f"v_add_u32 v{VW+i}, {4*3072 - 1024}, v{VW+i-1}")
    a("""
    s_lshl_b32 s62, s48, 9
    s_lshl_b32 s57, s53, 16
    s_lshl_b32 s58, s52, 7
    s_mov_b32 s59, s55
    s_mov_b32 s56, 0
    s_mov_b32 s63, 32768
    """)
    a("s_waitcnt lgkmcnt(0)")
    stamp(a, 0)
    srd(a, 32, P_X, 2048*512*2)
    srd(a, 36, P_WQKV, 512*1536*2)
    a("s_branch XLB")
    a.label("XA1")
    srd(a, 40, P_K, 2048*512*2)
    a(f"s_mov_b32 m0, {L_A1}")
    a("s_nop 0")
    a("buffer_load_dwordx4 v10, s[40:43], 0 offen lds")
    for n, base in enumerate((1024, 9216)):
        if n:
            a(f"s_mov_b32 s40, s{P_V}")
            a(f"s_and_b32 s41, s{P_V+1}, 0xffff")
        for g in range(2):
            a(f"s_mov_b32 m0, {L_A1 + base + 4096*g}")
            a("s_nop 0")
            for i in range(4): a(f"buffer_load_dwordx4 v{28+i}, s[40:43], {'s63' if g else '0'} offen offset:{1024*i} lds")
    a(f"s_mov_b32 s40, s{P_SHK}")
    a(f"s_and_b32 s41, s{P_SHK+1}, 0xffff")
    a("s_movk_i32 s42, 4096")
    a(f"s_mov_b32 m0, {L_A1 + 17408}")
    a("s_mov_b32 exec_hi, 0")
    a("buffer_load_dwordx4 v3, s[40:43], s62 offen lds")
    a("s_mov_b64 exec, -1")
    a("s_branch XLD")
    a.label("XL")
    a("s_cmp_eq_u32 s56, 2")
    a("s_cbranch_scc1 XA1")
    a("s_bitcmp1_b32 0x12, s56")
    a("s_cbranch_scc1 XLB")
    a("s_cmp_lg_u32 s56, 3")
    a("s_cbranch_scc1 XLC")
    a.label("XLD")
    a("s_waitcnt vmcnt(42)")
    a.label("XLC")
    a("s_waitcnt vmcnt(48)")
    a("s_barrier")
    a.label("XLB")
    a("s_lshl_b32 s67, s56, 13")
    a("s_mov_b32 m0, s67")
    a("s_lshl_b32 s64, s59, 7")
    a("s_add_u32 s64, s64, s57")
    for i in range(4): a(f"buffer_load_dwordx4 v{VX+i}, s[32:35], s64 offen offset:{1024*i} lds")
    a("s_add_u32 m0, s67, 4096")
    a("s_add_u32 s64, s64, 32768")
    for i in range(4): a(f"buffer_load_dwordx4 v{VX+i}, s[32:35], s64 offen offset:{1024*i} lds")
    a("s_and_b32 s67, s56, 3")
    a("s_lshl_b32 s67, s67, 14")
    a(f"s_add_u32 m0, s67, {L_RING}")
    a(f"s_mul_i32 s65, s59, {64*3072}")
    a("s_add_u32 s65, s65, s58")
    a("s_add_u32 s65, s65, 1024")
    for G in range(4):
        if G:
            a("s_add_u32 m0, m0, 4096")
            a(f"s_add_u32 s65, s65, {16*3072}")
        for i in range(4): a(f"buffer_load_dwordx4 v{VW+i}, s[36:39], s65 offen offset:{1024*i} lds")
    a("s_cmp_eq_u32 s56, 3")
    a("s_addc_u32 s59, s59, 2")
    a("s_and_b32 s59, s59, 7")
    a("s_add_u32 s56, s56, 1")
    a("s_cmp_lt_u32 s56, 8")
    a("s_cbranch_scc1 XL")
    a("s_branch LQ2")
    a.nopad -= 1
    a.label("LQ")
    a.label("LQPAD")
    a("s_branch HPATH")
    a.label("LQ2")
    a("""
    v_bfe_u32 v10, v2, 4, 1
    v_lshlrev_b32 v10, 2, v10
    v_xor_b32 v10, v10, v6
    v_lshlrev_b32 v10, 4, v10
    v_mul_u32_u24 v8, 3072, v4
    """)
    a(f"v_add_u32 v{VQ}, v8, v10")
    for i in range(1, 4): a(f"v_add_u32 v{VQ+i}, {8*3072 - 1024}, v{VQ+i-1}")
    def sig(n, vm):
        a(f"v_mov_b32 v9, {n}")
        a(f"s_waitcnt vmcnt({vm})")
        a(f"ds_write_b32 v1, v9 offset:{F_W}")
    a("s_mov_b32 s56, 0")
    a("s_mov_b32 s59, s55")
    a(f"s_mov_b32 s67, {L_RING}")
    a.nopad += 1
    a.label("LQL")
    a("s_cmp_eq_u32 s56, 0")
    a("s_cbranch_scc1 LQW")
    a("s_cmp_eq_u32 s56, 1")
    a("s_cbranch_scc1 LQV")
    a("s_waitcnt vmcnt(32)")
    a.label("LQV")
    a("s_waitcnt vmcnt(40)")
    a.label("LQW")
    a("s_waitcnt vmcnt(48)")
    a("s_barrier")
    for hf in range(2):
        a("s_and_b32 s59, s59, 7")
        a(f"s_mul_i32 s65, s59, {64*3072}")
        a("s_add_u32 s65, s65, s58")
        for g in range(2):
            a(f"s_add_u32 m0, s67, {hf*8192 + g*4096}")
            a(f"s_add_u32 s65, s65, {32*3072*g}")
            for i in range(4):
                a(f"buffer_load_dwordx4 v{VQ+i}, s[36:39], s65 offen offset:{1024*i} lds")
        if hf == 0: a("s_add_u32 s59, s59, 2")
    a("s_cmp_eq_u32 s56, 1")
    a("s_addc_u32 s59, s59, 2")
    a("s_add_u32 s67, s67, 16384")
    a("s_add_u32 s56, s56, 1")
    a("s_cmp_lt_u32 s56, 4")
    a("s_cbranch_scc1 LQL")
    a.nopad -= 1
    a("s_mov_b64 exec, 1")
    a(f"ds_write_b32 v1, v54 offset:{F_QX}")
    sig(1, 32); sig(2, 16); sig(3, 0)
    a("s_mov_b64 exec, -1")
    stamp(a, 5)
    a("s_setprio 3")
    srd(a, 28, P_WS, WS_SIZE)
    nonce_lds(a)
    lwait(a, 1, F_ST, 8, 61, sleep=1)
    a.label("L0B")
    stamp(a, 7)
    a(f"s_sleep {E('P1S', 8)}")
    poll(a, 1, 48)
    stamp(a, 8)
    a("s_lshl_b32 s64, s54, 6")
    a("s_lshl_b32 s65, s51, 3")
    a("s_add_u32 s64, s64, s65")
    a("s_lshl_b32 s64, s64, 10")
    a(f"s_add_u32 s64, s64, {WS_QF}")
    a("s_lshl_b32 s65, s54, 17")
    a(f"s_add_u32 s65, s65, {WS_KV}")
    def linloop(ldsb, sreg, n4, lab):
        a(f"s_mov_b32 m0, {ldsb}")
        a("s_nop 0")
        a.nopad += 1
        a.label(lab)
        for i in range(4):
            a(f"buffer_load_dwordx4 v3, {WS}, s{sreg} offen offset:{1024*i} sc1 lds")
        a("s_add_u32 m0, m0, 4096")
        a(f"s_add_u32 s{sreg}, s{sreg}, 4096")
        a(f"s_cmp_lt_u32 m0, {ldsb + 4096*n4}")
        a(f"s_cbranch_scc1 {lab}")
        a.nopad -= 1
    linloop(L_Q, 64, 2, "KVL0")
    linloop(0, 65, 9, "KVL1")
    a("s_waitcnt vmcnt(24)")
    a("s_barrier")
    stamp(a, 9)
    linloop(36864, 65, 5, "KVL2")
    a("s_waitcnt vmcnt(20)")
    a(f"ds_write_b32 v1, v54 offset:{F_K1}")
    lwait(a, 1, F_QRD, 8, 61)
    linloop(57344, 65, 18, "KVL3")
    a("s_waitcnt vmcnt(0)")
    ladd(a, 1, F_K2, 54)
    stamp(a, 10)
    a("s_lshl_b32 s64, s48, 3")
    a("s_add_u32 s64, s64, s51")
    a("s_lshl_b32 s64, s64, 15")
    a(f"s_add_u32 s64, s64, {WS_OF}")
    a("s_lshl_b32 s62, s48, 3")
    a("s_add_u32 s62, s62, s51")
    a("s_lshl_b32 s62, s62, 11")
    a(f"s_add_u32 s62, s62, {WS_FL + 3*16384}")
    a("s_mov_b32 s56, 0x11111111")
    a("s_mov_b32 s57, 0")
    a("s_mov_b32 s63, 0")
    a(f"v_add_u32 v8, {F_GQ}, v1")
    a("s_barrier")
    stamp(a, 11)
    a.nopad += 1
    a.label("TP")
    a("s_mov_b32 exec_hi, 0")
    a(f"buffer_load_dwordx2 v[60:61], v12, {WS}, s62 offen sc1")
    a("s_waitcnt vmcnt(1)")
    a.label("TPA")
    a("s_cmp_eq_u32 s57, 0")
    a("s_cbranch_scc1 TPB")
    a("s_ff1_i32_b32 s58, s57")
    a("s_bitset0_b32 s57, s58")
    a("s_add_u32 s58, s58, 4")
    a("v_mov_b32 v9, s58")
    a("ds_write_b32 v8, v9")
    a("v_add_u32 v8, 4, v8")
    a("s_branch TPA")
    a.label("TPB")
    a("s_cmp_eq_u32 s56, 0")
    a("s_cbranch_scc1 TPX")
    a("s_waitcnt vmcnt(0)")
    a("v_cmp_eq_u64 vcc, s[60:61], v[60:61]")
    a("s_mov_b64 exec, -1")
    a("s_add_u32 s63, s63, 1")
    a("s_cmp_gt_u32 s63, 0x40000")
    a("s_cselect_b32 s58, -1, vcc_lo")
    a("s_lshr_b32 s59, s58, 1")
    a("s_and_b32 s58, s58, s59")
    a("s_lshr_b32 s59, s58, 2")
    a("s_and_b32 s58, s58, s59")
    a("s_and_b32 s57, s58, s56")
    a("s_andn2_b32 s56, s56, s57")
    a("s_mov_b32 s59, s57")
    a.label("TPC")
    a("s_cmp_eq_u32 s59, 0")
    a("s_cbranch_scc1 TP")
    a("s_ff1_i32_b32 s58, s59")
    a("s_bitset0_b32 s59, s58")
    a("s_lshl_b32 s58, s58, 10")
    a(f"s_add_u32 m0, s58, {L_O}")
    a("s_add_u32 s65, s64, s58")
    for i in range(4):
        a(f"buffer_load_dwordx4 v3, {WS}, s65 offen offset:{1024*i} sc1 lds")
    a("s_branch TPC")
    a.label("TPX")
    a.nopad -= 1
    a("s_mov_b64 exec, -1")
    stamp(a, 13)
    a("s_cmp_lg_u32 s2, 0")
    a("s_cbranch_scc1 HEND")
    srd(a, 44, P_DBG, 256)
    a("v_mov_b32 v14, 0")
    a("v_mov_b32 v15, 0")
    a("s_mov_b64 exec, 1")
    a("buffer_store_dwordx2 v[14:15], v13, s[44:47], 0 offen sc1")
    a("s_mov_b64 exec, -1")
    endpgm(a)

    a.label("HPATH")
    a("s_memrealtime s[60:61]")
    a.label("HP3")
    a("s_waitcnt lgkmcnt(0)")
    stamp(a, 0)
    srd(a, 28, P_WS, WS_SIZE)
    srd(a, 40, P_SSMK, 512*2048*2)
    a("s_xor_b32 s56, s3, 11")
    a("s_or_b32 s56, s56, s2")
    a("s_cmp_lg_u32 s56, 0")
    a("s_cbranch_scc1 HP4")
    srd(a, 44, P_DBG, 256)
    a("s_or_b32 s60, s60, 1")
    a("v_mov_b32 v14, s60")
    a("v_mov_b32 v15, s61")
    a("s_mov_b64 exec, 1")
    a("buffer_store_dwordx2 v[14:15], v13, s[44:47], 0 offen sc1")
    a("s_mov_b64 exec, -1")
    a.label("HP4")
    a("s_cmp_eq_u32 s3, 10")
    a("s_cbranch_scc1 H10")
    a("s_cmp_eq_u32 s3, 11")
    a("s_cbranch_scc1 H11")
    a("v_lshl_add_u32 v8, v2, 2, v1")
    a("ds_write_b32 v8, v13")
    srd(a, 44, P_DBG, 256)
    a("s_waitcnt lgkmcnt(0)")
    a("s_barrier")
    a("buffer_load_dwordx2 v[14:15], v13, s[44:47], 0 offen sc1")
    barriers(a, 3)
    a("s_waitcnt vmcnt(0)")
    a("v_cmp_ne_u32 vcc, 0, v14")
    a("s_cbranch_vccnz NOK1")
    a("buffer_load_dwordx2 v[14:15], v13, s[44:47], 0 offen sc1")
    a.label("NOK1")
    barriers(a, F0_AT - 3)
    a("s_mov_b32 s63, 0")
    a.nopad += 1
    a.label("LD2P")
    a("s_waitcnt vmcnt(0)")
    a("v_cmp_ne_u32 vcc, 0, v14")
    a("s_cbranch_vccnz LD2Q")
    a("s_add_u32 s63, s63, 1")
    a("v_mov_b32 v14, 1")
    a("s_cmp_gt_u32 s63, 0x40000")
    a("s_cbranch_scc1 LD2Q")
    a("buffer_load_dwordx2 v[14:15], v13, s[44:47], 0 offen sc1")
    a("s_branch LD2P")
    a.label("LD2Q")
    a.nopad -= 1
    publish(a, 0, 48, 49)
    a(f"ds_write_b64 v1, v[14:15] offset:{F_NONCE}")
    a("s_waitcnt lgkmcnt(0)")
    stamp(a, 1)
    a("v_readfirstlane_b32 s60, v14")
    a("v_readfirstlane_b32 s61, v15")
    a("s_lshl_b32 s56, s50, 1")
    barriers(a, 8 - F0_AT)
    if WFM == 0:
        lwait(a, 1, F_QX, 1, 61)
        poll(a, 0, 56, mode=1, sleep=2)
        ladd(a, 1, F_CONV, 54)
    stamp(a, 2)
    lwait(a, 1, F_ST, 8, 61, sleep=1)
    publish(a, 1, 52, 53)
    a("s_barrier")
    lwait(a, 1, F_K1, 1, 61, sleep=4)
    poll(a, 0, 56, mode=1, sleep=2)
    ladd(a, 1, F_K2, 54)
    endpgm(a)
    a.label("H11")
    srd(a, 40, P_WO, 512*512*2)
    a("""
    v_lshlrev_b32 v16, 10, v4
    v_lshl_add_u32 v16, v6, 4, v16
    s_lshl_b32 s56, s49, 14
    s_lshl_b32 s57, s48, 7
    s_add_u32 s56, s56, s57
    s_add_u32 s57, s56, 7168
    v_lshrrev_b32 v17, 5, v2
    v_bfe_u32 v18, v2, 2, 2
    v_lshl_add_u32 v17, v17, 2, v18
    v_lshlrev_b32 v17, 7, v17
    v_bfe_u32 v18, v2, 4, 1
    v_lshl_add_u32 v17, v18, 5, v17
    v_and_b32 v18, 3, v2
    v_lshl_add_u32 v17, v18, 3, v17
    s_lshl_b32 s58, s48, 16
    s_lshr_b32 s59, s49, 1
    s_lshl_b32 s59, s59, 10
    s_add_u32 s58, s58, s59
    s_and_b32 s59, s49, 1
    s_lshl_b32 s59, s59, 9
    s_add_u32 s58, s58, s59
    v_and_b32 v19, 15, v2
    v_lshlrev_b32 v19, 4, v19
    v_lshrrev_b32 v18, 5, v2
    v_lshl_add_u32 v19, v18, 8, v19
    v_bfe_u32 v18, v2, 4, 1
    v_lshl_add_u32 v19, v18, 14, v19
    """)
    a(f"v_add_u32 v17, {L_WT}, v17")
    a(f"s_add_u32 s58, s58, {WS_WOF}")
    a("s_add_u32 s59, s58, 32768")
    a(f"s_mov_b32 m0, {L_WT}")
    a("s_nop 0")
    a("buffer_load_dwordx4 v16, s[40:43], s56 offen lds")
    a("buffer_load_dwordx4 v16, s[40:43], s57 offen offset:1024 lds")
    barriers(a, WOAT + 1)
    a("s_waitcnt vmcnt(0)")
    a("ds_read_b64_tr_b16 v[20:21], v17")
    a("ds_read_b64_tr_b16 v[22:23], v17 offset:1024")
    a("ds_read_b64_tr_b16 v[24:25], v17 offset:64")
    a("ds_read_b64_tr_b16 v[26:27], v17 offset:1088")
    a("s_waitcnt lgkmcnt(0)")
    a(f"buffer_store_dwordx4 v[20:23], v19, {WS}, s58 offen sc1")
    a(f"buffer_store_dwordx4 v[24:27], v19, {WS}, s59 offen sc1")
    if WOE and GB: a("s_barrier")
    srd(a, 40, P_SSMK, 512*2048*2)
    a("s_lshl_b32 s64, s66, 13")
    a("v_and_b32 v8, 1, v2")
    a("v_mul_u32_u24 v8, 8324, v8")
    a(f"v_add_u32 v8, {L_HE[0]}, v8")
    for n in range(WOAT + 1, 9):
        if n == F0_AT: a(f"s_waitcnt vmcnt({8 if HAT < F0_AT else 0})")
        a("s_barrier")
        if n == HAT:
            for q in range(2):
                a(f"s_mov_b32 m0, {L_HE[q]}")
                a(f"s_add_u32 s65, s64, {4096*q}")
                for i in range(4):
                    a(f"buffer_load_dwordx4 v3, s[40:43], s65 offen offset:{1024*i} lds")
    lwait(a, 1, F_QX, 1, 62)
    if E("ODS", 0): a(f"s_sleep {E('ODS', 0)}")
    for q in (1, 0):
        a(f"s_mov_b32 m0, {L_HO[q]}")
        a(f"s_add_u32 s65, s64, {4096*q + 2}")
        for i in range(4):
            a(f"buffer_load_dwordx4 v3, s[40:43], s65 offen offset:{1024*i} lds")
    a("s_waitcnt vmcnt(8)")
    a("ds_read_b32 v9, v8")
    a("s_waitcnt lgkmcnt(0)")
    a("v_lshlrev_b32 v9, 16, v9")
    a("s_mov_b64 exec, 3")
    a(f"ds_write_b32 v8, v9 offset:{L_HO[0] - L_HE[0] - 4}")
    a("s_mov_b64 exec, -1")
    a("s_waitcnt vmcnt(4) lgkmcnt(0)")
    ladd(a, 1, F_CONV + 4, 54)
    a("s_waitcnt vmcnt(0)")
    ladd(a, 1, F_CONV, 54)
    stamp(a, 1)
    endpgm(a)

    a.label("H10")
    for i in range(4): a(f"v_mov_b32 v{32+i}, 0")
    a("s_lshl_b32 s64, s66, 13")
    def hdma():
        for q in range(2):
            a(f"s_mov_b32 m0, {L_HE[q]}")
            a(f"s_add_u32 s65, s64, {4096*q}")
            for i in range(4):
                a(f"buffer_load_dwordx4 v3, s[40:43], s65 offen offset:{1024*i} lds")
    barriers(a, XS_AT + 2)
    for q in range(2):
        a(f"v_add_u32 v8, {L_XR[q]}, v3")
        a("ds_write_b128 v8, v[32:35] offset:4096")
    a("v_lshlrev_b32 v8, 2, v2")
    a(f"v_add_u32 v8, {L_HE[0] - 64}, v8")
    a("s_mov_b64 exec, 0xffff")
    a("ds_write_b32 v8, v32")
    a(f"ds_write_b32 v8, v32 offset:{L_HO[0] - L_HE[0] - 4}")
    a(f"ds_write_b32 v8, v32 offset:{L_HE[1] - L_HE[0]}")
    a(f"ds_write_b32 v8, v32 offset:{L_HO[1] - L_HE[0] - 4}")
    a("s_mov_b64 exec, -1")
    a("s_lshl_b32 s62, s48, 11")
    a(f"s_add_u32 s62, s62, {WS_FL}")
    for n in range(XS_AT + 2, 9):
        a("s_barrier")
        if n == XRP:
            a("s_mov_b32 exec_hi, 0")
            a(f"buffer_load_dwordx2 v[60:61], v12, {WS}, s62 offen sc1")
            a("s_mov_b64 exec, -1")
    nonce_lds(a)
    lwait(a, 1, F_QX, 1, 62)
    a(f"s_sleep {E('XRS', 10)}")
    a("s_mov_b32 exec_hi, 0")
    a(f"buffer_load_dwordx2 v[60:61], v12, {WS}, s62 offen sc1")
    a("s_waitcnt vmcnt(0)")
    a("s_mov_b32 exec_hi, 0")
    a("v_cmp_ne_u64 vcc, s[60:61], v[60:61]")
    a("s_mov_b64 exec, -1")
    a("s_cbranch_vccz F0OK")
    stamp(a, 6)
    poll(a, 0, 48, sleep=E('F0_PS', 2))
    a.label("F0OK")
    stamp(a, 1)
    a(f"s_add_u32 s64, s64, {WS_XR}")
    for q in (1, 0):
        a(f"s_mov_b32 m0, {L_XR[q]}")
        a(f"s_add_u32 s65, s64, {4096*q}")
        for i in range(4):
            a(f"buffer_load_dwordx4 v3, {WS}, s65 offen offset:{1024*i} sc1 lds")
    a("s_waitcnt vmcnt(4)")
    ladd(a, 1, F_CONV + 4, 54)
    a("s_waitcnt vmcnt(0)")
    ladd(a, 1, F_CONV, 54)
    stamp(a, 2)
    a("s_lshl_b32 s64, s48, 18")
    a("s_lshl_b32 s65, s49, 7")
    a("s_add_u32 s64, s64, s65")
    a(f"s_add_u32 s64, s64, {WS_ZT}")
    for i in range(8):
        a(f"v_xor_b32 v8, {i}, v6")
        a("v_lshlrev_b32 v8, 4, v8")
        a(f"v_lshl_add_u32 v{16+i}, v4, 12, v8")
    a("s_barrier")
    a("s_sleep 70")
    lwait(a, 1, F_ZD, 8, 61, sleep=16)
    publish(a, 2, 48, 49)
    a("s_sleep 100")
    poll(a, 2, 48, sleep=16)
    for i in range(8):
        a(f"s_mov_b32 m0, {L_Z + 1024*i}")
        a("s_nop 0")
        a(f"buffer_load_dwordx4 v{16+i}, {WS}, s64 offen sc1 lds")
        a("s_add_u32 s64, s64, 32768")
    a("s_waitcnt vmcnt(0)")
    stamp(a, 4)
    a.label("HEND")
    endpgm(a)

def gen_compute(a):
    a.label("CPATH")
    a.label("C_NN")
    a("""
    v_and_b32 v4, 31, v2
    v_lshrrev_b32 v5, 5, v2
    v_bfe_u32 v63, v2, 1, 3
    v_xor_b32 v63, v63, v5
    s_and_b32 s56, s3, 1
    s_lshl_b32 s56, s56, 12
    v_lshlrev_b32 v61, 7, v4
    v_add_u32 v61, s56, v61
    """)
    for st in range(4):
        a(f"v_xor_b32 v60, {2*st}, v63")
        a(f"v_lshl_add_u32 v{56+st}, v60, 4, v61")
    a("""
    v_bfe_u32 v61, v2, 2, 2
    v_lshl_add_u32 v62, v5, 3, v61
    v_lshlrev_b32 v60, 8, v62
    v_bfe_u32 v63, v2, 4, 1
    v_lshl_add_u32 v60, v63, 5, v60
    v_and_b32 v63, 3, v2
    v_lshl_add_u32 v60, v63, 3, v60
    s_lshr_b32 s56, s3, 1
    v_xor_b32 v63, s56, v61
    v_lshl_add_u32 v60, v63, 6, v60
    """)
    a(f"v_add_u32 v60, {L_RING}, v60")
    for i in range(32): a(f"v_mov_b32 v{64+i}, 0")
    a("""
    s_lshl_b32 s56, s52, 2
    s_and_b32 s57, s3, 2
    s_add_u32 s56, s56, s57
    s_lshl_b32 s56, s56, 6
    s_lshl_b32 s57, s53, 1
    s_add_u32 s56, s56, s57
    s_and_b32 s57, s3, 1
    s_add_u32 s64, s56, s57
    s_lshl_b32 s56, s64, 11
    s_mov_b32 s59, 0xffff0000
    """)
    a("s_waitcnt lgkmcnt(0)")
    stamp(a, 0)
    a("v_lshlrev_b32 v11, 4, v4")
    a(f"v_add_u32 v11, {L_A1 + 17408}, v11")
    srd(a, 28, P_WS, WS_SIZE)
    srd(a, 32, P_Q, 2048*512*2)
    srd(a, 36, P_OUT, 2048*1024*2)
    a(f"s_lshl_b32 s67, s66, 2")
    a(f"s_load_dword s68, s[{P_SSMD}:{P_SSMD+1}], s67")
    a("""
    s_lshl_b32 s57, s3, 10
    v_lshlrev_b32 v10, 9, v5
    v_lshl_add_u32 v10, v4, 2, v10
    v_add_u32 v10, s57, v10
    v_add_u32 v0, s57, v3
    s_sub_u32 s57, 7, s3
    v_and_b32 v12, 7, v4
    v_xor_b32 v12, s57, v12
    v_lshlrev_b32 v12, 4, v12
    v_lshl_add_u32 v12, v4, 8, v12
    v_lshlrev_b32 v9, 3, v5
    v_sub_u32 v12, v12, v9
    s_lshl_b32 s57, s3, 2
    v_lshrrev_b32 v8, 4, v2
    v_add_u32 v8, s57, v8
    v_xor_b32 v8, v8, v2
    v_and_b32 v8, 7, v8
    v_lshlrev_b32 v8, 4, v8
    v_lshrrev_b32 v9, 3, v2
    v_lshl_add_u32 v8, v9, 12, v8
    s_lshl_b32 s65, s48, 18
    s_lshl_b32 s57, s3, 15
    s_add_u32 s65, s65, s57
    s_sub_u32 s57, 31, s49
    s_lshl_b32 s57, s57, 7
    s_add_u32 s65, s65, s57
    v_mov_b32 v54, 1
    """)
    a(f"v_add_u32 v10, {L_A1}, v10")
    a(f"v_add_u32 v12, {L_A1S + 8}, v12")
    a(f"v_add_u32 v0, {L_A1S}, v0")
    a(f"s_add_u32 s65, s65, {WS_XR}")
    a("""
    v_and_b32 v7, 0x33, v2
    v_bfe_u32 v6, v2, 2, 1
    v_lshl_or_b32 v7, v6, 3, v7
    v_bfe_u32 v6, v2, 3, 1
    v_lshl_or_b32 v7, v6, 2, v7
    v_lshlrev_b32 v7, 4, v7
    v_lshlrev_b32 v61, 7, v62
    v_bfe_u32 v63, v2, 4, 1
    v_lshl_add_u32 v61, v63, 5, v61
    v_lshlrev_b32 v9, 17, v63
    v_and_b32 v63, 3, v2
    v_lshl_add_u32 v61, v63, 3, v61
    v_bfe_u32 v63, v2, 3, 1
    s_lshr_b32 s58, s3, 1
    v_xor_b32 v63, s58, v63
    v_lshl_add_u32 v61, v63, 6, v61
    v_lshl_add_u32 v9, v5, 8, v9
    v_and_b32 v6, 15, v2
    v_lshl_add_u32 v9, v6, 4, v9
    """)
    a(f"v_add_u32 v61, {L_RING}, v61")
    a(f"s_add_u32 s56, s56, {WS_KV}")
    a("s_add_u32 s57, s56, 131072")
    KR = 128; VR = 135; SK = 140; KP = 144; TP = 158;
    def a1_reads():
        a("s_waitcnt lgkmcnt(3)")
        a(f"ds_read_b128 {vr(SK,4)}, v11")
        for r in range(7): a(f"ds_read_b32 v{KR+r}, v10 offset:{(5+r)*128}")
        for r in range(4): a(f"ds_read_b32 v{VR+r}, v10 offset:{9216 + r*128}")
    def a1_ops():
        L = []
        for r in range(7):
            L.append(f"v_lshlrev_b32 v{KP+2*r}, 16, v{KR+r}")
            L.append(f"v_and_b32 v{KP+2*r+1}, s59, v{KR+r}")
        for j in range(4):
            for c in range(2):
                src = SK + 2*c + (j >> 1)
                L.append(f"v_and_b32 v{TP+2*j+c}, s59, v{src}" if j & 1 else f"v_lshlrev_b32 v{TP+2*j+c}, 16, v{src}")
        for r in range(4):
            L.append(f"v_pk_mul_f32 {vr(KP+2*r,2)}, {vr(KP+2*r,2)}, {vr(TP+6,2)}")
            L.append(f"v_pk_fma_f32 {vr(KP+2*r,2)}, {vr(KP+2*r+2,2)}, {vr(TP+4,2)}, {vr(KP+2*r,2)}")
            L.append(f"v_pk_fma_f32 {vr(KP+2*r,2)}, {vr(KP+2*r+4,2)}, {vr(TP+2,2)}, {vr(KP+2*r,2)}")
            L.append(f"v_pk_fma_f32 {vr(KP+2*r,2)}, {vr(KP+2*r+6,2)}, {vr(TP,2)}, {vr(KP+2*r,2)}")
        for r in range(4):
            L.append(f"v_lshlrev_b32 v{TP+2*r}, 16, v{VR+r}")
            L.append(f"v_and_b32 v{TP+2*r+1}, s59, v{VR+r}")
            L.append(f"v_pk_mul_f32 {vr(KP+2*r,2)}, {vr(KP+2*r,2)}, {vr(TP+2*r,2)}")
        for c in range(2):
            L.append(f"v_cvt_pk_bf16_f32 v{KR+2*c}, v{KP+6+c}, v{KP+4+c}")
            L.append(f"v_cvt_pk_bf16_f32 v{KR+2*c+1}, v{KP+2+c}, v{KP+c}")
            L.append(f"ds_write_b64 v12, {vr(KR+2*c,2)} offset:{128*c}")
        return L
    a("s_cmp_ge_u32 s3, 4")
    a("s_cbranch_scc1 VPATH")
    FS = [16, 96]
    def p1_reads(c):
        xo = c*8192; wo = (c & 3)*16384
        for st in range(4):
            b = FS[c & 1] + 8*st
            a(f"ds_read_b128 {vr(b,4)}, v{56+st} offset:{xo}")
            a(f"ds_read_b64_tr_b16 {vr(b+4,2)}, v60 offset:{wo + 16*st*256}")
            a(f"ds_read_b64_tr_b16 {vr(b+6,2)}, v60 offset:{wo + (16*st+4)*256}")
    def p1_mfma(c, isv, fl=None):
        for st in range(4):
            if fl and st:
                for _ in range(7):
                    if fl: a(fl.pop(0))
            b = FS[c & 1] + 8*st
            x = vr(b,4); w = vr(b+4,4)
            if isv: a(f"v_mfma_f32_32x32x16_bf16 v[64:79], {x}, {w}, v[64:79]")
            else:   a(f"v_mfma_f32_32x32x16_bf16 v[64:79], {w}, {x}, v[64:79]")
    def pass1(isv):
        fl = a1_ops()
        for c in range(8):
            if c == F0_AT: a("s_waitcnt vmcnt(0)")
            a("s_barrier")
            dstamp(a, 1 + c)
            if c in (0, 4): stamp(a, 2 + c//4)
            if c == XS_AT: a("ds_read_b128 v[48:51], v0")
            p1_reads(c)
            if c: p1_mfma(c - 1, isv, fl if c >= 3 else None)
            if c == 2: a1_reads()
            if c == 3:
                for _ in range(7 if XS_AT > 4 else 99):
                    if fl: a(fl.pop(0))
            if c == XS_AT - 1:
                while fl: a(fl.pop(0))
            if c == XS_AT:
                a("s_waitcnt lgkmcnt(12)")
                a(f"buffer_store_dwordx4 v[48:51], v8, {WS}, s65 offen sc1")
            a("s_waitcnt lgkmcnt(0)")
        if F0_AT == 8: a("s_waitcnt vmcnt(0)")
        a("s_barrier")
    pass1(False)
    P2B = [16, 24, 32, 40, 128, 136]
    lg2 = Cnt(a, "lgkmcnt", 15)
    def p2_read1(n):
        j = n >> 3; st = n & 7
        b = P2B[n % 6]
        if st == 0 and j:
            u = uid()
            lg2.wait(f"f{j}")
            a.nopad += 1
            a(f"v_cmp_gt_u32 vcc, {j}, v55")
            a(f"s_cbranch_vccz P2X{u}")
            a.label(f"P2W{u}")
            a(f"ds_read_b32 v55, v1 offset:{F_W}")
            a("s_waitcnt lgkmcnt(0)")
            a(f"v_cmp_gt_u32 vcc, {j}, v55")
            a(f"s_cbranch_vccnz P2W{u}")
            a.label(f"P2X{u}")
            a.nopad -= 1
        lg2.op(f"ds_read_b128 {vr(b,4)}, v{56+(st&3)} offset:{(2*j + (st>>2))*8192}", f"s{n}")
        lg2.op(f"ds_read_b64_tr_b16 {vr(b+4,2)}, v61 offset:{j*16384 + (16*st)*128}", f"s{n}")
        lg2.op(f"ds_read_b64_tr_b16 {vr(b+6,2)}, v61 offset:{j*16384 + (16*st + 4)*128}", f"s{n}")
        if st == 4 and j < 3: lg2.op(f"ds_read_b32 v55, v1 offset:{F_W}", f"f{j+1}")
    a("s_setprio 2")
    dstamp(a, 9)
    for n in range(4): p2_read1(n)
    p1_mfma(7, False)
    for n in range(32):
        if f"s{n}" in lg2.ops: lg2.wait(f"s{n}")
        b = P2B[n % 6]
        a(f"v_mfma_f32_32x32x16_bf16 v[80:95], {vr(b+4,4)}, {vr(b,4)}, v[80:95]")
        if n + 4 < 32: p2_read1(n + 4)
        if n in (KST, KST + 1):
            hh = n - KST
            for p in range(4):
                a(f"v_cvt_pk_bf16_f32 v{[48,160][hh]+p}, v{64+8*hh+2*p}, v{64+8*hh+2*p+1}")
            a(f"buffer_store_dwordx4 {vr([48,160][hh],4)}, v7, {WS}, s{56+hh} offen sc1")
    ladd(a, 1, F_P2D, 54)
    qs = f32bits(0.25 * math.log2(math.e))
    a(f"s_mov_b32 s58, {qs:#x}")
    a("s_lshl_b32 s56, s64, 10")
    a(f"s_add_u32 s56, s56, {WS_QF}")
    a("s_add_u32 s57, s56, 65536")
    a("s_nop 6")
    for hh in range(2):
        for i in range(8): a(f"v_mul_f32 v{80+8*hh+i}, s58, v{80+8*hh+i}")
        for p in range(4):
            a(f"v_cvt_pk_bf16_f32 v{96+4*hh+p}, v{80+8*hh+2*p}, v{80+8*hh+2*p+1}")
        a(f"buffer_store_dwordx4 {vr(96+4*hh,4)}, v3, {WS}, s{56+hh} offen sc1")
    a("s_setprio 0")
    stamp(a, 4)
    a("s_branch WIN1")

    a.label("VPATH")
    pass1(True)
    p1_mfma(7, True)
    a("s_nop 7")
    lwait(a, 1, F_QX, 1, 55)
    for j in range(2):
        for p in range(4):
            a(f"v_cvt_pk_bf16_f32 v{16+4*j+p}, v{64+8*j+2*p}, v{64+8*j+2*p+1}")
        a(f"buffer_store_dwordx4 {vr(16+4*j,4)}, v9, {WS}, s56 offen offset:{1024 + 512*j} sc1")
    stamp(a, 4)

    a.label("WIN1")
    AL = 80; AB = 84
    WF = 104
    Q = 4; KF = 8; V = 12; IDX = 28; AK = 29; AV = 30; S = 32; O = 64; NM = 80
    C0 = 136
    FA = 104
    FB = [48, 52, 56, 60, 88, 92, 32, 36]
    a("""
    s_mov_b32 s59, 0xffff0000
    s_lshr_b32 s64, s3, 2
    s_and_b32 s65, s3, 3
    v_and_b32 v6, 1, v2
    v_and_b32 v4, 15, v2
    v_lshrrev_b32 v5, 4, v2
    """)
    a(f"v_mul_u32_u24 v6, {L_HO[0] - 32 - (L_HE[0] - 30)}, v6")
    a(f"v_sub_u32 v6, {L_HO[0] - 32}, v6")
    a("v_lshl_add_u32 v6, v4, 1, v6")
    a("v_lshl_add_u32 v6, v5, 4, v6")
    a("s_mul_i32 s56, s64, 8324")
    a("s_lshl_b32 s57, s65, 7")
    a("s_add_u32 s56, s56, s57")
    a(f"v_add_u32 v{AL}, s56, v6")
    for k in range(1, 4): a(f"v_add_u32 v{AL+k}, {1024*k}, v{AL}")
    a("v_lshlrev_b32 v6, 1, v4")
    a("v_sub_u32 v6, v5, v6")
    a("v_lshlrev_b32 v6, 4, v6")
    a("s_mul_i32 s56, s64, 7680")
    a("s_add_u32 s57, s56, s57")
    a(f"s_add_u32 s57, s57, {L_XR[0] + 30*16}")
    a(f"v_add_u32 v{AB}, s57, v6")
    a("v_mov_b32 v0, 1")
    a("s_lshl_b32 s57, s64, 2")
    a("v_add_u32 v85, s57, v1")
    fil = Asm()
    f = fil
    f("s_lshl_b32 s57, s3, 13")
    f(f"s_add_u32 s57, s57, {L_RED}")
    f("""
    v_bfe_u32 v6, v2, 5, 1
    v_lshlrev_b32 v6, 7, v6
    v_xor_b32 v40, v3, v6
    v_add_u32 v40, s57, v40
    v_bfe_u32 v44, v2, 1, 4
    v_and_b32 v6, 1, v2
    v_lshlrev_b32 v7, 3, v6
    v_xor_b32 v44, v44, v7
    v_lshl_add_u32 v44, v6, 5, v44
    v_lshlrev_b32 v44, 4, v44
    v_lshrrev_b32 v6, 5, v2
    v_lshl_add_u32 v44, v6, 10, v44
    s_lshl_b32 s57, s65, 11
    s_lshl_b32 s58, s64, 15
    s_add_u32 s57, s57, s58
    """)
    f(f"s_add_u32 s57, s57, {L_RED}")
    f("""
    v_add_u32 v44, s57, v44
    s_lshl_b32 s57, s65, 6
    s_sub_u32 s57, 255, s57
    v_sub_u32 v45, s57, v2
    v_lshlrev_b32 v45, 4, v45
    """)
    f(f"s_add_u32 s56, s56, {L_XR[0]}")
    f("""
    v_add_u32 v45, s56, v45
    s_lshl_b32 s57, s64, 4
    s_lshr_b32 s58, s68, s57
    s_lshl_b32 s58, s58, 16
    s_lshl_b32 s56, s66, 1
    s_add_u32 s56, s56, s64
    s_lshl_b32 s56, s56, 12
    s_lshl_b32 s57, s65, 10
    s_add_u32 s56, s56, s57
    """)
    f(f"s_add_u32 s56, s56, {WS_ZT}")
    f("""
    s_lshl_b32 s55, s50, 3
    s_add_u32 s55, s55, s3
    s_lshl_b32 s55, s55, 14
    """)
    f(f"s_add_u32 s55, s55, {WS_WOF}")
    f("""
    v_lshrrev_b32 v46, 3, v2
    v_and_b32 v7, 7, v2
    v_lshlrev_b32 v46, 10, v46
    v_lshl_add_u32 v46, v7, 4, v46
    s_lshl_b32 s64, s49, 16
    s_lshl_b32 s57, s3, 13
    s_add_u32 s64, s64, s57
    s_lshl_b32 s57, s48, 7
    s_add_u32 s64, s64, s57
    """)
    f("v_and_b32 v31, 27, v2")
    f("v_cmp_eq_u32 vcc, 16, v31")
    f("v_mov_b32 v31, 0x3f803f80")
    f(f"v_mov_b32 v{IDX}, 0xdddd")
    f(f"v_cndmask_b32 v{V}, 0, v31, vcc")
    for i in range(1, 16): f(f"v_mov_b32 v{V+i}, v{V}")
    f("s_mov_b32 s66, 0xffff")
    f("s_mov_b32 s67, 0xffff")
    f("s_mov_b32 s68, 0")
    f(f"s_mov_b32 s69, {(1<<1)|(1<<2)|(1<<8)}")
    f("s_lshl_b32 s57, s3, 10")
    f(f"s_add_u32 s57, s57, {L_Q}")
    f(f"v_add_u32 v47, s57, v3")
    f(f"v_mov_b32 v{AK}, v3")
    f("v_and_b32 v31, 15, v2")
    f("v_lshlrev_b32 v31, 4, v31")
    f(f"v_lshrrev_b32 v{AV}, 5, v2")
    f(f"v_lshl_add_u32 v{AV}, v{AV}, 8, v31")
    f(f"v_add_u32 v{AV}, 1024, v{AV}")
    for i in range(16): f(f"v_mov_b32 v{O+i}, 0")
    f("s_mov_b32 s65, 0")
    fl = [l for l, _ in fil.l]
    if E("FILL", 0) == 0:
        while fl: a(fl.pop(0))
    stamp(a, 5)
    fstamp(a, 1)
    def try_st(force=False):
        u = uid()
        if force: a("s_cmp_lg_u32 s63, 0")
        else:
            a("s_getreg_b32 s57, hwreg(HW_REG_IB_STS, 0, 4)")
            a("s_or_b32 s57, s57, s63")
        a(f"s_cbranch_scc1 TS{u}")
        a("s_waitcnt vmcnt(0)")
        ladd(a, 1, F_ST, 0)
        a("s_mov_b32 s63, 1")
        a.label(f"TS{u}")
    if ST_AT == -1:
        a("s_waitcnt vmcnt(0)")
        ladd(a, 1, F_ST, 0)
    if ST_AT == -2:
        a("s_mov_b32 s63, 0")
        a.label("CVW")
        try_st()
        a(f"ds_read_b32 v86, v85 offset:{F_CONV}")
        a("s_waitcnt lgkmcnt(0)")
        a("v_cmp_gt_u32 vcc, 2, v86")
        a("s_cbranch_vccnz CVW")
    else:
        lwait(a, 85, F_CONV, 2, 86)
    fstamp(a, 2)
    stamp(a, 6)
    per = -(-len(fl) // 56)
    def fill():
        for _ in range(per):
            if fl: a(fl.pop(0))
    lg = Cnt(a, "lgkmcnt", 15)
    def rA(i, j):
        o = 128*(j & 1) + 16*i
        lg.op(f"ds_read2_b32 {vr(FA+4*j,2)}, v{AL+(j>>1)} offset0:{o} offset1:{o+1}", f"A{i}{j}")
        lg.op(f"ds_read2_b32 {vr(FA+4*j+2,2)}, v{AL+(j>>1)} offset0:{o+2} offset1:{o+3}", f"A{i}{j}")
    def rB(i, T):
        lg.op(f"ds_read_b128 {vr(FB[T],4)}, v{AB} offset:{512*(7-T) + 64*i}", f"B{i}{T}")
    def need(tag):
        if tag in lg.ops: lg.wait(tag)
    def mm(i, j, T):
        need(f"A{i}{j}"); need(f"B{i}{T}")
        d = vr(C0 + 4*(j+T), 4)
        first = (i == 0 and j == 0)
        a(f"v_mfma_f32_16x16x32_bf16 {d}, {vr(FA+4*j,4)}, {vr(FB[T],4)}, {0 if first else d}")
        fill()
    rA(0, 0)
    for T in range(8): rB(0, T)
    rA(0, 1); rA(0, 2)
    nmm = 0
    def stblock(i):
        u = uid()
        if ST_AT != ST_AV:
            a("s_cmp_lt_u32 s3, 4")
            a(f"s_cbranch_scc{0 if i == ST_AT else 1} STS{u}")
        a("s_waitcnt vmcnt(0) lgkmcnt(0)")
        ladd(a, 1, F_ST, 0)
        a("s_waitcnt lgkmcnt(0)")
        a.label(f"STS{u}")
    for j in range(8):
        for T in range(8 - j): mm(0, j, T)
        if j + 3 < 8: rA(0, j + 3)
        rB(1, 7 - j)
        if j >= 5: rA(1, j - 5)
        if j == 4: lg.op(f"ds_read_b32 v86, v1 offset:{F_P2D}", "p")
        if j in (ST_AT, ST_AV): stblock(j)
        if ST_AT == -2 and j in (0, 1, 2, 3, 5): try_st()
    assert not fl
    need("p")
    lwait(a, 1, F_P2D, 4, 86, pre=True)
    def wr(U_): lg.op(f"ds_write_b128 v40, {vr(C0+4*U_,4)} offset:{U_*1024}", "w")
    for j in range(8):
        order = range(7 - j, -1, -1) if j == 0 else range(8 - j)
        for T in order: mm(1, j, T)
        if j + 3 < 8: rA(1, j + 3)
        if j == 1: lg.op("ds_read_b128 v[36:39], v45", "kv")
        if j == 2: wr(0); wr(1)
        if j in (3, 4): wr(j - 1)
        if 8 + j in (ST_AT, ST_AV): stblock(8 + j)
        if ST_AT == -2 and j in (0, 1, 2, 4): try_st()
    fstamp(a, 5)
    lg.wait("kv") if "kv" in lg.ops else None
    for d in range(4):
        a(f"v_lshlrev_b32 v{Q+7-2*d}, 16, v{36+d}")
        a(f"v_and_b32 v{Q+6-2*d}, s59, v{36+d}")
        if d == 1: wr(4); wr(5)
    wr(6); wr(7)
    for i in range(8): a(f"v_mov_b32 v{S+16+8+i}, 0")
    a("v_mov_b32 v96, v46")
    a("s_waitcnt lgkmcnt(0)")
    fstamp(a, 8)
    ladd(a, 85, F_C1, 0)
    if ST_AT == -2: try_st(True)
    lwait(a, 85, F_C1, 4, 86)
    fstamp(a, 9)
    stamp(a, 7)
    R = 104
    for src in range(4):
        a(f"ds_read_b128 {vr(R+8*src,4)}, v44 offset:{src*8192}")
        a(f"ds_read_b128 {vr(R+4+8*src,4)}, v44 offset:{src*8192 + 256}")
    a("s_waitcnt lgkmcnt(6)")
    for i in range(8): a(f"v_fmac_f32 v{R+i}, s58, v{Q+i}")
    for src in range(1, 4):
        a(f"s_waitcnt lgkmcnt({6 - 2*src})")
        for i in range(8): a(f"v_add_f32 v{R+i}, v{R+i}, v{R+8*src+i}")
    for i in range(4): a(f"v_cvt_pk_bf16_f32 v{100+i}, v{R+2*i}, v{R+1+2*i}")
    a(f"buffer_store_dwordx4 v[100:103], v3, {WS}, s56 offen sc1")
    a.label("RUN1")
    stamp(a, 8)
    fstamp(a, 12)
    a("s_barrier")
    fstamp(a, 13)
    stamp(a, 9)
    a(f"ds_read_b128 {vr(Q,4)}, v47")
    a("s_mov_b64 exec, 1")
    a(f"ds_add_u32 v1, v0 offset:{F_QRD}")
    a("s_mov_b64 exec, -1")
    def prolog(cin):
        a(f"ds_read_b128 {vr(KF,4)}, v3")
        a("s_mov_b64 exec, s[66:67]")
        a(f"ds_read_b128 {vr(V,4)}, v{AV}")
        a(f"ds_read_b128 {vr(V+4,4)}, v{AV} offset:512")
        a(f"ds_read_b128 {vr(V+12,4)}, v{AV} offset:512")
        a("s_mov_b64 exec, -1")
        a("s_waitcnt lgkmcnt(3)")
        a(f"v_mfma_f32_32x32x16_bf16 {vr(S,16)}, {vr(KF,4)}, {vr(Q,4)}, {cin}")
        a(f"ds_read_b128 {vr(KF,4)}, v{AK} offset:2048")
        a("s_waitcnt lgkmcnt(1)")
        a("s_nop 9")
    prolog("0")
    a.nopad += 1
    if E("ALN", 6): a.raw(f".p2align {E('ALN', 6)}")
    for _ in range(E("ALO", 0)): a("s_nop 0")
    U = 8
    def tile(u, wf=None, cin="0", last=None, mid=None):
        c = u & 1; p = c ^ 1
        Sc = S + 16*c; Sp = S + 16*p
        def ex(i): a(f"v_exp_f32 v{Sc+i}, v{Sc+i}")
        def wl(st):
            a(f"buffer_load_dwordx4 {vr(WF+4*st,4)}, v3, {WS}, s55 offen offset:{1024*(st&3)} sc1")
            if st % 4 == 3: a("s_add_u32 s55, s55, 4096")
        a(f"s_setprio {3-(u&3)}")
        ex(0); ex(1)
        a(f"v_smfmac_f32_32x32x32_bf16 {vr(O,16)}, {vr(V+8*p+4,4)}, {vr(Sp+8,8)}, v{IDX}")
        a("s_mov_b64 exec, s[66:67]")
        a(f"ds_read_b128 {vr(V+8*p,4)}, v{AV} offset:{(u+1)*2048}")
        a(f"ds_read_b128 {vr(V+8*p+4,4)}, v{AV} offset:{(u+1)*2048+512}")
        a("s_mov_b64 exec, -1")
        ex(2); ex(3); ex(4)
        a("s_waitcnt lgkmcnt(2)")
        a(f"v_mfma_f32_32x32x16_bf16 {vr(Sp,16)}, {vr(KF,4)}, {vr(Q,4)}, {cin}")
        a(f"ds_read_b128 {vr(KF,4)}, v{AK} offset:{(u+2)*2048}")
        if wf is not None: wl(2*wf)
        if mid: mid()
        for i in range(5, 10): ex(i)
        a(f"v_smfmac_f32_32x32x32_bf16 {vr(O,16)}, {vr(V+8*c,4)}, {vr(Sc,8)}, v{IDX}")
        if wf is not None: wl(2*wf + 1)
        if last: last()
        for i in range(10, 16): ex(i)
    def samp(off): return lambda: a(f"ds_read_b32 v97, v1 offset:{off}")
    def chk(n, lab):
        def f():
            a(f"v_cmp_gt_u32 vcc, {n}, v97")
            a(f"s_cbranch_vccnz {lab}")
            a.label(lab + "R")
        return f
    def zd():
        a("s_waitcnt vmcnt(0)")
        ladd(a, 1, F_ZD, 0)
    def ql(): a("buffer_load_dwordx4 v[100:103], v96, s[32:35], s64 offen")
    for u in range(24):
        tile(u, wf=(u - 16 if u >= 16 else None),
             mid={2: samp(F_K1), 12: zd, 13: ql, 14: samp(F_K2)}.get(u),
             last={3: chk(1, "CK1"), 15: chk(2, "CK2")}.get(u))
    a(f"v_add_u32 v{AK}, {24*2048}, v{AK}")
    a(f"v_add_u32 v{AV}, {24*2048}, v{AV}")
    a.raw(".p2align 6")
    a.label("LOOP")
    def lend():
        a("s_add_u32 s65, s65, 1")
        a("s_cmp_lt_u32 s65, 5")
    for u in range(U): tile(u, last=lend if u == U-1 else None)
    a(f"v_add_u32 v{AK}, {U*2048}, v{AK}")
    a(f"v_add_u32 v{AV}, {U*2048}, v{AV}")
    a("s_cbranch_scc1 LOOP")
    a.nopad -= 1
    a.label("LEXIT")
    a(f"v_smfmac_f32_32x32x32_bf16 {vr(O,16)}, {vr(V+8+4,4)}, {vr(S+16+8,8)}, v{IDX}")
    a("s_setprio 0")
    a(f"ds_read_b64 v[98:99], v1 offset:{F_NONCE}")
    a("""
    s_lshl_b32 s56, s51, 3
    s_add_u32 s56, s56, s3
    s_lshl_b32 s56, s56, 5
    s_add_u32 s56, s56, s54
    s_lshl_b32 s55, s56, 6
    s_lshl_b32 s56, s56, 10
    """)
    a(f"s_add_u32 s55, s55, {WS_FL + 3*16384}")
    a(f"s_add_u32 s64, s56, {WS_OF}")
    a(f"s_mov_b32 s56, {f32bits(2.0**100):#x}")
    a(f"s_mov_b32 s57, {f32bits(2.0**40):#x}")
    a(f"s_mov_b32 s58, {f32bits(2.0**-40):#x}")
    a("s_waitcnt lgkmcnt(0)")
    a(f"v_rcp_f32 v{AK}, v{O+8}")
    a("s_cmp_lg_u32 s68, 0")
    a("s_cbranch_scc1 FIN")
    a(f"v_add_f32 v31, abs(v{O}), abs(v{O+1})")
    for i in range(2, 8): a(f"v_add_f32 v31, v31, abs(v{O+i})")
    a("v_cmp_ngt_f32 vcc, s56, v31")
    a(f"v_cmp_ngt_f32 s[62:63], s57, v{O+8}")
    a(f"v_cmp_nlt_f32 s[70:71], s58, v{O+8}")
    a("s_or_b64 s[62:63], s[62:63], s[70:71]")
    a("s_or_b64 s[62:63], vcc, s[62:63]")
    a("s_cbranch_scc1 FALLBACK")
    a.label("FIN")
    for i in range(8): a(f"v_mul_f32 v{O+i}, v{O+i}, v{AK}")
    for i in range(4): a(f"v_cvt_pk_bf16_f32 v{KF+i}, v{O+2*i}, v{O+2*i+1}")
    a(f"buffer_store_dwordx4 {vr(KF,4)}, v3, {WS}, s64 offen sc1")
    stamp(a, 10)
    a("s_waitcnt vmcnt(1)")
    a("s_barrier")
    stamp(a, 11)
    a("""
    v_lshrrev_b32 v4, 3, v2
    v_and_b32 v5, 7, v2
    v_xor_b32 v6, s3, v5
    v_lshlrev_b32 v6, 4, v6
    v_lshl_add_u32 v6, v5, 10, v6
    v_lshl_add_u32 v6, v4, 1, v6
    """)
    a(f"v_add_u32 v6, {L_Z}, v6")
    for jj in range(8): a(f"ds_read_u16_d16_hi v{32+jj}, v6 offset:{128*jj}")
    a("""
    v_lshlrev_b32 v7, 11, v4
    v_lshl_add_u32 v7, v5, 4, v7
    s_lshl_b32 s64, s49, 17
    s_lshl_b32 s57, s3, 14
    s_add_u32 s64, s64, s57
    s_lshl_b32 s57, s48, 7
    s_add_u32 s64, s64, s57
    v_and_b32 v14, 15, v2
    v_lshrrev_b32 v15, 4, v2
    v_lshlrev_b32 v13, 4, v14
    v_lshl_add_u32 v13, v15, 9, v13
    v_and_b32 v12, 1, v15
    v_lshl_add_u32 v14, v12, 4, v14
    v_lshlrev_b32 v14, 11, v14
    v_lshrrev_b32 v15, 1, v15
    v_lshl_add_u32 v14, v15, 4, v14
    s_lshl_b32 s56, s48, 3
    s_add_u32 s56, s56, s51
    s_lshl_b32 s56, s56, 16
    s_lshl_b32 s57, s3, 5
    s_add_u32 s56, s56, s57
    s_lshl_b32 s57, s50, 8
    s_add_u32 s56, s56, s57
    s_add_u32 s56, s56, 1024
    v_mov_b32 v12, 0
    """)
    for p in range(4):
        a(f"v_lshlrev_b32 v{40+2*p}, 16, v{100+p}")
        a(f"v_and_b32 v{41+2*p}, s59, v{100+p}")
    a("s_waitcnt lgkmcnt(0)")
    for i in range(8):
        a(f"v_and_b32 v{32+i}, s59, v{32+i}")
        a(f"v_mul_f32 v{32+i}, v{32+i}, v{40+i}")
    for i in range(4): a(f"v_cvt_pk_bf16_f32 v{100+i}, v{32+2*i}, v{33+2*i}")
    a("s_waitcnt vmcnt(0)")
    a("s_mov_b64 exec, 1")
    a(f"buffer_store_dwordx2 v[98:99], v12, {WS}, s55 offen sc1")
    a("s_mov_b64 exec, -1")
    a(f"buffer_store_dwordx4 v[100:103], v7, s[36:39], s64 offen {os.environ.get('A3F','')}")
    a(f"v_add_u32 v5, {F_GQ}, v1")
    a("s_mov_b32 s65, 0")
    a.nopad += 1
    a.label("GQ")
    a("ds_read_b32 v4, v5")
    a("s_waitcnt lgkmcnt(0)")
    a.label("GQ2")
    a("v_readfirstlane_b32 s57, v4")
    a("s_cmp_eq_u32 s57, 0")
    a("s_cbranch_scc1 GQ")
    a("s_lshl_b32 s58, s57, 10")
    a("v_add_u32 v6, s58, v13")
    a("ds_read_b32 v4, v5 offset:4")
    for st in range(2):
        for m in range(2):
            a(f"ds_read_b128 {vr(16+8*st+4*m,4)}, v6 offset:{2048*st + 256*m}")
    a("v_add_u32 v5, 4, v5")
    a("s_add_u32 s65, s65, 1")
    a("s_cmp_gt_u32 s57, 16")
    a("s_cbranch_scc1 GH")
    for g in (0, 1, 2):
        a(f"s_cmp_eq_u32 s57, {4*g+4}")
        a(f"s_cbranch_scc1 GC{g}")
    def gcase(g, last=False):
        a.label(f"GC{g}")
        for st in range(2):
            for m in range(2):
                a(f"s_waitcnt lgkmcnt({3 - 2*st - m})")
                d = vr(32+8*g+4*m,4)
                a(f"v_mfma_f32_16x16x32_bf16 {d}, {vr(WF+4*(2*g+st),4)}, {vr(16+8*st+4*m,4)}, {d if st else 0}")
        a("s_cmp_lt_u32 s65, 8")
        a("s_cbranch_scc1 GQ2")
        if not last: a("s_branch GE")
    gcase(3)
    a.label("GH")
    for g in (4, 5, 6):
        a(f"s_cmp_eq_u32 s57, {4*g+4}")
        a(f"s_cbranch_scc1 GC{g}")
    for g in (7, 0, 1, 2, 4, 5): gcase(g)
    gcase(6, True)
    a.label("GE")
    a.nopad -= 1
    stamp(a, 12)
    a("s_nop 7")
    for step in (1, 2, 4):
        for g in range(0, 8, 2*step):
            for i in range(0, 8, 2):
                a(f"v_pk_add_f32 {vr(32+8*g+i,2)}, {vr(32+8*g+i,2)}, {vr(32+8*(g+step)+i,2)}")
    for m in range(2):
        a(f"v_cvt_pk_bf16_f32 v{16+2*m}, v{32+4*m}, v{33+4*m}")
        a(f"v_cvt_pk_bf16_f32 v{17+2*m}, v{34+4*m}, v{35+4*m}")
    a("s_nop 1")
    a("v_permlane16_swap_b32 v16, v18")
    a("v_permlane16_swap_b32 v17, v19")
    a(f"buffer_store_dwordx4 v[16:19], v14, s[36:39], s56 offen {os.environ.get('OUTF','')}")
    stamp(a, 13)
    endpgm(a)
    a.label("CK1")
    lwait(a, 1, F_K1, 1, 97)
    a("s_branch CK1R")
    a.label("CK2")
    lwait(a, 1, F_K2, 2, 97)
    a("s_branch CK2R")

    a.nopad += 1
    a.label("FALLBACK")
    a("s_mov_b32 s68, 1")
    a(f"v_mov_b32 v{AK}, v3")
    a(f"v_mov_b32 v31, {f32bits(float('-inf')):#x}")
    a("s_mov_b32 s65, 0")
    a.label("MAXL")
    a(f"ds_read_b128 {vr(KF,4)}, v{AK}")
    a(f"v_add_u32 v{AK}, 2048, v{AK}")
    a("s_waitcnt lgkmcnt(0)")
    a(f"v_mfma_f32_32x32x16_bf16 {vr(S,16)}, {vr(KF,4)}, {vr(Q,4)}, 0")
    a("s_nop 15")
    for i in range(0, 16, 2): a(f"v_max3_f32 v31, v31, v{S+i}, v{S+i+1}")
    a("s_add_u32 s65, s65, 1")
    a("s_cmp_lt_u32 s65, 64")
    a("s_cbranch_scc1 MAXL")
    a(f"v_mov_b32 v{S}, v31")
    a("s_nop 1")
    a(f"v_permlane32_swap_b32 v31, v{S}")
    a("s_nop 1")
    a(f"v_max_f32 v31, v31, v{S}")
    for i in range(16): a(f"v_sub_f32 v{NM+i}, 0, v31")
    a(f"v_mov_b32 v{AK}, v3")
    a(f"v_subrev_u32 v{AV}, {64*2048}, v{AV}")
    for i in range(16): a(f"v_mov_b32 v{O+i}, 0")
    for i in range(8): a(f"v_mov_b32 v{S+16+8+i}, 0")
    a("s_mov_b32 s65, 0")
    prolog(vr(NM,16))
    a.label("FBL")
    for u in range(2): tile(u, cin=vr(NM,16))
    a(f"v_add_u32 v{AK}, {2*2048}, v{AK}")
    a(f"v_add_u32 v{AV}, {2*2048}, v{AV}")
    a("s_add_u32 s65, s65, 1")
    a("s_cmp_lt_u32 s65, 32")
    a("s_cbranch_scc1 FBL")
    a("s_branch LEXIT")

HEAD = '.amdgcn_target "amdgcn-amd-amdhsa--gfx950"\n.text\n'
def sizes(lines):
    txt = HEAD
    for i, (l, _) in enumerate(lines):
        if l.startswith("@@") or l.startswith(".p2align"): continue
        txt += f"ZZ{i}:\n{l}\n"
    txt += "ZZEND:\n"
    open("_sz.s", "w").write(txt)
    subprocess.run(["clang", "-x", "assembler", "-target", "amdgcn-amd-amdhsa", "-mcpu=gfx950", "-c", "_sz.s", "-o", "_sz.o"], check=True)
    out = subprocess.run(["llvm-objdump", "-t", "_sz.o"], capture_output=True, text=True).stdout
    ad = {}
    for m in re.finditer(r"^([0-9a-f]+) .* ZZ(\w+)$", out, re.M): ad[m.group(2)] = int(m.group(1), 16)
    keys = sorted((int(k) for k in ad if k != "END"))
    sz = {}
    for x, y in zip(keys, keys[1:] + ["END"]): sz[x] = ad[str(y)] - ad[str(x)]
    return sz

def layout(lines):
    NW = 8
    if not PADS:
        return "\n".join(l for l, _ in lines if not l.startswith("@@")) + "\n"
    sz = sizes(lines)
    CALL = 8*NW
    out = []; pos = 0; npad = 0; i = 0; n = len(lines)
    def emit_pad():
        nonlocal pos, npad
        prev = out[-1].strip() if out else ""
        if not (prev.startswith("s_branch") or prev.startswith("s_endpgm")):
            out.append(f"    s_branch PSK{npad}"); pos += 4
        out.append(".p2align 10"); pos = (pos + 1023)//1024*1024
        out.append(f"PAD{npad}:"); out.append(f"@@PADNEXT{npad}@@"); pos += 4
        out.append(f"PSK{npad}:")
        npad += 1
    def lsize(k, p):
        l = lines[k][0]
        if l == "@@PADCALL@@": return CALL
        if l.startswith("@@"): return 0
        if l.startswith(".p2align"):
            al = 1 << int(l.split()[1]); return (-p) % al
        return sz.get(k, 0)
    while i < n:
        l, np_ = lines[i]
        if l == "@@FORCEPAD@@":
            emit_pad(); i += 1; continue
        if not np_ and pos >= 1024:
            p = pos; k = i
            p += lsize(k, p); k += 1
            while k < n and lines[k][1] and lines[k][0] != "@@FORCEPAD@@":
                p += lsize(k, p); k += 1
            lim = (pos // 1024 + 1)*1024 if pos % 1024 else pos + 1024
            if p + 4 > lim and k < n and lines[k][0] != "@@FORCEPAD@@" and (pos % 1024) > 8:
                emit_pad()
        out.append(l); pos += lsize(i, pos); i += 1
    txt = "\n".join(out) + "\n"
    call = ""
    for w in range(NW):
        call += f"    s_cmp_eq_u32 s3, {w}\n    s_cbranch_scc1 {'PAD%d' % w if w < npad else 'PADRET'}\n"
    txt = txt.replace("@@PADCALL@@\n", call)
    for k in range(npad):
        nxt = f"PAD{k+NW}" if k + NW < npad else "PADRET"
        txt = txt.replace(f"@@PADNEXT{k}@@", f"    s_branch {nxt}")
    return txt

def main():
    ref = open(f"cdna_kernels/{NAME}.s.ref").read().split("\n")
    hdr = []
    for line in ref:
        if line.startswith(";") and "@launch" not in line: hdr.append(line)
        elif not line.startswith(";"): break
    a = Asm(); gen_entry(a); gen_loader1(a)
    cut = next(i for i, (l, _) in enumerate(a.l) if "L0: " in l or l.strip().startswith("@@CUT")) if False else None
    b = Asm(); gen_compute(b)
    c = Asm(); c.nopad = 1; stampout(c); c.label("END"); c("s_endpgm")
    k = max(i for i, (l, _) in enumerate(a.l) if l == "LQ:")
    first = a.l[:k]; second = a.l[k:]
    kf = next(i for i, (l, _) in enumerate(b.l) if l == "FALLBACK:")
    lines = first + b.l[:kf] + second + b.l[kf:] + c.l
    out = "\n".join(hdr) + "\n"
    out += f"; @launch grid=(256,1,1) block=(768,1,1) lds={L_TOTAL}\n"
    out += HEAD + layout(lines)
    out += f""".section .rodata,"a"
.p2align 6
.amdhsa_kernel {KN}
  .amdhsa_next_free_vgpr 168
  .amdhsa_next_free_sgpr 96
  .amdhsa_accum_offset 168
  .amdhsa_group_segment_fixed_size 0
  .amdhsa_kernarg_size 96
  .amdhsa_user_sgpr_count 2
  .amdhsa_user_sgpr_kernarg_segment_ptr 1
  .amdhsa_system_sgpr_workgroup_id_x 1
  .amdhsa_float_denorm_mode_32 3
.end_amdhsa_kernel
"""
    dst = sys.argv[1] if len(sys.argv) > 1 else f"cdna_kernels/{NAME}.s"
    open(dst, "w").write(out)

if __name__ == "__main__":
    main()
```
